```python
import torch

def _softmax(x, axis=-1):
    return torch.softmax(x, dim=axis)
def _gelu(x):
    return torch.nn.functional.gelu(x, approximate="tanh")
def _silu(x):
    return torch.nn.functional.silu(x)
def _sigmoid(x):
    return torch.sigmoid(x)
def _layernorm(x, axis=-1, eps=1e-5):
    m = x.mean(dim=axis, keepdim=True)
    v = x.var(dim=axis, keepdim=True, unbiased=False)
    return (x - m) / torch.sqrt(v + eps)
def _scatter_add(tgt, idx, src, axis=0):
    return tgt.clone().index_add_(axis, idx, src)
def _segment_sum(src, seg, n):
    out = torch.zeros((n,) + src.shape[1:], dtype=src.dtype)
    return out.index_add_(0, seg, src)
def _pad(x, pw):
    flat = tuple(v for pair in reversed(pw) for v in pair)
    return torch.nn.functional.pad(x, flat)

kernel_name = 'sequential_preLN__mha_block__moe_arch_mod__prompt'

def setup_inputs():

    _w = (lambda a: (lambda t: t.to(torch.bfloat16) if t.is_floating_point() else t)(torch.as_tensor(a)))
    def _A_setup():
        B, S, D, H = 1, 2048, 576, 32
        return {
            "x": _w((lambda *s: torch.randn(*s, dtype=torch.bfloat16) * 0.05)(B, S, D)),
            "wqkv": _w((lambda *s: torch.randn(*s, dtype=torch.bfloat16) * 0.05)(D, 3 * D)),
            "wo": _w((lambda *s: torch.randn(*s, dtype=torch.bfloat16) * 0.05)(D, D)),
        }
    _A_in = _A_setup()

    def _B_setup():
        B, S, D, F, C = 1, 2048, 576, 4608, 1
        return {
            "x": _w((lambda *s: torch.randn(*s, dtype=torch.bfloat16) * 0.05)(B, S, D)),
            "w_r": _w((lambda *s: torch.randn(*s, dtype=torch.bfloat16) * 0.05)(D)),
            "w_gate": _w((lambda *s: torch.randn(*s, dtype=torch.bfloat16) * 0.05)(D, F)),
            "w_up": _w((lambda *s: torch.randn(*s, dtype=torch.bfloat16) * 0.05)(D, F)),
            "w_down": _w((lambda *s: torch.randn(*s, dtype=torch.bfloat16) * 0.05)(F, D)),
        }
    _B_in = _B_setup()

    return {
        "A_x": _A_in["x"],
        "A_wqkv": _A_in["wqkv"],
        "A_wo": _A_in["wo"],
        "B_x": _B_in["x"],
        "B_w_r": _B_in["w_r"],
        "B_w_gate": _B_in["w_gate"],
        "B_w_up": _B_in["w_up"],
        "B_w_down": _B_in["w_down"],
    }

def reference(A_x, A_wqkv, A_wo, B_x, B_w_r, B_w_gate, B_w_up, B_w_down):
    def _A_ref(x, wqkv, wo):
        B, S, D = x.shape
        H = 32
        Dh = D // H
        qkv = (lambda x, *d: x.permute(*d))((x @ wqkv).reshape(B, S, 3, H, Dh), 2, 0, 3, 1, 4)
        q, k, v = qkv[0], qkv[1], qkv[2]
        scores = torch.einsum("bhqd,bhkd->bhqk", q, k) * (Dh ** -0.5)
        p = _softmax(scores, axis=-1)
        o = torch.einsum("bhqk,bhkd->bhqd", p, v)
        return (lambda x, *d: x.permute(*d))(o, 0, 2, 1, 3).reshape(B, S, D) @ wo

    def _B_ref(x, w_r, w_gate, w_up, w_down):
        B, S, D = x.shape
        C = 1
        r = x @ w_r
        idx = torch.argsort(-r, axis=-1)[:, :C]
        idx_e = (lambda x, n, axis: torch.repeat_interleave(x, n, dim=axis))(idx.reshape(B, C, 1), D, axis=2)
        x_sel = (lambda x, i, axis: torch.take_along_dim(x, i, dim=axis))(x, idx_e, axis=1)
        g = _silu(x_sel @ w_gate)
        u = x_sel @ w_up
        y = (g * u) @ w_down
        r_sel = _sigmoid((lambda x, i, axis: torch.take_along_dim(x, i, dim=axis))(r, idx, axis=1))
        y = y * r_sel.reshape(B, C, 1)
        b_off = (torch.arange(B) * S).reshape(B, 1)
        flat_idx = (idx + b_off).reshape(B * C)
        zero = (x * 0.0).reshape(B * S, D)
        upd = _scatter_add(zero, flat_idx, y.reshape(B * C, D), axis=0)
        return x + upd.reshape(B, S, D)

    x = A_x
    h = x + _A_ref(_layernorm(x, axis=-1), A_wqkv, A_wo)
    h2 = h + _B_ref(_layernorm(h, axis=-1), B_w_r, B_w_gate, B_w_up, B_w_down)
    return h2
```

```python
import re

_REG = re.compile(r'\b([vsa])(\d+)\b|\b([vsa])\[(\d+):(\d+)\]|\b(vcc|exec|m0|scc)\b')

TRANS = ('v_exp_f32', 'v_log_f32', 'v_rcp_f32', 'v_rsq_f32', 'v_sqrt_f32', 'v_sin_f32', 'v_cos_f32', 'v_rcp_iflag_f32')


def regs_of(tok):
    out = set()
    for m in _REG.finditer(tok):
        if m.group(1):
            out.add((m.group(1), int(m.group(2))))
        elif m.group(3):
            for i in range(int(m.group(4)), int(m.group(5)) + 1):
                out.add((m.group(3), i))
        else:
            n = m.group(6)
            out.add((n, 0))
    return out


class Ins:
    __slots__ = ('text', 'op', 'kind', 'rd', 'wr', 'srcc', 'srcab', 'passes', 'states')

    def __init__(self, text):
        self.text = text
        t = text.split(';')[0].strip()
        parts = t.split(None, 1)
        self.op = parts[0]
        ops = []
        if len(parts) > 1:
            depth = 0
            cur = ''
            for ch in parts[1]:
                if ch == '[':
                    depth += 1
                if ch == ']':
                    depth -= 1
                if ch == ',' and depth == 0:
                    ops.append(cur.strip())
                    cur = ''
                else:
                    cur += ch
            ops.append(cur.strip())
        op = self.op
        self.rd = set()
        self.wr = set()
        self.srcc = set()
        self.srcab = set()
        self.passes = 0
        self.states = 1
        if op == 's_nop':
            self.kind = 'nop'
            self.states = int(ops[0], 0) + 1
            return
        if op.startswith('v_mfma'):
            self.kind = 'mfma'
            self.wr = regs_of(ops[0])
            self.srcab = regs_of(ops[1]) | regs_of(ops[2])
            self.srcc = regs_of(ops[3].split()[0])
            self.rd = self.srcab | self.srcc
            if '32x32x16' in op or '32x32x8_' in op:
                self.passes = 8
            elif '16x16x32' in op or '16x16x16' in op:
                self.passes = 4
            elif '4x4x4' in op:
                self.passes = 2
            else:
                self.passes = 16
            return
        if op.startswith('v_'):
            self.kind = 'valu'
            if op in TRANS or op.replace('_e32', '').replace('_e64', '') in TRANS:
                self.kind = 'trans'
            if op.startswith('v_dot'):
                self.kind = 'dot'
            if op.startswith('v_cmp'):
                self.wr = regs_of(ops[0])
                if op.startswith('v_cmpx'):
                    self.wr |= {('exec', 0)}
                for o in ops[1:]:
                    self.rd |= regs_of(o)
            elif op.startswith('v_permlane') and 'swap' in op:
                self.kind = 'perm'
                self.wr = regs_of(ops[0]) | regs_of(ops[1])
                self.rd = set(self.wr)
            elif op.startswith('v_readfirstlane') or op.startswith('v_readlane'):
                self.kind = 'rdlane'
                self.wr = regs_of(ops[0])
                for o in ops[1:]:
                    self.rd |= regs_of(o)
            elif op.startswith(('v_add_co', 'v_sub_co', 'v_addc_co', 'v_subb_co', 'v_subrev_co')):
                self.wr = regs_of(ops[0]) | regs_of(ops[1])
                for o in ops[2:]:
                    self.rd |= regs_of(o)
            else:
                self.wr = regs_of(ops[0])
                for o in ops[1:]:
                    self.rd |= regs_of(o)
                if op.startswith(('v_fmac', 'v_dot2c', 'v_pk_fmac')) or 'sdwa' in op or 'dpp' in text:
                    self.rd |= self.wr
                if op.startswith('v_cndmask') and len(ops) == 3:
                    self.rd |= {('vcc', 0)}
            if 'dpp' in text or 'row_' in text or 'quad_perm' in text:
                self.kind = 'dpp'
            return
        if op.startswith('ds_'):
            self.kind = 'ds'
            if op.startswith(('ds_read', 'ds_bpermute', 'ds_permute', 'ds_swizzle')) or '_rtn' in op:
                self.wr = regs_of(ops[0])
                for o in ops[1:]:
                    self.rd |= regs_of(o.split()[0])
            else:
                for o in ops:
                    self.rd |= regs_of(o.split()[0])
            return
        if op.startswith(('buffer_', 'global_')):
            self.kind = 'vmem'
            lds = re.search(r'\blds\b', t) is not None
            if op.startswith('buffer_inv') or op.startswith('buffer_wbl2'):
                return
            if ('load' in op) and not lds:
                self.wr = regs_of(ops[0])
                for o in ops[1:]:
                    self.rd |= regs_of(o.split()[0]) if o else set()
            elif 'atomic' in op and ' sc0' in t:
                self.wr = regs_of(ops[0])
                for o in ops:
                    self.rd |= regs_of(o.split()[0]) if o else set()
            else:
                for o in ops:
                    self.rd |= regs_of(o.split()[0]) if o else set()
                if lds:
                    self.rd |= {('m0', 0)}
                    self.kind = 'vmem_lds'
                elif re.search(r'x[34]\b', op):
                    self.kind = 'vmem_wide_store'
                    self.srcc = regs_of(ops[0]) if op.startswith('buffer_') else regs_of(ops[1])
            return
        if op.startswith('s_'):
            self.kind = 'salu'
            if op.startswith(('s_load', 's_buffer_load', 's_memtime', 's_memrealtime')):
                self.kind = 'smem'
                self.wr = regs_of(ops[0])
                for o in ops[1:]:
                    self.rd |= regs_of(o)
            elif op.startswith(('s_cmp', 's_bitcmp')):
                for o in ops:
                    self.rd |= regs_of(o)
                self.wr = {('scc', 0)}
            elif op.startswith(('s_waitcnt', 's_barrier', 's_branch', 's_cbranch', 's_endpgm', 's_setprio', 's_sleep', 's_sethalt')):
                self.kind = 'ctl'
            else:
                self.wr = regs_of(ops[0])
                for o in ops[1:]:
                    self.rd |= regs_of(o)
                if 'saveexec' in op:
                    self.wr |= {('exec', 0)}
            return
        self.kind = 'other'


VALU_KINDS = ('valu', 'trans', 'dot', 'perm', 'rdlane', 'dpp')


def need(prod, cons):
    n = 0
    pk, ck = prod.kind, cons.kind
    vw = {r for r in prod.wr if r[0] in 'va'}
    sw = {r for r in prod.wr if r[0] == 's' or r[0] == 'vcc'}
    if pk in VALU_KINDS:
        if ck == 'mfma' and (vw & cons.rd):
            n = max(n, 2 if pk != 'dot' else 3)
        if pk == 'trans' and ck in VALU_KINDS + ('mfma',) and ck != 'trans' and (vw & (cons.rd | cons.wr)):
            n = max(n, 1)
        if pk == 'trans' and ck in ('vmem', 'vmem_lds', 'vmem_wide_store', 'ds') and (vw & cons.rd):
            n = max(n, 1)
        if ck == 'perm' and (vw & cons.rd):
            n = max(n, 2)
        if ck == 'dpp' and (vw & cons.rd):
            n = max(n, 2)
        if ck == 'rdlane' and (vw & cons.rd):
            n = max(n, 1)
        if sw:
            if ck in VALU_KINDS + ('mfma',) and (sw & cons.rd):
                n = max(n, 2 if ck != 'rdlane' else 4)
            if ck in ('vmem', 'vmem_lds', 'vmem_wide_store') and (sw & cons.rd):
                n = max(n, 5)
            if ck in ('salu', 'smem', 'ctl') and (sw & cons.rd):
                n = max(n, 1)
        if ('exec', 0) in prod.wr:
            if ck in ('mfma', 'perm', 'rdlane'):
                n = max(n, 4)
            if ck == 'dpp':
                n = max(n, 5)
        if pk == 'dot':
            if ck == 'dot' and cons.op == prod.op:
                ab = set()
                if vw & (cons.rd - cons.wr):
                    n = max(n, 3)
            elif vw & (cons.rd | cons.wr):
                n = max(n, 3)
        if 'sdwa' in prod.op or 'op_sel' in prod.text:
            if ck in VALU_KINDS + ('mfma',) and (vw & (cons.rd | cons.wr)):
                n = max(n, 1)
    if pk == 'mfma':
        p = prod.passes
        t_valu = {2: 5, 4: 8, 8: 12, 16: 20}[p]
        t_ovl = {2: 4, 4: 6, 8: 10, 16: 18}[p]
        if ck == 'mfma':
            if vw & cons.srcab:
                n = max(n, t_valu)
            if vw & cons.srcc:
                if cons.srcc == vw and cons.passes == p:
                    n = max(n, 2 if p == 2 else 0)
                else:
                    n = max(n, t_ovl)
            elif vw & cons.wr:
                n = max(n, t_ovl)
        elif ck in VALU_KINDS:
            if vw & (cons.rd | cons.wr):
                n = max(n, t_valu)
            if prod.srcc & cons.wr:
                n = max(n, {2: 1, 4: 3, 8: 7, 16: 15}[p])
        elif ck in ('vmem', 'vmem_lds', 'vmem_wide_store', 'ds'):
            if vw & (cons.rd | cons.wr):
                n = max(n, t_valu)
            if prod.srcc & cons.wr:
                n = max(n, {2: 1, 4: 3, 8: 7, 16: 15}[p])
    if pk == 'vmem_wide_store':
        if ck in VALU_KINDS + ('mfma',) and (prod.srcc & cons.wr):
            n = max(n, 2)
        elif prod.srcc & cons.wr:
            n = max(n, 1)
    if pk == 'ds' and prod.op in ('ds_write_b128', 'ds_write_b96', 'ds_write2_b64'):
        pass
    if pk == 'salu' and ('m0', 0) in prod.wr and ck == 'vmem_lds':
        n = max(n, 1)
    return n


MAXD = 24


class Asm:
    def __init__(self):
        self.items = []

    def __call__(self, text):
        for line in text.strip().split('\n'):
            line = line.strip()
            if not line:
                continue
            if line.startswith(';') or line.startswith('.') or line.endswith(':'):
                self.items.append(line)
            else:
                self.items.append(Ins(line))

    def raw(self, s):
        self.items.append(s)

    def label(self, name):
        self.items.append(name + ':')

    def render(self):
        out = []
        hist = []
        label_pos = {}
        for it in self.items:
            if isinstance(it, str):
                out.append(it)
                continue
            req = self._required(hist, it)
            if req > 0:
                while req > 0:
                    k = min(req, 16)
                    nop = Ins('s_nop %d' % (k - 1))
                    out.append(nop)
                    hist.append(nop)
                    req -= k
            out.append(it)
            hist.append(it)
            if it.op in ('s_branch', 's_endpgm'):
                hist = []
            hist = hist[-MAXD:]
        labels = {}
        for i, it in enumerate(out):
            if isinstance(it, str) and it.endswith(':'):
                labels[it[:-1]] = i
        problems = []
        for i, it in enumerate(out):
            if isinstance(it, Ins) and it.op.startswith(('s_branch', 's_cbranch')):
                tgt = it.text.split()[1]
                if tgt not in labels:
                    continue
                h = [x for x in out[max(0, i - 3 * MAXD):i + 1] if isinstance(x, Ins)][-MAXD:]
                j = labels[tgt] + 1
                cnt = 0
                while j < len(out) and cnt < MAXD:
                    x = out[j]
                    j += 1
                    if isinstance(x, str):
                        continue
                    req = self._required(h, x)
                    if req > 0:
                        problems.append((it.text, x.text, req))
                    h.append(x)
                    cnt += x.states
                    if x.op in ('s_branch', 's_endpgm'):
                        break
        if problems:
            for p in problems:
                print('HAZARD across branch:', p)
            raise SystemExit('unresolved hazards across branches')
        lines = []
        for it in out:
            if isinstance(it, str):
                lines.append(it)
            else:
                lines.append('    ' + it.text)
        return '\n'.join(lines) + '\n'

    @staticmethod
    def _required(hist, cons):
        req = 0
        dist = 0
        for prod in reversed(hist):
            n = need(prod, cons)
            if n > dist:
                req = max(req, n - dist)
            dist += prod.states
            if dist >= MAXD:
                break
        return req
```

```python
import sys, struct, math
from asmlib import Asm

NAME = 'sequential_preLN__mha_block__moe_arch_mod__prompt'

CHUNK = 19456
HEADKV = 8 * CHUNK
WS_KV = 0
WS_Q = 0x500000
HEADQ = 73728
WS_O = 0x800000
WS_H = 0xB00000
WS_STAT = 0xE00000
WS_SEL = 0xE08000
WS_Y = 0xE10000
WS_SIZE = 0x1000000

def f32(x):
    return '0x%08x' % struct.unpack('<I', struct.pack('<f', x))[0]

CQ = (18 ** -0.5) * math.log2(math.e)

def srd(a, d, lo, nbytes):
    a(f'''
    s_mov_b32 s{d}, s{lo}
    s_mov_b32 s{d+1}, s{lo+1}
    s_mov_b32 s{d+2}, {nbytes}
    s_mov_b32 s{d+3}, 0x00020000
    ''')

def vr(b, n):
    return f'v[{b}:{b+n-1}]' if n > 1 else f'v{b}'

def bf16_round(a, dst, src):
    a(f'v_cvt_pk_bf16_f32 v{dst}, v{src}, v{src}')
    a(f'v_lshlrev_b32 v{dst}, 16, v{dst}')

def ln_scalars(a, vsum, vsq, vm, vrinv, vt):
    a(f'''
    v_mul_f32 v{vm}, {f32(1.0/576)}, v{vsum}
    v_mul_f32 v{vt}, {f32(1.0/576)}, v{vsq}
    v_fma_f32 v{vt}, -v{vm}, v{vm}, v{vt}
    v_max_f32 v{vt}, 0, v{vt}
    ''')
    bf16_round(a, vt, vt)
    a(f'v_add_f32 v{vt}, {f32(1e-5)}, v{vt}')
    bf16_round(a, vt, vt)
    a(f'v_sqrt_f32 v{vt}, v{vt}')
    bf16_round(a, vt, vt)
    a(f'v_rcp_f32 v{vrinv}, v{vt}')
    bf16_round(a, vm, vm)

kernels = []

def begin(a, label):
    a.raw('.p2align 8')
    a.raw(f'.globl {label}')
    a.raw(f'.type {label},@function')
    a.label(label)

def k1(a):
    L = 'k1_qkv_kernel'
    begin(a, L)
    NB = 5
    BUF = 32768
    SX, SW, SWS = 12, 16, 20
    s_cb, s_tb, s_w, s_w1k, s_xb, s_wb, s_t0, s_t1 = 24, 25, 26, 27, 28, 29, 30, 31
    s_wmask = 32
    s_u, s_part, s_pair, s_gt, s_dst, s_scale, s_hs = 34, 35, 36, 37, 38, 39, 40
    s_m = 42
    v_tid, v_l, v_t, v_h = 0, 1, 2, 3
    vX, vW = 4, 5
    vXa = 6
    vWa = 10
    v_sq, v_ws = 12, 13
    v_one = 14
    vt = 16
    XF = [24, 32]
    WF = [40, 48]
    ACC = 64
    a(f'''
    s_cmp_ge_u32 s2, 256
    s_cbranch_scc1 {L}_end
    s_load_dwordx4 s[4:7], s[0:1], 0
    s_load_dwordx2 s[8:9], s[0:1], 80
    s_and_b32 s10, s2, 7
    s_lshr_b32 s11, s2, 3
    s_and_b32 s{s_cb}, s10, 3
    s_lshl_b32 s{s_cb}, s{s_cb}, 2
    s_and_b32 s{s_t0}, s11, 3
    s_add_u32 s{s_cb}, s{s_cb}, s{s_t0}
    s_lshr_b32 s{s_tb}, s10, 2
    s_lshl_b32 s{s_tb}, s{s_tb}, 3
    s_lshr_b32 s{s_t0}, s11, 2
    s_add_u32 s{s_tb}, s{s_tb}, s{s_t0}
    v_and_b32 v{v_l}, 63, v0
    v_lshrrev_b32 v{vt}, 6, v0
    v_and_b32 v{v_t}, 31, v0
    v_readfirstlane_b32 s{s_w}, v{vt}
    v_bfe_u32 v{v_h}, v0, 5, 1
    s_lshl_b32 s{s_w1k}, s{s_w}, 10
    s_mul_i32 s{s_xb}, s{s_tb}, {128*1152}
    s_mul_i32 s{s_wb}, s{s_cb}, 216
    ''')
    a(f'''
    v_lshrrev_b32 v{vt}, 3, v{v_l}
    s_lshl_b32 s{s_t0}, s{s_w}, 3
    v_add_u32 v{vt}, s{s_t0}, v{vt}
    v_mul_u32_u24 v{vX}, 1152, v{vt}
    s_and_b32 s{s_t0}, s{s_w}, 1
    s_lshl_b32 s{s_t0}, s{s_t0}, 2
    v_lshrrev_b32 v{vt}, 4, v{v_l}
    v_add_u32 v{vt+1}, s{s_t0}, v{vt}
    v_and_b32 v{vt+2}, 7, v{v_l}
    v_xor_b32 v{vt+2}, v{vt+2}, v{vt+1}
    v_lshl_add_u32 v{vX}, v{vt+2}, 4, v{vX}
    ''')
    a(f'''
    s_lshl_b32 s{s_t0}, s{s_w}, 2
    v_add_u32 v{vt+1}, s{s_t0}, v{vt}
    v_mul_u32_u24 v{vW}, 3456, v{vt+1}
    v_and_b32 v{vt+2}, 15, v{v_l}
    v_lshlrev_b32 v{vt+3}, 2, v{vt}
    v_xor_b32 v{vt+2}, v{vt+2}, v{vt+3}
    v_lshl_add_u32 v{vW}, v{vt+2}, 4, v{vW}
    v_cmp_gt_u32 s[{s_wmask}:{s_wmask+1}], 14, v{vt+2}
    s_waitcnt lgkmcnt(0)
    ''')
    srd(a, SX, 4, 2048*1152)
    srd(a, SW, 6, 576*3456)
    srd(a, SWS, 8, WS_SIZE)

    def issue_chunk(c):
        b = c % NB
        for j in range(4):
            a(f'''
            s_add_u32 m0, s{s_w1k}, {b*BUF + j*4096}
            s_add_u32 s{s_t0}, s{s_xb}, {c*128 + j*32*1152}
            buffer_load_dwordx4 v{vX}, s[{SX}:{SX+3}], s{s_t0} offen lds
            ''')
        a(f's_mov_b64 exec, s[{s_wmask}:{s_wmask+1}]')
        for j in range(4):
            a(f'''
            s_add_u32 m0, s{s_w1k}, {b*BUF + 16384 + j*4096}
            s_add_u32 s{s_t0}, s{s_wb}, {(64*c + 16*j)*3456}
            buffer_load_dwordx4 v{vW}, s[{SW}:{SW+3}], s{s_t0} offen lds
            ''')
        a('s_mov_b64 exec, -1')

    issue_chunk(0)
    a(f'''
    v_and_b32 v{vt}, 3, v{v_l}
    v_lshlrev_b32 v{vt}, 2, v{vt}
    v_xor_b32 v{vt}, 14, v{vt}
    v_lshlrev_b32 v{vt}, 4, v{vt}
    v_lshl_add_u32 v{vt}, v{v_l}, 8, v{vt}
    s_lshl_b32 s{s_t0}, s{s_w}, 15
    v_add_u32 v{vt+1}, s{s_t0}, v{vt}
    v_add_u32 v{vt}, {4*BUF}, v{vt}
    v_mov_b32 v{vt+2}, 0x3f80
    v_mov_b32 v{vt+3}, 0
    ds_write_b64 v{vt+1}, v[{vt+2}:{vt+3}] offset:16384
    ds_write_b64 v{vt}, v[{vt+2}:{vt+3}] offset:16384
    ''')
    for c in range(1, NB):
        issue_chunk(c)
    a(f'''
    v_lshlrev_b32 v{vt}, 2, v0
    v_mov_b32 v{vt+1}, 0
    s_mul_i32 s{s_t0}, s2, 96
    s_add_u32 s{s_t0}, s{s_t0}, {WS_STAT}
    v_cmp_gt_u32 vcc, 24, v0
    s_and_saveexec_b64 s[{s_m}:{s_m+1}], vcc
    s_cbranch_execz {L}_nz
    buffer_store_dword v{vt+1}, v{vt}, s[{SWS}:{SWS+3}], s{s_t0} offen
    {L}_nz:
    s_mov_b64 exec, -1
    ''')
    a(f'''
    s_and_b32 s{s_t0}, s{s_w}, 1
    s_lshl_b32 s{s_t0}, s{s_t0}, 13
    v_lshlrev_b32 v{vt}, 7, v{v_t}
    v_add_u32 v{vt}, s{s_t0}, v{vt}
    v_bfe_u32 v{vt+1}, v{v_t}, 1, 3
    v_xor_b32 v{vt+1}, v{vt+1}, v{v_h}
    v_lshl_add_u32 v{vXa}, v{vt+1}, 4, v{vt}
    v_xor_b32 v{vXa+1}, 32, v{vXa}
    v_xor_b32 v{vXa+2}, 64, v{vXa}
    v_xor_b32 v{vXa+3}, 96, v{vXa}
    ''')
    v_r, v_c4, v_gp = vt+4, vt+5, vt+6
    a(f'''
    v_bfe_u32 v{v_r}, v{v_l}, 2, 2
    v_and_b32 v{v_c4}, 3, v{v_l}
    v_bfe_u32 v{v_gp}, v{v_l}, 4, 1
    s_lshr_b32 s{s_t1}, s{s_w}, 1
    ''')
    for i in range(2):
        a(f'''
        s_lshl_b32 s{s_t0}, s{s_t1}, 1
        s_add_u32 s{s_t0}, s{s_t0}, {i}
        s_mul_i32 s{s_t0}, s{s_t0}, 72
        v_mul_u32_u24 v{vt}, 40, v{v_gp}
        v_lshl_add_u32 v{vt}, v{v_c4}, 3, v{vt}
        v_add_u32 v{vt}, s{s_t0}, v{vt}
        ''')
        if i == 1:
            a(f'''
            v_lshrrev_b32 v{vt+1}, 1, v{v_c4}
            v_lshl_add_u32 v{vt+1}, v{v_gp}, 1, v{vt+1}
            v_mul_u32_u24 v{vt+2}, 72, v{vt+1}
            v_add_u32 v{vt+2}, 32, v{vt+2}
            v_min_u32 v{vt+2}, 224, v{vt+2}
            s_cmp_eq_u32 s{s_t1}, 1
            s_cselect_b64 s[{s_m}:{s_m+1}], -1, 0
            v_cndmask_b32 v{vt}, v{vt}, v{vt+2}, s[{s_m}:{s_m+1}]
            ''')
        a(f'''
        v_lshlrev_b32 v{vt+1}, 6, v{v_r}
        v_xor_b32 v{vt}, v{vt}, v{vt+1}
        v_lshl_add_u32 v{vt+1}, v{v_h}, 3, v{v_r}
        v_lshl_add_u32 v{vt}, v{vt+1}, 8, v{vt}
        v_add_u32 v{vWa+i}, 16384, v{vt}
        ''')
    a(f'''
    v_mov_b32 v{v_sq}, 0
    v_mov_b32 v{v_ws}, 0
    v_mov_b32 v{v_one}, 0x3f803f80
    ''')
    vXb = 56
    a(f'''
    s_lshl_b32 s{s_t0}, s{s_t1}, 12
    s_xor_b32 s{s_u}, s{s_t0}, 4096
    ''')
    for s in range(4):
        a(f'v_add_u32 v{vXb+s}, s{s_u}, v{vXa+s}')
        a(f'v_add_u32 v{vXa+s}, s{s_t0}, v{vXa+s}')
    a(f'''
    s_and_b32 s{s_t0}, s{s_w}, 1
    s_cmp_eq_u32 s{s_t0}, 1
    s_cselect_b64 s[{s_m}:{s_m+1}], -1, 0
    v_cndmask_b32 v{vt}, v{vWa}, v{vWa+1}, s[{s_m}:{s_m+1}]
    v_cndmask_b32 v{vWa+1}, v{vWa+1}, v{vWa}, s[{s_m}:{s_m+1}]
    v_mov_b32 v{vWa}, v{vt}
    ''')
    seg = [0]

    def setseg(b):
        want = (b * BUF) // 65536
        if want != seg[0]:
            d = (want - seg[0]) * 65536
            for r in list(range(vXa, vXa+4)) + list(range(vXb, vXb+4)) + [vWa, vWa+1]:
                if d > 0:
                    a(f'v_add_u32 v{r}, {d}, v{r}')
                else:
                    a(f'v_subrev_u32 v{r}, {-d}, v{r}')
            seg[0] = want

    def reads(c, s, fb):
        b = c % NB
        setseg(b)
        off = b * BUF - seg[0] * 65536
        a(f'ds_read_b128 {vr(XF[fb], 4)}, v{vXa+s} offset:{off}')
        for i in range(2):
            for j in range(2):
                a(f'ds_read_b64_tr_b16 {vr(WF[fb]+4*i+2*j, 2)}, v{vWa+i} offset:{off + s*4096 + j*1024}')
            if i == 0:
                a(f'ds_read_b128 {vr(XF[fb]+4, 4)}, v{vXb+s} offset:{off}')

    def compute(fb, first):
        for i in range(2):
            for x in range(2):
                acc = ACC + (i*2 + x)*16
                cc = '0' if first else vr(acc, 16)
                a(f'v_mfma_f32_32x32x16_bf16 {vr(acc,16)}, {vr(WF[fb]+4*i,4)}, {vr(XF[fb]+4*x,4)}, {cc}')
                k = i*2 + x
                a(f'v_dot2c_f32_bf16 v{v_sq}, v{XF[fb]+k}, v{XF[fb]+k}')
                a(f'v_dot2c_f32_bf16 v{v_ws}, v{WF[fb]+k}, v{v_one}')

    issued = NB
    a(f's_waitcnt vmcnt({8*(issued-1)}) lgkmcnt(0)')
    a('s_barrier')
    reads(0, 0, 0)
    step = 0
    for c in range(9):
        for s in range(4):
            fb = step % 2
            if s < 3:
                reads(c, s+1, 1-fb)
                a('s_waitcnt lgkmcnt(6)')
            elif c < 8:
                a(f's_waitcnt vmcnt({8*(issued-1-(c+1))}) lgkmcnt(0)')
                a('s_barrier')
                reads(c+1, 0, 1-fb)
                if issued < 9:
                    issue_chunk(issued)
                    issued += 1
            else:
                a('s_waitcnt lgkmcnt(0)')
            compute(fb, step == 0)
            step += 1
    a(f'''
    v_mov_b32 v{vt}, v{v_sq}
    v_mov_b32 v{vt+1}, v{v_ws}
    v_permlane32_swap_b32 v{v_sq}, v{vt}
    v_permlane32_swap_b32 v{v_ws}, v{vt+1}
    v_add_f32 v{v_sq}, v{v_sq}, v{vt}
    v_add_f32 v{v_ws}, v{v_ws}, v{vt+1}
    ''')
    a(f'''
    s_and_b32 s{s_t0}, s{s_w}, 1
    s_lshr_b32 s{s_t1}, s{s_w}, 1
    s_lshl_b32 s{s_u}, s{s_t0}, 1
    s_add_u32 s{s_u}, s{s_u}, s{s_t1}
    s_lshl_b32 s{s_u}, s{s_u}, 7
    v_lshlrev_b32 v{vt}, 2, v{v_t}
    v_add_u32 v{vt+1}, s{s_u}, v{vt}
    ds_write_b32 v{vt+1}, v{v_sq}
    s_lshl_b32 s{s_u}, s{s_t1}, 1
    s_add_u32 s{s_u}, s{s_u}, s{s_t0}
    s_lshl_b32 s{s_u}, s{s_u}, 7
    v_add_u32 v{vt+1}, s{s_u}, v{vt}
    ds_write_b32 v{vt+1}, v{v_ws} offset:1024
    s_cmp_eq_u32 s{s_t1}, 0
    s_cbranch_scc1 {L}_nosx
    ''')
    a(f'''
    s_cmp_eq_u32 s{s_t0}, 1
    s_cselect_b64 s[{s_m}:{s_m+1}], -1, 0
    v_cndmask_b32 v{vt+2}, v{ACC+2*16+12}, v{ACC+0*16+12}, s[{s_m}:{s_m+1}]
    v_cndmask_b32 v{vt+3}, v{ACC+3*16+12}, v{ACC+1*16+12}, s[{s_m}:{s_m+1}]
    s_lshl_b32 s{s_u}, s{s_t0}, 8
    v_add_u32 v{vt+1}, s{s_u}, v{vt}
    ds_write_b32 v{vt+1}, v{vt+2} offset:{512+128}
    ds_write_b32 v{vt+1}, v{vt+3} offset:512
    {L}_nosx:
    s_waitcnt lgkmcnt(0)
    s_barrier
    ''')
    vM = [24, 25]; vR = [26, 27]; vS = 28
    WS0 = 32
    a(f'''
    s_lshl_b32 s{s_u}, s{s_t0}, 8
    s_lshl_b32 s{s_part}, s{s_t1}, 7
    s_add_u32 s{s_pair}, s{s_u}, s{s_part}
    s_xor_b32 s{s_part}, s{s_part}, 128
    s_add_u32 s{s_u}, s{s_u}, s{s_part}
    v_add_u32 v{vt+1}, s{s_pair}, v{vt}
    v_add_u32 v{vt+2}, s{s_u}, v{vt}
    ds_read_b32 v{vS}, v{vt+1}
    ds_read_b32 v{vS+1}, v{vt+1} offset:512
    ds_read_b32 v{vS+2}, v{vt+2}
    ds_read_b32 v{vS+3}, v{vt+2} offset:512
    ''')
    a(f'''
    s_lshl_b32 s{s_u}, s{s_t1}, 1
    s_add_u32 s{s_u}, s{s_u}, s{s_t0}
    s_lshl_b32 s{s_u}, s{s_u}, 7
    s_xor_b32 s{s_part}, s{s_u}, 128
    v_lshlrev_b32 v{vt+1}, 4, v{v_h}
    v_add_u32 v{vt+2}, s{s_part}, v{vt+1}
    v_add_u32 v{vt+1}, s{s_u}, v{vt+1}
    ''')
    for i in range(2):
        for g in range(4):
            a(f'ds_read_b128 {vr(WS0+16*i+4*g, 4)}, v{vt+1+i} offset:{1024+32*g}')
    a('s_waitcnt lgkmcnt(8)')
    for x in range(2):
        ln_scalars(a, vS+2*x+1, vS+2*x, vM[x], vR[x], vt+3)
    a('s_waitcnt lgkmcnt(0)')
    for i in range(2):
        for x in range(2):
            acc = ACC + (i*2+x)*16
            for r in range(16):
                a(f'v_fma_f32 v{acc+r}, -v{vM[x]}, v{WS0+16*i+r}, v{acc+r}')
    v_lin, v_vrec, v_e4, v_e40, v_off, v_sc = 4, 5, 6, 7, 8, 9
    PK = 32
    a(f'''
    v_lshlrev_b32 v{v_lin}, 4, v{v_l}
    v_mul_u32_u24 v{v_vrec}, 40, v{v_t}
    v_lshlrev_b32 v{v_e4}, 2, v{v_t}
    v_add_u32 v{v_e40}, 32, v{v_vrec}
    v_lshl_add_u32 v{v_vrec}, v{v_h}, 4, v{v_vrec}
    ''')

    def unit_params(u_expr_done):
        a(f'''
        s_lshr_b32 s{s_part}, s{s_u}, 4
        s_and_b32 s{s_pair}, s{s_u}, 15
        s_cmp_eq_u32 s{s_part}, 0
        s_cselect_b32 s{s_scale}, {f32(CQ)}, 1.0
        s_mov_b32 s{s_hs}, {HEADKV}
        s_cselect_b32 s{s_hs}, {HEADQ}, s{s_hs}
        s_cselect_b32 s{s_dst}, {WS_Q}, {WS_KV}
        s_lshl_b32 s{s_pair}, s{s_pair}, 1
        s_mul_i32 s{s_pair}, s{s_pair}, s{s_hs}
        s_add_u32 s{s_dst}, s{s_dst}, s{s_pair}
        ''')

    s_a, s_b, s_c = 44, 45, 46
    for i in range(2):
        a(f'''
        s_xor_b32 s{s_u}, s{s_t0}, {i}
        s_lshl_b32 s{s_a}, s{s_t1}, 1
        s_add_u32 s{s_u}, s{s_u}, s{s_a}
        s_cmp_eq_u32 s{s_u}, 3
        s_cbranch_scc1 {L}_ext{i}
        s_mul_i32 s{s_a}, s{s_cb}, 3
        s_add_u32 s{s_u}, s{s_u}, s{s_a}
        ''')
        unit_params(None)
        a(f'''
        s_cmp_eq_u32 s{s_part}, 2
        s_cselect_b64 s[{s_m}:{s_m+1}], -1, 0
        v_cndmask_b32 v{v_off}, v{v_lin}, v{v_vrec}, s[{s_m}:{s_m+1}]
        ''')
        for x in range(2):
            acc = ACC + (i*2+x)*16
            a(f'''
            s_xor_b32 s{s_gt}, s{s_t1}, {x}
            s_lshl_b32 s{s_a}, s{s_t0}, 1
            s_add_u32 s{s_gt}, s{s_gt}, s{s_a}
            s_lshl_b32 s{s_a}, s{s_tb}, 2
            s_add_u32 s{s_gt}, s{s_gt}, s{s_a}
            s_lshr_b32 s{s_a}, s{s_gt}, 3
            s_mul_i32 s{s_a}, s{s_a}, {CHUNK}
            s_and_b32 s{s_b}, s{s_gt}, 7
            s_mul_i32 s{s_c}, s{s_b}, 1280
            s_add_u32 s{s_c}, s{s_c}, 9216
            s_lshl_b32 s{s_b}, s{s_b}, 10
            s_cmp_eq_u32 s{s_part}, 2
            s_cselect_b32 s{s_b}, s{s_c}, s{s_b}
            s_add_u32 s{s_a}, s{s_a}, s{s_b}
            s_lshl_b32 s{s_b}, s{s_gt}, 10
            s_cmp_eq_u32 s{s_part}, 0
            s_cselect_b32 s{s_a}, s{s_b}, s{s_a}
            s_add_u32 s{s_a}, s{s_a}, s{s_dst}
            s_add_u32 s{s_b}, s{s_a}, s{s_hs}
            v_mul_f32 v{v_sc}, s{s_scale}, v{vR[x]}
            ''')
            for r in range(16):
                a(f'v_mul_f32 v{acc+r}, v{v_sc}, v{acc+r}')
            pk = PK + 8*x
            for k in range(8):
                a(f'v_cvt_pk_bf16_f32 v{pk+k}, v{acc+2*k}, v{acc+2*k+1}')
            a(f'buffer_store_dwordx4 {vr(pk,4)}, v{v_off}, s[{SWS}:{SWS+3}], s{s_a} offen')
            a(f'buffer_store_dwordx4 {vr(pk+4,4)}, v{v_off}, s[{SWS}:{SWS+3}], s{s_b} offen')
        a(f's_branch {L}_done{i}')
        a.label(f'{L}_ext{i}')
        a(f'v_cmp_eq_u32 vcc, 1, v{v_h}')
        for g in range(3):
            a(f'''
            s_mul_i32 s{s_u}, s{s_cb}, 3
            s_add_u32 s{s_u}, s{s_u}, {g}
            ''')
            unit_params(None)
            a(f'''
            s_cmp_eq_u32 s{s_part}, 2
            s_cselect_b64 s[{s_m}:{s_m+1}], -1, 0
            v_cndmask_b32 v{v_off}, v{v_e4}, v{v_e40}, s[{s_m}:{s_m+1}]
            v_mul_lo_u32 v{vt}, v{v_h}, s{s_hs}
            v_add_u32 v{v_off}, v{v_off}, v{vt}
            ''')
            for x in range(2):
                acc = ACC + (i*2+x)*16
                pk = PK + 4*x + 8*(g % 2)
                a(f'''
                s_xor_b32 s{s_gt}, s{s_t1}, {x}
                s_lshl_b32 s{s_a}, s{s_t0}, 1
                s_add_u32 s{s_gt}, s{s_gt}, s{s_a}
                s_lshl_b32 s{s_a}, s{s_tb}, 2
                s_add_u32 s{s_gt}, s{s_gt}, s{s_a}
                s_lshr_b32 s{s_a}, s{s_gt}, 3
                s_mul_i32 s{s_a}, s{s_a}, {CHUNK}
                s_and_b32 s{s_b}, s{s_gt}, 7
                s_mul_i32 s{s_c}, s{s_b}, 1280
                s_add_u32 s{s_c}, s{s_c}, 9216
                s_lshl_b32 s{s_b}, s{s_b}, 7
                s_add_u32 s{s_b}, s{s_b}, 8192
                s_cmp_eq_u32 s{s_part}, 2
                s_cselect_b32 s{s_b}, s{s_c}, s{s_b}
                s_add_u32 s{s_a}, s{s_a}, s{s_b}
                s_lshl_b32 s{s_b}, s{s_gt}, 7
                s_add_u32 s{s_b}, s{s_b}, 65536
                s_cmp_eq_u32 s{s_part}, 0
                s_cselect_b32 s{s_a}, s{s_b}, s{s_a}
                s_add_u32 s{s_a}, s{s_a}, s{s_dst}
                v_mul_f32 v{v_sc}, s{s_scale}, v{vR[x]}
                v_cndmask_b32 v{vt}, v{acc+4*g}, v{acc+4*g+2}, vcc
                v_cndmask_b32 v{vt+1}, v{acc+4*g+1}, v{acc+4*g+3}, vcc
                v_mul_f32 v{vt}, v{v_sc}, v{vt}
                v_mul_f32 v{vt+1}, v{v_sc}, v{vt+1}
                v_cvt_pk_bf16_f32 v{pk}, v{vt}, v{vt+1}
                v_mov_b32 v{pk+1}, 0x3f80
                s_cmp_eq_u32 s{s_part}, 2
                s_cbranch_scc1 {L}_e{i}{g}{x}v
                buffer_store_dword v{pk}, v{v_off}, s[{SWS}:{SWS+3}], s{s_a} offen
                s_branch {L}_e{i}{g}{x}d
                {L}_e{i}{g}{x}v:
                buffer_store_dwordx2 {vr(pk,2)}, v{v_off}, s[{SWS}:{SWS+3}], s{s_a} offen
                {L}_e{i}{g}{x}d:
                ''')
        a.label(f'{L}_done{i}')
    a.label(f'{L}_end')
    a('s_endpgm')
    kernels.append((L, 256, 256, 163840, 128, 64))

def k2(a):
    L = 'k2_attn_kernel'
    begin(a, L)
    SWS = 12
    s_head, s_qb, s_w, s_t0, s_t1, s_kv, s_mode, s_c, s_qs, s_kg, s_n = 20, 21, 22, 23, 24, 25, 26, 27, 28, 29, 30
    s_m = 32
    FLAG = HEADKV
    v_l, v_t, v_h = 1, 2, 3
    vKa, vKe, vVa, vlin = 4, 5, 6, 7
    vt = 8
    QM = [16, 20]; QE = [24, 26]
    KM = [28, 32]; KE = [36, 38]
    VF = [40, 48]
    P = 56
    S = [64, 80]
    O = [96, 112]
    a(f'''
    s_cmp_ge_u32 s2, 256
    s_cbranch_scc1 {L}_end
    s_load_dwordx2 s[8:9], s[0:1], 80
    s_and_b32 s10, s2, 7
    s_lshr_b32 s11, s2, 3
    s_lshl_b32 s{s_head}, s10, 2
    s_lshr_b32 s{s_t0}, s11, 3
    s_add_u32 s{s_head}, s{s_head}, s{s_t0}
    s_and_b32 s{s_qb}, s11, 7
    v_and_b32 v{v_l}, 63, v0
    v_lshrrev_b32 v{vt}, 6, v0
    v_and_b32 v{v_t}, 31, v0
    v_readfirstlane_b32 s{s_w}, v{vt}
    v_bfe_u32 v{v_h}, v0, 5, 1
    v_lshlrev_b32 v{vlin}, 4, v{v_l}
    s_and_b32 s{s_qs}, s{s_w}, 3
    s_lshr_b32 s{s_kg}, s{s_w}, 2
    s_mul_i32 s{s_kv}, s{s_head}, {HEADKV}
    s_add_u32 s{s_kv}, s{s_kv}, {WS_KV}
    s_mov_b32 s{s_mode}, 0
    s_waitcnt lgkmcnt(0)
    ''')
    srd(a, SWS, 8, WS_SIZE)
    a.label(f'{L}_start')
    a(f'''
    s_lshl_b32 s{s_t0}, s{s_qb}, 3
    s_lshl_b32 s{s_t1}, s{s_qs}, 1
    s_add_u32 s{s_t0}, s{s_t0}, s{s_t1}
    s_mul_i32 s{s_t1}, s{s_head}, {HEADQ}
    s_add_u32 s{s_t1}, s{s_t1}, {WS_Q}
    s_lshl_b32 s{s_c}, s{s_t0}, 10
    s_add_u32 s{s_c}, s{s_c}, s{s_t1}
    buffer_load_dwordx4 {vr(QM[0],4)}, v{vlin}, s[{SWS}:{SWS+3}], s{s_c} offen
    buffer_load_dwordx4 {vr(QM[1],4)}, v{vlin}, s[{SWS}:{SWS+3}], s{s_c} offen offset:1024
    s_lshl_b32 s{s_c}, s{s_t0}, 7
    s_add_u32 s{s_c}, s{s_c}, s{s_t1}
    s_add_u32 s{s_c}, s{s_c}, 65536
    v_lshlrev_b32 v{vt}, 2, v{v_t}
    buffer_load_dword v{QE[0]}, v{vt}, s[{SWS}:{SWS+3}], s{s_c} offen
    buffer_load_dword v{QE[1]}, v{vt}, s[{SWS}:{SWS+3}], s{s_c} offen offset:128
    s_lshl_b32 s{s_t0}, s{s_w}, 10
    s_add_u32 s{s_t1}, s{s_kv}, s{s_t0}
    ''')
    for j in range(19):
        a(f'''
        s_add_u32 m0, s{s_t0}, {j*8192}
        s_add_u32 s{s_c}, s{s_t1}, {j*8192}
        buffer_load_dwordx4 v{vlin}, s[{SWS}:{SWS+3}], s{s_c} offen lds
        ''')
    a(f'''
    v_mov_b32 v{vt}, {FLAG}
    v_mov_b32 v{vt+1}, 0
    ds_write_b32 v{vt}, v{vt+1}
    v_mov_b32 v{KE[0]+1}, 0x3f803f80
    v_mov_b32 v{KE[1]+1}, 0x3f803f80
    v_mov_b32 v{QE[0]+1}, 0
    v_mov_b32 v{QE[1]+1}, 0
    ''')
    a(f'''
    v_bfe_u32 v{vt}, v{v_l}, 2, 2
    v_lshl_add_u32 v{vt}, v{v_h}, 2, v{vt}
    s_lshl_b32 s{s_t0}, s{s_kg}, 7
    v_add_u32 v{vt}, s{s_t0}, v{vt}
    v_mul_u32_u24 v{vVa}, 40, v{vt}
    v_and_b32 v{vt}, 3, v{v_l}
    v_lshlrev_b32 v{vt}, 3, v{vt}
    v_and_b32 v{vt+1}, 16, v{v_l}
    v_cmp_ne_u32 vcc, 0, v{vt+1}
    v_cndmask_b32 v{vt}, v{vt}, 32, vcc
    v_add3_u32 v{vVa}, v{vVa}, v{vt}, 0
    v_add_u32 v{vVa}, 9216, v{vVa}
    ''')
    for r in range(16):
        a(f'v_mov_b32 v{O[0]+r}, 0')
        a(f'v_mov_b32 v{O[1]+r}, 0')
    for r in range(8):
        a(f'v_mov_b32 v{P+r}, 0')
    for r in range(4):
        a(f'v_mov_b32 v{VF[1]+4+r}, 0')
    a(f'''
    s_cmp_eq_u32 s{s_mode}, 0
    s_cbranch_scc1 {L}_w0
    s_waitcnt vmcnt(0)
    {L}_w0:
    s_waitcnt vmcnt({18-2}) lgkmcnt(0)
    s_barrier
    v_cmp_eq_u32 vcc, 0, v{v_h}
    v_cndmask_b32 v{QE[0]}, 0, v{QE[0]}, vcc
    v_cndmask_b32 v{QE[1]}, 0, v{QE[1]}, vcc
    ''')
    vmx = [vt+4, vt+5]
    a(f'''
    s_cmp_eq_u32 s{s_mode}, 0
    s_cselect_b32 s{s_n}, 1, 64
    s_mov_b32 s{s_c}, 0
    v_mov_b32 v{vmx[0]}, 0xff800000
    v_mov_b32 v{vmx[1]}, 0xff800000
    {L}_mx:
    s_lshr_b32 s{s_t0}, s{s_c}, 3
    s_mul_i32 s{s_t0}, s{s_t0}, {CHUNK}
    s_and_b32 s{s_t1}, s{s_c}, 7
    s_lshl_b32 s{s_t1}, s{s_t1}, 10
    s_add_u32 s{s_t1}, s{s_t1}, s{s_t0}
    v_add_u32 v{vt}, s{s_t1}, v{vlin}
    ds_read_b128 {vr(KM[0],4)}, v{vt}
    s_and_b32 s{s_t1}, s{s_c}, 7
    s_lshl_b32 s{s_t1}, s{s_t1}, 7
    s_add_u32 s{s_t1}, s{s_t1}, s{s_t0}
    v_lshl_add_u32 v{vt}, v{v_t}, 2, s{s_t1}
    ds_read_b32 v{KE[0]}, v{vt} offset:8192
    s_waitcnt lgkmcnt(0)
    ''')
    for q in range(2):
        a(f'v_mfma_f32_32x32x16_bf16 {vr(S[q],16)}, {vr(KM[0],4)}, {vr(QM[q],4)}, 0')
        a(f'v_mfma_f32_32x32x8_bf16 {vr(S[q],16)}, {vr(KE[0],2)}, {vr(QE[q],2)}, {vr(S[q],16)}')
    for q in range(2):
        for k in range(8):
            a(f'v_max3_f32 v{vmx[q]}, v{S[q]+2*k}, v{S[q]+2*k+1}, v{vmx[q]}')
    a(f'''
    s_add_u32 s{s_c}, s{s_c}, 1
    s_cmp_lt_u32 s{s_c}, s{s_n}
    s_cbranch_scc1 {L}_mx
    ''')
    a(f'v_cmp_eq_u32 vcc, 0, v{v_h}')
    for q in range(2):
        a(f'''
        v_mov_b32 v{vt}, v{vmx[q]}
        v_permlane32_swap_b32 v{vmx[q]}, v{vt}
        v_max_f32 v{vt}, v{vmx[q]}, v{vt}
        v_xor_b32 v{vt}, 0x80000000, v{vt}
        v_and_b32 v{vt+1}, 0xffff0000, v{vt}
        v_sub_f32 v{vt}, v{vt}, v{vt+1}
        v_and_b32 v{vt+2}, 0xffff0000, v{vt}
        v_sub_f32 v{vt}, v{vt}, v{vt+2}
        v_lshrrev_b32 v{vt+1}, 16, v{vt+1}
        v_or_b32 v{vt+1}, v{vt+1}, v{vt+2}
        v_lshrrev_b32 v{vt}, 16, v{vt}
        v_cndmask_b32 v{QE[q]+1}, v{vt}, v{vt+1}, vcc
        ''')
    a(f'''
    s_lshl_b32 s{s_t0}, s{s_kg}, 12
    v_add_u32 v{vKa}, s{s_t0}, v{vlin}
    s_lshl_b32 s{s_t0}, s{s_kg}, 9
    s_add_u32 s{s_t0}, s{s_t0}, 8192
    v_lshl_add_u32 v{vKe}, v{v_t}, 2, s{s_t0}
    ''')

    def koff(i):
        return (i // 4) * CHUNK + (i % 4) * 1024, (i // 4) * CHUNK + (i % 4) * 128

    def read_k(i, p):
        o1, o2 = koff(i)
        a(f'ds_read_b128 {vr(KM[p],4)}, v{vKa} offset:{o1}')
        a(f'ds_read_b32 v{KE[p]}, v{vKe} offset:{o2}')

    def read_v(i, p):
        base = (i // 4) * CHUNK + (i % 4) * 1280
        for m in range(2):
            for part in range(2):
                a(f'ds_read_b64_tr_b16 {vr(VF[p]+4*m+2*part,2)}, v{vVa} offset:{base + m*640 + part*320}')

    read_k(0, 0)
    read_k(1, 1)
    read_v(0, 0)
    a('s_waitcnt lgkmcnt(6)')
    a(f'v_mfma_f32_32x32x16_bf16 {vr(S[0],16)}, {vr(KM[0],4)}, {vr(QM[0],4)}, 0')
    a(f'v_mfma_f32_32x32x8_bf16 {vr(S[0],16)}, {vr(KE[0],2)}, {vr(QE[0],2)}, {vr(S[0],16)}')
    a(f's_mov_b32 s{s_c}, 0')
    a('s_nop 7')
    a('s_nop 3')
    a.label(f'{L}_loop')

    def gap(X, g):
        s = S[X]
        for e in range(4):
            a(f'v_exp_f32 v{s+4*g+e}, v{s+4*g+e}')
        a(f'v_cvt_pk_bf16_f32 v{P+2*g}, v{s+4*g}, v{s+4*g+1}')
        a(f'v_cvt_pk_bf16_f32 v{P+2*g+1}, v{s+4*g+2}, v{s+4*g+3}')

    for i in range(4):
        p = i % 2
        if i == 2:
            a(f'''
            s_cmp_gt_u32 s{s_c}, 1
            s_cbranch_scc1 {L}_nb
            s_cmp_eq_u32 s{s_c}, 0
            s_cbranch_scc1 {L}_b1
            s_waitcnt vmcnt(0)
            {L}_b1:
            s_waitcnt vmcnt({18-4})
            s_barrier
            {L}_nb:
            ''')
        a(f'v_mfma_f32_32x32x16_bf16 {vr(S[1],16)}, {vr(KM[p],4)}, {vr(QM[1],4)}, 0')
        gap(0, 0)
        a(f'v_mfma_f32_32x32x8_bf16 {vr(S[1],16)}, {vr(KE[p],2)}, {vr(QE[1],2)}, {vr(S[1],16)}')
        read_k(i+2, p)
        gap(0, 1)
        a(f'v_mfma_f32_32x32x16_bf16 {vr(O[1],16)}, {vr(VF[1-p]+4,4)}, {vr(P+4,4)}, {vr(O[1],16)}')
        read_v(i+1, 1-p)
        gap(0, 2)
        a('s_waitcnt lgkmcnt(6)')
        a(f'v_mfma_f32_32x32x16_bf16 {vr(O[0],16)}, {vr(VF[p],4)}, {vr(P,4)}, {vr(O[0],16)}')
        gap(0, 3)
        a(f'v_mfma_f32_32x32x16_bf16 {vr(S[0],16)}, {vr(KM[1-p],4)}, {vr(QM[0],4)}, 0')
        gap(1, 0)
        a(f'v_mfma_f32_32x32x8_bf16 {vr(S[0],16)}, {vr(KE[1-p],2)}, {vr(QE[0],2)}, {vr(S[0],16)}')
        gap(1, 1)
        a(f'v_mfma_f32_32x32x16_bf16 {vr(O[0],16)}, {vr(VF[p]+4,4)}, {vr(P+4,4)}, {vr(O[0],16)}')
        gap(1, 2)
        a(f'v_mfma_f32_32x32x16_bf16 {vr(O[1],16)}, {vr(VF[p],4)}, {vr(P,4)}, {vr(O[1],16)}')
        gap(1, 3)
    a(f'''
    v_add_u32 v{vKa}, {CHUNK}, v{vKa}
    v_add_u32 v{vKe}, {CHUNK}, v{vKe}
    v_add_u32 v{vVa}, {CHUNK}, v{vVa}
    s_add_u32 s{s_c}, s{s_c}, 1
    s_cmp_lt_u32 s{s_c}, 8
    s_cbranch_scc1 {L}_loop
    v_mfma_f32_32x32x16_bf16 {vr(O[1],16)}, {vr(VF[1]+4,4)}, {vr(P+4,4)}, {vr(O[1],16)}
    s_waitcnt lgkmcnt(0)
    s_barrier
    ''')
    a(f'''
    s_cmp_eq_u32 s{s_kg}, 1
    s_cselect_b64 s[{s_m}:{s_m+1}], -1, 0
    s_lshl_b32 s{s_t0}, s{s_qs}, 1
    s_add_u32 s{s_t0}, s{s_t0}, s{s_kg}
    s_xor_b32 s{s_t1}, s{s_t0}, 1
    s_mul_i32 s{s_t0}, s{s_t0}, 3072
    s_mul_i32 s{s_t1}, s{s_t1}, 3072
    v_add_u32 v{vt}, s{s_t1}, v{vlin}
    v_add_u32 v{vt+1}, s{s_t0}, v{vlin}
    ''')
    SND, KEEP = S[0], S[1]
    for r in range(12):
        a(f'v_cndmask_b32 v{SND+r}, v{O[1]+r}, v{O[0]+r}, s[{s_m}:{s_m+1}]')
        a(f'v_cndmask_b32 v{KEEP+r}, v{O[0]+r}, v{O[1]+r}, s[{s_m}:{s_m+1}]')
    for g in range(3):
        a(f'ds_write_b128 v{vt}, {vr(SND+4*g,4)} offset:{1024*g}')
    a('s_waitcnt lgkmcnt(0)')
    a('s_barrier')
    for g in range(3):
        a(f'ds_read_b128 {vr(SND+4*g,4)}, v{vt+1} offset:{1024*g}')
    a('s_waitcnt lgkmcnt(0)')
    for r in range(11):
        a(f'v_add_f32 v{KEEP+r}, v{KEEP+r}, v{SND+r}')
    a(f'''
    v_cmp_ngt_f32 vcc, {f32(2.0**60)}, v{KEEP+10}
    v_cmp_nlt_f32 s[{s_m}:{s_m+1}], {f32(2.0**-90)}, v{KEEP+10}
    ''' .replace(f'v_cmp_nlt_f32 s[{s_m}:{s_m+1}], {f32(2.0**-90)}, v{KEEP+10}', f'v_mov_b32 v{vt+2}, {f32(2.0**-90)}\n v_cmp_nlt_f32 s[{s_m}:{s_m+1}], v{vt+2}, v{KEEP+10}'))
    a(f'''
    v_rcp_f32 v{vt+3}, v{KEEP+10}
    s_or_b64 vcc, vcc, s[{s_m}:{s_m+1}]
    s_cbranch_vccz {L}_ok
    v_mov_b32 v{vt}, {FLAG}
    v_mov_b32 v{vt+1}, 1
    ds_write_b32 v{vt}, v{vt+1}
    {L}_ok:
    ''')
    for r in range(10):
        a(f'v_mul_f32 v{KEEP+r}, v{vt+3}, v{KEEP+r}')
    for k in range(5):
        a(f'v_cvt_pk_bf16_f32 v{P+k}, v{KEEP+2*k}, v{KEEP+2*k+1}')
    a(f'''
    s_lshl_b32 s{s_t0}, s{s_qb}, 3
    s_lshl_b32 s{s_t1}, s{s_qs}, 1
    s_add_u32 s{s_t0}, s{s_t0}, s{s_t1}
    s_add_u32 s{s_t0}, s{s_t0}, s{s_kg}
    s_mul_i32 s{s_t0}, s{s_t0}, {36*1024}
    s_add_u32 s{s_t0}, s{s_t0}, {WS_O}
    s_lshl_b32 s{s_t1}, s{s_head}, 10
    s_add_u32 s{s_t1}, s{s_t1}, s{s_t0}
    buffer_store_dwordx4 {vr(P,4)}, v{vlin}, s[{SWS}:{SWS+3}], s{s_t1} offen
    s_lshr_b32 s{s_t1}, s{s_head}, 3
    s_add_u32 s{s_t1}, s{s_t1}, 32
    s_lshl_b32 s{s_t1}, s{s_t1}, 10
    s_add_u32 s{s_t0}, s{s_t0}, s{s_t1}
    s_bfe_u32 s{s_t1}, s{s_head}, 0x10002
    s_lshl_b32 s{s_t1}, s{s_t1}, 9
    s_add_u32 s{s_t0}, s{s_t0}, s{s_t1}
    s_and_b32 s{s_t1}, s{s_head}, 3
    s_lshl_b32 s{s_t1}, s{s_t1}, 2
    s_add_u32 s{s_t0}, s{s_t0}, s{s_t1}
    v_lshlrev_b32 v{vt}, 4, v{v_t}
    buffer_store_dword v{P+4}, v{vt}, s[{SWS}:{SWS+3}], s{s_t0} offen
    s_cmp_eq_u32 s{s_mode}, 1
    s_cbranch_scc1 {L}_end
    s_waitcnt lgkmcnt(0)
    s_barrier
    v_mov_b32 v{vt}, {FLAG}
    ds_read_b32 v{vt+1}, v{vt}
    s_waitcnt lgkmcnt(0)
    v_readfirstlane_b32 s{s_t0}, v{vt+1}
    s_cmp_eq_u32 s{s_t0}, 0
    s_cbranch_scc1 {L}_end
    s_mov_b32 s{s_mode}, 1
    s_waitcnt vmcnt(0)
    s_barrier
    s_branch {L}_start
    {L}_end:
    s_endpgm
    ''')
    kernels.append((L, 256, 512, HEADKV + 64, 128, 64))

def k3(a):
    L = 'k3_oproj_kernel'
    begin(a, L)
    SX, SWO, SWR, SWS = 12, 16, 20, 24
    s_tb, s_cb, s_w, s_tt, s_kh, s_t0, s_t1, s_g, s_rb, s_gt = 28, 29, 30, 31, 32, 33, 34, 35, 36, 37
    s_m = 38
    v_l, v_t, v_h, vlin = 1, 2, 3, 4
    vt = 5
    vDm = 16
    vDe = 19
    vWa = 22
    vdo = 23
    XR = 24
    WR = 36
    WF = [48, 60]
    ACC = 72
    OF = 120
    EX = 110592
    a(f'''
    s_cmp_ge_u32 s2, 192
    s_cbranch_scc1 {L}_end
    s_load_dwordx2 s[4:5], s[0:1], 0
    s_load_dwordx2 s[6:7], s[0:1], 16
    s_load_dwordx2 s[8:9], s[0:1], 32
    s_load_dwordx2 s[10:11], s[0:1], 80
    s_and_b32 s{s_t0}, s2, 7
    s_lshr_b32 s{s_t1}, s2, 3
    s_mul_i32 s{s_g}, s{s_t1}, 43
    s_lshr_b32 s{s_g}, s{s_g}, 8
    s_mul_i32 s{s_cb}, s{s_g}, 6
    s_sub_u32 s{s_cb}, s{s_t1}, s{s_cb}
    s_lshl_b32 s{s_tb}, s{s_t0}, 2
    s_add_u32 s{s_tb}, s{s_tb}, s{s_g}
    v_and_b32 v{v_l}, 63, v0
    v_lshrrev_b32 v{vt}, 6, v0
    v_and_b32 v{v_t}, 31, v0
    v_readfirstlane_b32 s{s_w}, v{vt}
    v_bfe_u32 v{v_h}, v0, 5, 1
    v_lshlrev_b32 v{vlin}, 4, v{v_l}
    s_and_b32 s{s_tt}, s{s_w}, 1
    s_lshr_b32 s{s_kh}, s{s_w}, 1
    s_lshl_b32 s{s_gt}, s{s_tb}, 1
    s_add_u32 s{s_gt}, s{s_gt}, s{s_tt}
    ''')
    for i3 in range(3):
        a(f'''
        v_add_u32 v{vt}, {64*i3}, v{v_l}
        v_mul_u32_u24 v{vt+1}, 1366, v{vt}
        v_lshrrev_b32 v{vt+1}, 14, v{vt+1}
        v_mul_u32_u24 v{vt+2}, 12, v{vt+1}
        v_sub_u32 v{vt+2}, v{vt}, v{vt+2}
        v_lshlrev_b32 v{vt+2}, 4, v{vt+2}
        ''')
        a(f'''
        v_mul_u32_u24 v{vt+3}, 1152, v{vt+1}
        v_add_u32 v{vDm+i3}, v{vt+3}, v{vt+2}
        ''')
        a(f'''
        v_lshrrev_b32 v{vt+3}, 1, v{vt+1}
        v_mul_u32_u24 v{vt+4}, 18, v{vt+3}
        v_and_b32 v{vt+5}, 1, v{vt+1}
        v_add_u32 v{vt+4}, v{vt+4}, v{vt+5}
        v_and_b32 v{vt+3}, 1, v{vt+3}
        v_xor_b32 v{vt+3}, 1, v{vt+3}
        v_lshl_add_u32 v{vt+4}, v{vt+3}, 4, v{vt+4}
        v_mul_u32_u24 v{vt+4}, 1152, v{vt+4}
        v_add_u32 v{vDe+i3}, v{vt+4}, v{vt+2}
        ''')
    a('s_waitcnt lgkmcnt(0)')
    srd(a, SX, 4, 2048*1152)
    srd(a, SWO, 6, 576*1152)
    srd(a, SWR, 8, 1152)
    srd(a, SWS, 10, WS_SIZE)
    vm = []

    def stage(st):
        for k in range(3):
            a(f'''
            s_mul_i32 s{s_g}, s{s_tt}, 3
            s_mul_i32 s{s_t0}, s{s_kh}, 18
            s_add_u32 s{s_g}, s{s_g}, s{s_t0}
            s_add_u32 s{s_g}, s{s_g}, {6*st + k}
            s_and_b32 s{s_t0}, s{s_g}, 1
            s_lshl_b32 s{s_t0}, s{s_t0}, 1
            s_mul_i32 s{s_rb}, s{s_g}, 18
            s_add_u32 s{s_rb}, s{s_rb}, s{s_t0}
            ''')
            if st == 2:
                a(f'''
                s_sub_u32 s{s_t0}, s{s_g}, 32
                s_mul_i32 s{s_t0}, s{s_t0}, 144
                s_cmp_ge_u32 s{s_g}, 32
                s_cselect_b32 s{s_rb}, s{s_t0}, s{s_rb}
                s_cselect_b64 s[{s_m}:{s_m+1}], -1, 0
                ''')
            a(f'''
            s_mul_i32 s{s_rb}, s{s_rb}, 1152
            s_mul_i32 s{s_t0}, s{s_cb}, 192
            s_add_u32 s{s_rb}, s{s_rb}, s{s_t0}
            s_mul_i32 s{s_g}, s{s_g}, 3072
            ''')
            for i3 in range(3):
                src = vDm + i3
                if st == 2:
                    a(f'v_cndmask_b32 v{vdo}, v{vDm+i3}, v{vDe+i3}, s[{s_m}:{s_m+1}]')
                    src = vdo
                a(f'''
                s_add_u32 m0, s{s_g}, {i3*1024}
                s_nop 0
                buffer_load_dwordx4 v{src}, s[{SWO}:{SWO+3}], s{s_rb} offen lds
                ''')
                vm.append(f'W{st}')

    def oloads(i0):
        a(f'''
        s_mul_i32 s{s_t0}, s{s_gt}, 36
        s_mul_i32 s{s_t1}, s{s_kh}, 18
        s_add_u32 s{s_t0}, s{s_t0}, s{s_t1}
        s_add_u32 s{s_t0}, s{s_t0}, {i0}
        s_lshl_b32 s{s_t0}, s{s_t0}, 10
        s_add_u32 s{s_t0}, s{s_t0}, {WS_O}
        s_add_u32 s{s_t1}, s{s_t0}, 3072
        ''')
        for i in range(6):
            sreg = s_t0 if i < 3 else s_t1
            a(f'buffer_load_dwordx4 {vr(OF+4*(i0+i),4)}, v{vlin}, s[{SWS}:{SWS+3}], s{sreg} offen offset:{(i%3)*1024}')
            vm.append(f'O{i0+i}')

    for st in range(3):
        stage(st)
        oloads(6*st)
    a(f'''
    v_mul_u32_u24 v{vt}, 1152, v{v_t}
    v_lshl_add_u32 v{vt}, v{v_h}, 3, v{vt}
    v_lshlrev_b32 v{vt+1}, 3, v{v_h}
    s_mul_i32 s{s_t0}, s{s_cb}, 192
    s_mul_i32 s{s_t1}, s{s_kh}, 96
    s_add_u32 s{s_t0}, s{s_t0}, s{s_t1}
    s_mul_i32 s{s_t1}, s{s_gt}, {32*1152}
    s_add_u32 s{s_t1}, s{s_t1}, s{s_t0}
    ''')
    for j in range(6):
        a(f'buffer_load_dwordx2 {vr(XR+2*j,2)}, v{vt}, s[{SX}:{SX+3}], s{s_t1} offen offset:{16*j}')
        vm.append('X')
    for j in range(6):
        a(f'buffer_load_dwordx2 {vr(WR+2*j,2)}, v{vt+1}, s[{SWR}:{SWR+3}], s{s_t0} offen offset:{16*j}')
        vm.append('X')
    v_hoff = 15
    a(f'v_mov_b32 v{v_hoff}, v{vt}')
    s_hoff = 40
    a(f's_add_u32 s{s_hoff}, s{s_t1}, {WS_H}')

    def wait_for(tag):
        idx = max(i for i, t in enumerate(vm) if t == tag)
        return len(vm) - 1 - idx

    a(f'''
    v_bfe_u32 v{vt}, v{v_l}, 2, 2
    v_lshl_add_u32 v{vt}, v{v_h}, 3, v{vt}
    v_mul_u32_u24 v{vWa}, 192, v{vt}
    v_bfe_u32 v{vt}, v{v_l}, 4, 1
    v_lshl_add_u32 v{vWa}, v{vt}, 5, v{vWa}
    v_and_b32 v{vt}, 3, v{v_l}
    v_lshl_add_u32 v{vWa}, v{vt}, 3, v{vWa}
    s_mul_i32 s{s_t0}, s{s_kh}, {18*3072}
    v_add_u32 v{vWa}, s{s_t0}, v{vWa}
    ''')

    def reads(i, fb):
        for ct in range(3):
            for j in range(2):
                a(f'ds_read_b64_tr_b16 {vr(WF[fb]+4*ct+2*j,2)}, v{vWa} offset:{i*3072 + j*768 + ct*64}')

    a(f's_waitcnt vmcnt({wait_for("W0")})')
    a('s_barrier')
    reads(0, 0)
    for i in range(18):
        fb = i % 2
        if i < 17:
            if (i + 1) % 6 == 0:
                a(f's_waitcnt vmcnt({wait_for("W%d" % ((i+1)//6))})')
                a('s_barrier')
            reads(i+1, 1-fb)
            a(f's_waitcnt vmcnt({wait_for("O%d" % i)}) lgkmcnt(6)')
        else:
            a(f's_waitcnt vmcnt({wait_for("O%d" % i)}) lgkmcnt(0)')
        for ct in range(3):
            acc = ACC + 16*ct
            cc = '0' if i == 0 else vr(acc, 16)
            a(f'v_mfma_f32_32x32x16_bf16 {vr(acc,16)}, {vr(WF[fb]+4*ct,4)}, {vr(OF+4*i,4)}, {cc}')
    SND, KEEP = OF, OF + 24
    a(f'''
    s_cmp_eq_u32 s{s_kh}, 1
    s_cselect_b64 s[{s_m}:{s_m+1}], -1, 0
    s_mul_i32 s{s_t0}, s{s_w}, 6144
    s_xor_b32 s{s_t1}, s{s_w}, 2
    s_mul_i32 s{s_t1}, s{s_t1}, 6144
    v_add_u32 v{vt}, s{s_t0}, v{vlin}
    v_add_u32 v{vt+1}, s{s_t1}, v{vlin}
    v_add_u32 v{vt}, {EX}, v{vt}
    v_add_u32 v{vt+1}, {EX}, v{vt+1}
    ''')
    for r in range(24):
        a(f'v_cndmask_b32 v{SND+r}, v{ACC+24+r}, v{ACC+r}, s[{s_m}:{s_m+1}]')
    for g in range(6):
        a(f'ds_write_b128 v{vt}, {vr(SND+4*g,4)} offset:{1024*g}')
    for r in range(24):
        a(f'v_cndmask_b32 v{KEEP+r}, v{ACC+r}, v{ACC+24+r}, s[{s_m}:{s_m+1}]')
    a('s_waitcnt lgkmcnt(0)')
    a('s_barrier')
    RCV = ACC
    for g in range(6):
        a(f'ds_read_b128 {vr(RCV+4*g,4)}, v{vt+1} offset:{1024*g}')
    v1, v2, v3 = vt+2, vt+3, vt+4
    a(f'''
    v_mov_b32 v{v1}, 0
    v_mov_b32 v{v2}, 0
    v_mov_b32 v{v3}, 0
    s_waitcnt vmcnt(0) lgkmcnt(0)
    ''')
    HP = ACC + 24
    for g in range(6):
        for e in range(4):
            r = 4*g + e
            xr = XR + 2*g + e//2
            a(f'v_add_f32 v{KEEP+r}, v{KEEP+r}, v{RCV+r}')
        for k in range(2):
            a(f'v_cvt_pk_bf16_f32 v{vt+5}, v{KEEP+4*g+2*k}, v{KEEP+4*g+2*k+1}')
            xr = XR + 2*g + k
            a(f'''
            v_lshlrev_b32 v{KEEP+4*g+2*k}, 16, v{vt+5}
            v_and_b32 v{KEEP+4*g+2*k+1}, 0xffff0000, v{vt+5}
            v_lshlrev_b32 v{vt+6}, 16, v{xr}
            v_and_b32 v{vt+7}, 0xffff0000, v{xr}
            v_add_f32 v{KEEP+4*g+2*k}, v{KEEP+4*g+2*k}, v{vt+6}
            v_add_f32 v{KEEP+4*g+2*k+1}, v{KEEP+4*g+2*k+1}, v{vt+7}
            v_cvt_pk_bf16_f32 v{HP+2*g+k}, v{KEEP+4*g+2*k}, v{KEEP+4*g+2*k+1}
            v_lshlrev_b32 v{vt+6}, 16, v{HP+2*g+k}
            v_and_b32 v{vt+7}, 0xffff0000, v{HP+2*g+k}
            v_add_f32 v{v1}, v{v1}, v{vt+6}
            v_add_f32 v{v1}, v{v1}, v{vt+7}
            v_fmac_f32 v{v2}, v{vt+6}, v{vt+6}
            v_fmac_f32 v{v2}, v{vt+7}, v{vt+7}
            v_lshlrev_b32 v{vt+8}, 16, v{WR+2*g+k}
            v_and_b32 v{vt+9}, 0xffff0000, v{WR+2*g+k}
            v_fmac_f32 v{v3}, v{vt+6}, v{vt+8}
            v_fmac_f32 v{v3}, v{vt+7}, v{vt+9}
            ''')
        a(f'buffer_store_dwordx2 {vr(HP+2*g,2)}, v{v_hoff}, s[{SWS}:{SWS+3}], s{s_hoff} offen offset:{16*g}')
    a(f'''
    v_mov_b32 v{vt+5}, v{v3}
    v_permlane32_swap_b32 v{v1}, v{v2}
    v_permlane32_swap_b32 v{v3}, v{vt+5}
    v_add_f32 v{v1}, v{v1}, v{v2}
    v_add_f32 v{v3}, v{v3}, v{vt+5}
    v_lshlrev_b32 v{vt+6}, 13, v{v_h}
    v_lshl_add_u32 v{vt+6}, v{v_t}, 2, v{vt+6}
    s_lshl_b32 s{s_t0}, s{s_gt}, 7
    s_add_u32 s{s_t0}, s{s_t0}, {WS_STAT}
    s_add_u32 s{s_t1}, s{s_t0}, 16384
    buffer_atomic_add_f32 v{v1}, v{vt+6}, s[{SWS}:{SWS+3}], s{s_t0} offen
    s_mov_b64 exec, 0xffffffff
    buffer_atomic_add_f32 v{v3}, v{vt+6}, s[{SWS}:{SWS+3}], s{s_t1} offen
    {L}_end:
    s_endpgm
    ''')
    kernels.append((L, 192, 256, EX + 24576, 192, 64))

NFF = 144
def k4(a):
    L = 'k4_ffn_kernel'
    begin(a, L)
    SG, SU, SD, SWS, SO, SWR = 16, 20, 24, 28, 32, 36
    s_w, s_t0, s_t1, s_fb, s_idx, s_c = 40, 41, 42, 43, 44, 45
    s_m = 46
    v_l, v_t, v_h, vlin = 1, 2, 3, 4
    vt = 6
    a(f'''
    s_cmp_ge_u32 s2, {NFF+128}
    s_cbranch_scc1 {L}_end
    s_load_dwordx8 s[4:11], s[0:1], 32
    s_load_dwordx2 s[12:13], s[0:1], 64
    s_load_dwordx2 s[14:15], s[0:1], 80
    v_and_b32 v{v_l}, 63, v0
    v_lshrrev_b32 v{vt}, 6, v0
    v_and_b32 v{v_t}, 31, v0
    v_readfirstlane_b32 s{s_w}, v{vt}
    v_bfe_u32 v{v_h}, v0, 5, 1
    v_lshlrev_b32 v{vlin}, 4, v{v_l}
    s_waitcnt lgkmcnt(0)
    ''')
    srd(a, SWR, 4, 1152)
    srd(a, SG, 6, 576*9216)
    srd(a, SU, 8, 576*9216)
    srd(a, SD, 10, 4608*1152)
    srd(a, SO, 12, 2048*1152)
    srd(a, SWS, 14, WS_SIZE)
    a(f'''
    s_cmp_ge_u32 s2, {NFF}
    s_cbranch_scc1 {L}_out
    ''')
    LG, LU, LD, LX, LR = 0, 36864, 73728, 110592, 112640
    a(f'''
    s_and_b32 s{s_t0}, s2, 7
    s_mul_i32 s{s_fb}, s{s_t0}, 18
    s_lshr_b32 s{s_t0}, s2, 3
    s_add_u32 s{s_fb}, s{s_fb}, s{s_t0}
    ''')
    ST = 32
    a(f'''
    v_lshlrev_b32 v{vt}, 5, v0
    s_mov_b32 s{s_t0}, {WS_STAT}
    s_mov_b32 s{s_t1}, {WS_STAT+8192}
    s_mov_b32 s{s_c}, {WS_STAT+16384}
    buffer_load_dwordx4 {vr(ST,4)}, v{vt}, s[{SWS}:{SWS+3}], s{s_t0} offen
    buffer_load_dwordx4 {vr(ST+4,4)}, v{vt}, s[{SWS}:{SWS+3}], s{s_t0} offen offset:16
    buffer_load_dwordx4 {vr(ST+8,4)}, v{vt}, s[{SWS}:{SWS+3}], s{s_t1} offen
    buffer_load_dwordx4 {vr(ST+12,4)}, v{vt}, s[{SWS}:{SWS+3}], s{s_t1} offen offset:16
    buffer_load_dwordx4 {vr(ST+16,4)}, v{vt}, s[{SWS}:{SWS+3}], s{s_c} offen
    buffer_load_dwordx4 {vr(ST+20,4)}, v{vt}, s[{SWS}:{SWS+3}], s{s_c} offen offset:16
    ''')
    WRR = 56
    a(f'v_lshlrev_b32 v{vt}, 2, v{v_l}')
    for j in range(5):
        a(f'buffer_load_dword v{WRR+j}, v{vt}, s[{SWR}:{SWR+3}], 0 offen offset:{256*j}')
    a(f'''
    v_lshrrev_b32 v{vt}, 2, v{v_l}
    s_lshl_b32 s{s_t0}, s{s_w}, 4
    v_add_u32 v{vt}, s{s_t0}, v{vt}
    v_mul_u32_u24 v{vt}, 9216, v{vt}
    v_and_b32 v{vt+1}, 3, v{v_l}
    v_lshl_add_u32 v{vt}, v{vt+1}, 4, v{vt}
    s_lshl_b32 s{s_t1}, s{s_fb}, 6
    s_lshl_b32 s{s_c}, s{s_w}, 10
    ''')
    for j in range(9):
        for (S_, LB) in ((SG, LG), (SU, LU)):
            a(f'''
            s_add_u32 m0, s{s_c}, {LB + j*4096}
            s_add_u32 s{s_t0}, s{s_t1}, {j*64*9216}
            buffer_load_dwordx4 v{vt}, s[{S_}:{S_+3}], s{s_t0} offen lds
            ''')
    a(f'''
    s_mul_i32 s{s_t1}, s{s_fb}, 36864
    s_add_u32 s{s_t1}, s{s_t1}, s{s_c}
    ''')
    for j in range(9):
        a(f'''
        s_add_u32 m0, s{s_c}, {LD + j*4096}
        s_add_u32 s{s_t0}, s{s_t1}, {j*4096}
        buffer_load_dwordx4 v{vlin}, s[{SD}:{SD+3}], s{s_t0} offen lds
        ''')
    a('s_waitcnt vmcnt(27)')
    v_swr = vt+2
    a(f'''
    v_mov_b32 v{v_swr}, 0
    v_mov_b32 v{vt+3}, 0x3f803f80
    ''')
    for j in range(5):
        a(f'v_dot2c_f32_bf16 v{v_swr}, v{WRR+j}, v{vt+3}')

    def wave_reduce(reg, op, tmp):
        for off in (0x041F, 0x081F, 0x101F, 0x201F, 0x401F):
            a(f'''
            ds_swizzle_b32 v{tmp}, v{reg} offset:{off}
            s_waitcnt lgkmcnt(0)
            {op} v{reg}, v{reg}, v{tmp}
            ''')
        a(f'''
        v_mov_b32 v{tmp}, v{reg}
        v_permlane32_swap_b32 v{reg}, v{tmp}
        {op} v{reg}, v{reg}, v{tmp}
        ''')
    wave_reduce(v_swr, 'v_add_f32', vt+3)
    v_best, v_bi = vt+4, vt+5
    a(f'''
    v_mov_b32 v{v_best}, 0xff800000
    v_lshlrev_b32 v{v_bi}, 3, v0
    v_lshlrev_b32 v{vt+10}, 3, v0
    ''')
    for e in range(8):
        ln_scalars(a, ST+e, ST+8+e, vt+6, vt+7, vt+8)
        a(f'''
        v_fma_f32 v{vt+8}, -v{vt+6}, v{v_swr}, v{ST+16+e}
        v_mul_f32 v{vt+8}, v{vt+8}, v{vt+7}
        v_cmp_gt_f32 vcc, v{vt+8}, v{v_best}
        v_add_u32 v{vt+9}, {e}, v{vt+10}
        v_cndmask_b32 v{v_best}, v{v_best}, v{vt+8}, vcc
        v_cndmask_b32 v{v_bi}, v{v_bi}, v{vt+9}, vcc
        ''')
    a(f'v_mov_b32 v{vt+6}, v{v_best}')
    wave_reduce(vt+6, 'v_max_f32', vt+7)
    a(f'''
    v_cmp_eq_f32 vcc, v{vt+6}, v{v_best}
    v_mov_b32 v{vt+7}, 0x7fffffff
    v_cndmask_b32 v{vt+8}, v{vt+7}, v{v_bi}, vcc
    ''')
    wave_reduce(vt+8, 'v_min_u32', vt+7)
    a(f'''
    s_lshl_b32 s{s_t0}, s{s_w}, 3
    s_add_u32 s{s_t0}, s{s_t0}, {LR}
    v_mov_b32 v{vt+9}, s{s_t0}
    v_mov_b32 v{vt+7}, v{vt+8}
    ds_write_b64 v{vt+9}, v[{vt+6}:{vt+7}]
    s_waitcnt lgkmcnt(0)
    s_barrier
    v_mov_b32 v{vt+9}, {LR}
    ds_read_b128 v[200:203], v{vt+9}
    ds_read_b128 v[204:207], v{vt+9} offset:16
    s_waitcnt lgkmcnt(0)
    ''')
    a(f'''
    v_cmp_gt_f32 vcc, v202, v200
    v_cndmask_b32 v200, v200, v202, vcc
    v_cndmask_b32 v201, v201, v203, vcc
    v_cmp_gt_f32 vcc, v204, v200
    v_cndmask_b32 v200, v200, v204, vcc
    v_cndmask_b32 v201, v201, v205, vcc
    v_cmp_gt_f32 vcc, v206, v200
    v_cndmask_b32 v200, v200, v206, vcc
    v_cndmask_b32 v201, v201, v207, vcc
    v_min_u32 v201, 2047, v201
    v_readfirstlane_b32 s{s_idx}, v201
    ''')
    a(f'''
    s_mul_i32 s{s_t0}, s{s_idx}, 1152
    s_add_u32 s{s_t0}, s{s_t0}, {WS_H}
    s_lshl_b32 s{s_t1}, s{s_idx}, 2
    s_add_u32 s{s_t1}, s{s_t1}, {WS_STAT}
    s_add_u32 s{s_c}, s{s_t1}, 8192
    v_min_u32 v{vt}, 143, v0
    v_lshlrev_b32 v{vt}, 3, v{vt}
    v_mov_b32 v{vt+1}, 0
    buffer_load_dwordx2 v[202:203], v{vt}, s[{SWS}:{SWS+3}], s{s_t0} offen
    buffer_load_dword v204, v{vt+1}, s[{SWS}:{SWS+3}], s{s_t1} offen
    buffer_load_dword v205, v{vt+1}, s[{SWS}:{SWS+3}], s{s_c} offen
    s_waitcnt vmcnt(0)
    ''')
    ln_scalars(a, 204, 205, 206, 207, 208)
    for k in range(2):
        a(f'''
        v_lshlrev_b32 v209, 16, v{202+k}
        v_and_b32 v210, 0xffff0000, v{202+k}
        v_sub_f32 v209, v209, v206
        v_sub_f32 v210, v210, v206
        v_cvt_pk_bf16_f32 v211, v209, v210
        v_lshlrev_b32 v209, 16, v211
        v_and_b32 v210, 0xffff0000, v211
        v_mul_f32 v209, v209, v207
        v_mul_f32 v210, v210, v207
        v_cvt_pk_bf16_f32 v{212+k}, v209, v210
        ''')
    a(f'''
    v_add_u32 v{vt}, {LX}, v{vt}
    ds_write_b64 v{vt}, v[212:213]
    ''')
    a(f'''
    s_cmp_lg_u32 s2, 0
    s_cbranch_scc1 {L}_nosel
    v_mov_b32 v214, v201
    v_mov_b32 v215, v206
    v_mov_b32 v216, v207
    v_mov_b32 v217, v200
    s_mov_b32 s{s_t0}, {WS_SEL}
    s_mov_b64 exec, 1
    buffer_store_dwordx4 v[214:217], v{vt+1}, s[{SWS}:{SWS+3}], s{s_t0} offen
    s_mov_b64 exec, -1
    {L}_nosel:
    s_waitcnt lgkmcnt(0)
    s_barrier
    ''')
    vA, vB = vt, vt+1
    XFR = 32
    BFR = 40
    AC = 48
    a(f'''
    s_lshr_b32 s{s_t0}, s{s_w}, 1
    s_mul_i32 s{s_t1}, s{s_t0}, {18*32}
    s_add_u32 s{s_t1}, s{s_t1}, {LX}
    v_lshl_add_u32 v{vA}, v{v_h}, 4, s{s_t1}
    s_mul_i32 s{s_t0}, s{s_t0}, {18*1024}
    s_and_b32 s{s_t1}, s{s_w}, 1
    s_mul_i32 s{s_t1}, s{s_t1}, {LU}
    s_add_u32 s{s_t0}, s{s_t0}, s{s_t1}
    v_bfe_u32 v{vt+2}, v{v_l}, 2, 2
    v_lshl_add_u32 v{vt+2}, v{v_h}, 3, v{vt+2}
    v_lshlrev_b32 v{vB}, 6, v{vt+2}
    v_bfe_u32 v{vt+3}, v{v_l}, 4, 1
    v_lshl_add_u32 v{vB}, v{vt+3}, 5, v{vB}
    v_and_b32 v{vt+4}, 3, v{v_l}
    v_lshl_add_u32 v{vB}, v{vt+4}, 3, v{vB}
    v_add_u32 v{vB}, s{s_t0}, v{vB}
    ''')

    def rd(i, fb):
        a(f'ds_read_b128 {vr(XFR+4*fb,4)}, v{vA} offset:{32*i}')
        a(f'ds_read_b64_tr_b16 {vr(BFR+4*fb,2)}, v{vB} offset:{1024*i}')
        a(f'ds_read_b64_tr_b16 {vr(BFR+4*fb+2,2)}, v{vB} offset:{1024*i+256}')
    rd(0, 0)
    for i in range(18):
        fb = i % 2
        if i < 17:
            rd(i+1, 1-fb)
            a('s_waitcnt lgkmcnt(3)')
        else:
            a('s_waitcnt lgkmcnt(0)')
        cc = '0' if i == 0 else vr(AC, 16)
        a(f'v_mfma_f32_32x32x16_bf16 {vr(AC,16)}, {vr(XFR+4*fb,4)}, {vr(BFR+4*fb,4)}, {cc}')
    a(f'''
    s_lshl_b32 s{s_t0}, s{s_w}, 7
    s_add_u32 s{s_t0}, s{s_t0}, {LR+64}
    v_lshl_add_u32 v{vt+5}, v{v_t}, 2, s{s_t0}
    ds_write_b32 v{vt+5}, v{AC}
    s_waitcnt lgkmcnt(0)
    s_barrier
    v_lshlrev_b32 v{vt+5}, 2, v{v_t}
    v_add_u32 v{vt+5}, {LR+64}, v{vt+5}
    ds_read_b32 v200, v{vt+5}
    ds_read_b32 v201, v{vt+5} offset:128
    ds_read_b32 v202, v{vt+5} offset:256
    ds_read_b32 v203, v{vt+5} offset:384
    s_waitcnt lgkmcnt(0)
    v_add_f32 v200, v200, v202
    v_add_f32 v201, v201, v203
    ''')
    bf16_round(a, 200, 200)
    bf16_round(a, 201, 201)
    a(f'''
    v_mul_f32 v202, {f32(-math.log2(math.e))}, v200
    v_exp_f32 v202, v202
    v_add_f32 v202, 1.0, v202
    v_rcp_f32 v202, v202
    v_mul_f32 v202, v200, v202
    ''')
    bf16_round(a, 202, 202)
    a(f'''
    v_mul_f32 v202, v202, v201
    v_cvt_pk_bf16_f32 v202, v202, v202
    v_lshlrev_b32 v{vt+5}, 1, v{v_t}
    s_lshl_b32 s{s_t0}, s{s_w}, 6
    s_add_u32 s{s_t0}, s{s_t0}, {LR+1024}
    v_add_u32 v{vt+5}, s{s_t0}, v{vt+5}
    ds_write_b16 v{vt+5}, v202
    v_lshl_add_u32 v{vA}, v{v_h}, 4, s{s_t0}
    s_waitcnt lgkmcnt(0)
    ds_read_b128 {vr(XFR,4)}, v{vA}
    ds_read_b128 {vr(XFR+4,4)}, v{vA} offset:32
    ''')
    a(f'''
    v_mul_u32_u24 v{vB}, 1152, v{vt+2}
    v_lshl_add_u32 v{vB}, v{vt+3}, 5, v{vB}
    v_lshl_add_u32 v{vB}, v{vt+4}, 3, v{vB}
    s_lshl_b32 s{s_t0}, s{s_w}, 6
    s_add_u32 s{s_t0}, s{s_t0}, {LD}
    v_add_u32 v{vB}, s{s_t0}, v{vB}
    s_mul_i32 s{s_t1}, s{s_fb}, 2304
    s_add_u32 s{s_t1}, s{s_t1}, {WS_Y}
    s_lshl_b32 s{s_t0}, s{s_w}, 7
    s_add_u32 s{s_t1}, s{s_t1}, s{s_t0}
    v_lshlrev_b32 v{vt+5}, 2, v{v_t}
    ''')
    DB = 64
    DA = 104
    for j in range(5):
        for s in range(2):
            for jj in range(2):
                a(f'ds_read_b64_tr_b16 {vr(DB+8*j+4*s+2*jj,2)}, v{vB} offset:{(16*s+4*jj)*1152 + j*256}')
    a('s_waitcnt lgkmcnt(0)')
    for j in range(5):
        a(f'v_mfma_f32_32x32x16_bf16 {vr(DA+16*j,16)}, {vr(XFR,4)}, {vr(DB+8*j,4)}, 0')
        a(f'v_mfma_f32_32x32x16_bf16 {vr(DA+16*j,16)}, {vr(XFR+4,4)}, {vr(DB+8*j+4,4)}, {vr(DA+16*j,16)}')
    a('s_mov_b64 exec, 0xffffffff')
    for j in range(4):
        a(f'buffer_store_dword v{DA+16*j}, v{vt+5}, s[{SWS}:{SWS+3}], s{s_t1} offen offset:{512*j}')
    a(f'''
    s_cmp_gt_u32 s{s_w}, 1
    s_cbranch_scc1 {L}_end
    buffer_store_dword v{DA+64}, v{vt+5}, s[{SWS}:{SWS+3}], s{s_t1} offen offset:2048
    s_endpgm
    ''')
    a.label(f'{L}_out')
    HB = 32
    SB = 52
    a(f'''
    s_sub_u32 s{s_t0}, s2, {NFF}
    s_mul_i32 s{s_t1}, s{s_t0}, {16*1152}
    s_add_u32 s{s_c}, s{s_t1}, {WS_H}
    s_lshl_b32 s{s_t0}, s{s_t0}, 6
    s_add_u32 s{s_t0}, s{s_t0}, {WS_STAT}
    s_add_u32 s{s_fb}, s{s_t0}, 8192
    ''')
    for j in range(5):
        a(f'''
        v_add_u32 v{vt}, {256*j}, v0
        v_min_u32 v{vt}, 1151, v{vt}
        v_lshlrev_b32 v{vt+10+j}, 4, v{vt}
        v_mul_u32_u24 v{vt+1}, 911, v{vt}
        v_lshrrev_b32 v{vt+1}, 16, v{vt+1}
        v_lshlrev_b32 v{vt+1}, 2, v{vt+1}
        buffer_load_dwordx4 {vr(HB+4*j,4)}, v{vt+10+j}, s[{SWS}:{SWS+3}], s{s_c} offen
        buffer_load_dword v{SB+2*j}, v{vt+1}, s[{SWS}:{SWS+3}], s{s_t0} offen
        buffer_load_dword v{SB+2*j+1}, v{vt+1}, s[{SWS}:{SWS+3}], s{s_fb} offen
        ''')
    OB = 64
    for j in range(5):
        a(f's_waitcnt vmcnt({3*(4-j) + j})')
        ln_scalars(a, SB+2*j, SB+2*j+1, vt, vt+1, vt+2)
        for k in range(4):
            hh = HB+4*j+k
            a(f'''
            v_lshlrev_b32 v{vt+3}, 16, v{hh}
            v_and_b32 v{vt+4}, 0xffff0000, v{hh}
            v_sub_f32 v{vt+5}, v{vt+3}, v{vt}
            v_sub_f32 v{vt+6}, v{vt+4}, v{vt}
            v_cvt_pk_bf16_f32 v{vt+7}, v{vt+5}, v{vt+6}
            v_lshlrev_b32 v{vt+5}, 16, v{vt+7}
            v_and_b32 v{vt+6}, 0xffff0000, v{vt+7}
            v_mul_f32 v{vt+5}, v{vt+5}, v{vt+1}
            v_mul_f32 v{vt+6}, v{vt+6}, v{vt+1}
            v_cvt_pk_bf16_f32 v{vt+7}, v{vt+5}, v{vt+6}
            v_lshlrev_b32 v{vt+5}, 16, v{vt+7}
            v_and_b32 v{vt+6}, 0xffff0000, v{vt+7}
            v_add_f32 v{vt+5}, v{vt+5}, v{vt+3}
            v_add_f32 v{vt+6}, v{vt+6}, v{vt+4}
            v_cvt_pk_bf16_f32 v{OB+4*j+k}, v{vt+5}, v{vt+6}
            ''')
        a(f'buffer_store_dwordx4 {vr(OB+4*j,4)}, v{vt+10+j}, s[{SO}:{SO+3}], s{s_t1} offen')
    a(f'''
    {L}_end:
    s_endpgm
    ''')
    kernels.append((L, NFF+128, 256, LR + 2048, 232, 64))

def k5(a):
    L = 'k5_final_kernel'
    begin(a, L)
    SWS, SO = 12, 16
    s_t0, s_t1, s_idx = 20, 21, 22
    a(f'''
    s_cmp_ge_u32 s2, 18
    s_cbranch_scc1 {L}_end
    s_load_dwordx2 s[4:5], s[0:1], 64
    s_load_dwordx2 s[6:7], s[0:1], 80
    v_and_b32 v1, 31, v0
    v_lshrrev_b32 v2, 5, v0
    v_mul_u32_u24 v3, {18*2304}, v2
    v_lshl_add_u32 v3, v1, 2, v3
    v_mov_b32 v4, 0
    s_waitcnt lgkmcnt(0)
    ''')
    srd(a, SO, 4, 2048*1152)
    srd(a, SWS, 6, WS_SIZE)
    a(f'''
    s_mov_b32 s{s_t1}, {WS_SEL}
    buffer_load_dwordx4 v[8:11], v4, s[{SWS}:{SWS+3}], s{s_t1} offen
    s_lshl_b32 s{s_t0}, s2, 7
    s_add_u32 s{s_t0}, s{s_t0}, {WS_Y}
    ''')
    for j in range(18):
        a(f'buffer_load_dword v{16+j}, v3, s[{SWS}:{SWS+3}], s{s_t0} offen')
        a(f's_add_u32 s{s_t0}, s{s_t0}, 2304')
    a(f'''
    s_waitcnt vmcnt(18)
    v_min_u32 v8, 2047, v8
    v_mul_u32_u24 v5, 1152, v8
    v_lshl_add_u32 v5, v1, 1, v5
    s_lshl_b32 s{s_t1}, s2, 6
    s_add_u32 s{s_t0}, s{s_t1}, {WS_H}
    buffer_load_ushort v12, v5, s[{SWS}:{SWS+3}], s{s_t0} offen
    s_waitcnt vmcnt(1)
    ''')
    for j in range(1, 18):
        a(f'v_add_f32 v16, v16, v{16+j}')
    a(f'''
    v_lshlrev_b32 v6, 2, v0
    ds_write_b32 v6, v16
    s_waitcnt lgkmcnt(0)
    s_barrier
    v_lshlrev_b32 v6, 2, v1
    ''')
    for j in range(8):
        a(f'ds_read_b32 v{16+j}, v6 offset:{128*j}')
    a('s_waitcnt vmcnt(0) lgkmcnt(0)')
    for j in range(1, 8):
        a(f'v_add_f32 v16, v16, v{16+j}')
    bf16_round(a, 16, 16)
    bf16_round(a, 11, 11)
    a(f'''
    v_mul_f32 v13, {f32(-math.log2(math.e))}, v11
    v_exp_f32 v13, v13
    v_add_f32 v13, 1.0, v13
    v_rcp_f32 v13, v13
    ''')
    bf16_round(a, 13, 13)
    a('v_mul_f32 v16, v16, v13')
    bf16_round(a, 16, 16)
    a(f'''
    v_lshlrev_b32 v12, 16, v12
    v_sub_f32 v14, v12, v9
    ''')
    bf16_round(a, 14, 14)
    a('v_mul_f32 v14, v14, v10')
    bf16_round(a, 14, 14)
    a('v_add_f32 v14, v14, v16')
    bf16_round(a, 14, 14)
    a(f'''
    v_add_f32 v14, v14, v12
    v_cvt_pk_bf16_f32 v14, v14, v14
    v_cmp_gt_u32 vcc, 32, v0
    s_and_saveexec_b64 s[24:25], vcc
    s_cbranch_execz {L}_end
    buffer_store_short v14, v5, s[{SO}:{SO+3}], s{s_t1} offen
    {L}_end:
    s_endpgm
    ''')
    kernels.append((L, 18, 256, 1024, 64, 64))


def build(extra_empty=0):
    a = Asm()
    a.raw('.amdgcn_target "amdgcn-amd-amdhsa--gfx950"')
    a.raw('.text')
    k1(a); k2(a); k3(a); k4(a); k5(a)
    body = a.render()
    hdr = ''
    for (lab, grid, block, lds, vg, sg) in kernels:
        hdr += f'; @launch kernel={lab} grid=({grid},1,1) block=({block},1,1) lds={lds}\n'
    desc = '.section .rodata,"a"\n'
    for (lab, grid, block, lds, vg, sg) in kernels:
        desc += f'''.p2align 6
.amdhsa_kernel {lab}
  .amdhsa_next_free_vgpr {vg}
  .amdhsa_next_free_sgpr {sg}
  .amdhsa_accum_offset {(vg+3)//4*4}
  .amdhsa_group_segment_fixed_size 0
  .amdhsa_kernarg_size 88
  .amdhsa_user_sgpr_count 2
  .amdhsa_user_sgpr_kernarg_segment_ptr 1
  .amdhsa_system_sgpr_workgroup_id_x 1
  .amdhsa_float_denorm_mode_32 3
.end_amdhsa_kernel
'''
    return hdr + body + desc

if __name__ == '__main__':
    out = sys.argv[1] if len(sys.argv) > 1 else f'cdna_kernels/{NAME}.s'
    open(out, 'w').write(build())
    print('wrote', out)
```

```python
import sys, struct, math
from asmlib import Asm

NAME = 'sequential_preLN__mha_block__moe_arch_mod__prompt'

CHUNK = 19456
HEADKV = 8 * CHUNK
WS_KV = 0
WS_Q = 0x500000
HEADQ = 73728
WS_O = 0x800000
WS_H = 0xB00000
WS_STAT = 0xE00000
WS_SEL = 0xE08000
WS_Y = 0xE10000
WS_SIZE = 0x1000000

def f32(x):
    return '0x%08x' % struct.unpack('<I', struct.pack('<f', x))[0]

CQ = (18 ** -0.5) * math.log2(math.e)

def srd(a, d, lo, nbytes):
    a(f'''
    s_mov_b32 s{d}, s{lo}
    s_mov_b32 s{d+1}, s{lo+1}
    s_mov_b32 s{d+2}, {nbytes}
    s_mov_b32 s{d+3}, 0x00020000
    ''')

def vr(b, n):
    return f'v[{b}:{b+n-1}]' if n > 1 else f'v{b}'

def bf16_round(a, dst, src):
    a(f'v_cvt_pk_bf16_f32 v{dst}, v{src}, v{src}')
    a(f'v_lshlrev_b32 v{dst}, 16, v{dst}')

def ln_scalars(a, vsum, vsq, vm, vrinv, vt):
    a(f'''
    v_mul_f32 v{vm}, {f32(1.0/576)}, v{vsum}
    v_mul_f32 v{vt}, {f32(1.0/576)}, v{vsq}
    v_fma_f32 v{vt}, -v{vm}, v{vm}, v{vt}
    v_max_f32 v{vt}, 0, v{vt}
    ''')
    bf16_round(a, vt, vt)
    a(f'v_add_f32 v{vt}, {f32(1e-5)}, v{vt}')
    bf16_round(a, vt, vt)
    a(f'v_sqrt_f32 v{vt}, v{vt}')
    bf16_round(a, vt, vt)
    a(f'v_rcp_f32 v{vrinv}, v{vt}')
    bf16_round(a, vm, vm)

kernels = []

def begin(a, label):
    a.raw('.p2align 8')
    a.raw(f'.globl {label}')
    a.raw(f'.type {label},@function')
    a.label(label)

def k1(a):
    L = 'k1_qkv_kernel'
    begin(a, L)
    NB = 5
    BUF = 32768
    SX, SW, SWS = 12, 16, 20
    s_cb, s_tb, s_w, s_w1k, s_xb, s_wb, s_t0, s_t1 = 24, 25, 26, 27, 28, 29, 30, 31
    s_wmask = 32
    s_u, s_part, s_pair, s_gt, s_dst, s_scale, s_hs = 34, 35, 36, 37, 38, 39, 40
    s_m = 42
    v_tid, v_l, v_t, v_h = 0, 1, 2, 3
    vX, vW = 4, 5
    vXa = 6
    vWa = 10
    v_sq, v_ws = 12, 13
    v_one = 14
    vt = 16
    XF = [24, 32]
    WF = [40, 48]
    ACC = 64
    a(f'''
    s_cmp_ge_u32 s2, 256
    s_cbranch_scc1 {L}_end
    s_load_dwordx4 s[4:7], s[0:1], 0
    s_load_dwordx2 s[8:9], s[0:1], 80
    s_and_b32 s10, s2, 7
    s_lshr_b32 s11, s2, 3
    s_and_b32 s{s_cb}, s10, 3
    s_lshl_b32 s{s_cb}, s{s_cb}, 2
    s_and_b32 s{s_t0}, s11, 3
    s_add_u32 s{s_cb}, s{s_cb}, s{s_t0}
    s_lshr_b32 s{s_tb}, s10, 2
    s_lshl_b32 s{s_tb}, s{s_tb}, 3
    s_lshr_b32 s{s_t0}, s11, 2
    s_add_u32 s{s_tb}, s{s_tb}, s{s_t0}
    v_and_b32 v{v_l}, 63, v0
    v_lshrrev_b32 v{vt}, 6, v0
    v_and_b32 v{v_t}, 31, v0
    v_readfirstlane_b32 s{s_w}, v{vt}
    v_bfe_u32 v{v_h}, v0, 5, 1
    s_lshl_b32 s{s_w1k}, s{s_w}, 10
    s_mul_i32 s{s_xb}, s{s_tb}, {128*1152}
    s_mul_i32 s{s_wb}, s{s_cb}, 216
    ''')
    a(f'''
    v_lshrrev_b32 v{vt}, 3, v{v_l}
    s_lshl_b32 s{s_t0}, s{s_w}, 3
    v_add_u32 v{vt}, s{s_t0}, v{vt}
    v_mul_u32_u24 v{vX}, 1152, v{vt}
    s_and_b32 s{s_t0}, s{s_w}, 1
    s_lshl_b32 s{s_t0}, s{s_t0}, 2
    v_lshrrev_b32 v{vt}, 4, v{v_l}
    v_add_u32 v{vt+1}, s{s_t0}, v{vt}
    v_and_b32 v{vt+2}, 7, v{v_l}
    v_xor_b32 v{vt+2}, v{vt+2}, v{vt+1}
    v_lshl_add_u32 v{vX}, v{vt+2}, 4, v{vX}
    ''')
    a(f'''
    s_lshl_b32 s{s_t0}, s{s_w}, 2
    v_add_u32 v{vt+1}, s{s_t0}, v{vt}
    v_mul_u32_u24 v{vW}, 3456, v{vt+1}
    v_and_b32 v{vt+2}, 15, v{v_l}
    v_lshlrev_b32 v{vt+3}, 2, v{vt}
    v_xor_b32 v{vt+2}, v{vt+2}, v{vt+3}
    v_lshl_add_u32 v{vW}, v{vt+2}, 4, v{vW}
    v_cmp_gt_u32 s[{s_wmask}:{s_wmask+1}], 14, v{vt+2}
    s_waitcnt lgkmcnt(0)
    ''')
    srd(a, SX, 4, 2048*1152)
    srd(a, SW, 6, 576*3456)
    srd(a, SWS, 8, WS_SIZE)

    def issue_chunk(c):
        b = c % NB
        for j in range(4):
            a(f'''
            s_add_u32 m0, s{s_w1k}, {b*BUF + j*4096}
            s_add_u32 s{s_t0}, s{s_xb}, {c*128 + j*32*1152}
            buffer_load_dwordx4 v{vX}, s[{SX}:{SX+3}], s{s_t0} offen lds
            ''')
        a(f's_mov_b64 exec, s[{s_wmask}:{s_wmask+1}]')
        for j in range(4):
            a(f'''
            s_add_u32 m0, s{s_w1k}, {b*BUF + 16384 + j*4096}
            s_add_u32 s{s_t0}, s{s_wb}, {(64*c + 16*j)*3456}
            buffer_load_dwordx4 v{vW}, s[{SW}:{SW+3}], s{s_t0} offen lds
            ''')
        a('s_mov_b64 exec, -1')

    issue_chunk(0)
    a(f'''
    v_and_b32 v{vt}, 3, v{v_l}
    v_lshlrev_b32 v{vt}, 2, v{vt}
    v_xor_b32 v{vt}, 14, v{vt}
    v_lshlrev_b32 v{vt}, 4, v{vt}
    v_lshl_add_u32 v{vt}, v{v_l}, 8, v{vt}
    s_lshl_b32 s{s_t0}, s{s_w}, 15
    v_add_u32 v{vt+1}, s{s_t0}, v{vt}
    v_add_u32 v{vt}, {4*BUF}, v{vt}
    v_mov_b32 v{vt+2}, 0x3f80
    v_mov_b32 v{vt+3}, 0
    ds_write_b64 v{vt+1}, v[{vt+2}:{vt+3}] offset:16384
    ds_write_b64 v{vt}, v[{vt+2}:{vt+3}] offset:16384
    ''')
    for c in range(1, NB):
        issue_chunk(c)
    a(f'''
    v_lshlrev_b32 v{vt}, 2, v0
    v_mov_b32 v{vt+1}, 0
    s_mul_i32 s{s_t0}, s2, 96
    s_add_u32 s{s_t0}, s{s_t0}, {WS_STAT}
    v_cmp_gt_u32 vcc, 24, v0
    s_and_saveexec_b64 s[{s_m}:{s_m+1}], vcc
    s_cbranch_execz {L}_nz
    buffer_store_dword v{vt+1}, v{vt}, s[{SWS}:{SWS+3}], s{s_t0} offen
    {L}_nz:
    s_mov_b64 exec, -1
    ''')
    a(f'''
    s_and_b32 s{s_t0}, s{s_w}, 1
    s_lshl_b32 s{s_t0}, s{s_t0}, 13
    v_lshlrev_b32 v{vt}, 7, v{v_t}
    v_add_u32 v{vt}, s{s_t0}, v{vt}
    v_bfe_u32 v{vt+1}, v{v_t}, 1, 3
    v_xor_b32 v{vt+1}, v{vt+1}, v{v_h}
    v_lshl_add_u32 v{vXa}, v{vt+1}, 4, v{vt}
    v_xor_b32 v{vXa+1}, 32, v{vXa}
    v_xor_b32 v{vXa+2}, 64, v{vXa}
    v_xor_b32 v{vXa+3}, 96, v{vXa}
    ''')
    v_r, v_c4, v_gp = vt+4, vt+5, vt+6
    a(f'''
    v_bfe_u32 v{v_r}, v{v_l}, 2, 2
    v_and_b32 v{v_c4}, 3, v{v_l}
    v_bfe_u32 v{v_gp}, v{v_l}, 4, 1
    s_lshr_b32 s{s_t1}, s{s_w}, 1
    ''')
    for i in range(2):
        a(f'''
        s_lshl_b32 s{s_t0}, s{s_t1}, 1
        s_add_u32 s{s_t0}, s{s_t0}, {i}
        s_mul_i32 s{s_t0}, s{s_t0}, 72
        v_mul_u32_u24 v{vt}, 40, v{v_gp}
        v_lshl_add_u32 v{vt}, v{v_c4}, 3, v{vt}
        v_add_u32 v{vt}, s{s_t0}, v{vt}
        ''')
        if i == 1:
            a(f'''
            v_lshrrev_b32 v{vt+1}, 1, v{v_c4}
            v_lshl_add_u32 v{vt+1}, v{v_gp}, 1, v{vt+1}
            v_mul_u32_u24 v{vt+2}, 72, v{vt+1}
            v_add_u32 v{vt+2}, 32, v{vt+2}
            v_min_u32 v{vt+2}, 224, v{vt+2}
            s_cmp_eq_u32 s{s_t1}, 1
            s_cselect_b64 s[{s_m}:{s_m+1}], -1, 0
            v_cndmask_b32 v{vt}, v{vt}, v{vt+2}, s[{s_m}:{s_m+1}]
            ''')
        a(f'''
        v_lshlrev_b32 v{vt+1}, 6, v{v_r}
        v_xor_b32 v{vt}, v{vt}, v{vt+1}
        v_lshl_add_u32 v{vt+1}, v{v_h}, 3, v{v_r}
        v_lshl_add_u32 v{vt}, v{vt+1}, 8, v{vt}
        v_add_u32 v{vWa+i}, 16384, v{vt}
        ''')
    a(f'''
    v_mov_b32 v{v_sq}, 0
    v_mov_b32 v{v_ws}, 0
    v_mov_b32 v{v_one}, 0x3f803f80
    ''')
    vXb = 56
    a(f'''
    s_lshl_b32 s{s_t0}, s{s_t1}, 12
    s_xor_b32 s{s_u}, s{s_t0}, 4096
    ''')
    for s in range(4):
        a(f'v_add_u32 v{vXb+s}, s{s_u}, v{vXa+s}')
        a(f'v_add_u32 v{vXa+s}, s{s_t0}, v{vXa+s}')
    a(f'''
    s_and_b32 s{s_t0}, s{s_w}, 1
    s_cmp_eq_u32 s{s_t0}, 1
    s_cselect_b64 s[{s_m}:{s_m+1}], -1, 0
    v_cndmask_b32 v{vt}, v{vWa}, v{vWa+1}, s[{s_m}:{s_m+1}]
    v_cndmask_b32 v{vWa+1}, v{vWa+1}, v{vWa}, s[{s_m}:{s_m+1}]
    v_mov_b32 v{vWa}, v{vt}
    ''')
    seg = [0]

    def setseg(b):
        want = (b * BUF) // 65536
        if want != seg[0]:
            d = (want - seg[0]) * 65536
            for r in list(range(vXa, vXa+4)) + list(range(vXb, vXb+4)) + [vWa, vWa+1]:
                if d > 0:
                    a(f'v_add_u32 v{r}, {d}, v{r}')
                else:
                    a(f'v_subrev_u32 v{r}, {-d}, v{r}')
            seg[0] = want

    def reads(c, s, fb):
        b = c % NB
        setseg(b)
        off = b * BUF - seg[0] * 65536
        a(f'ds_read_b128 {vr(XF[fb], 4)}, v{vXa+s} offset:{off}')
        for i in range(2):
            for j in range(2):
                a(f'ds_read_b64_tr_b16 {vr(WF[fb]+4*i+2*j, 2)}, v{vWa+i} offset:{off + s*4096 + j*1024}')
            if i == 0:
                a(f'ds_read_b128 {vr(XF[fb]+4, 4)}, v{vXb+s} offset:{off}')

    def compute(fb, first):
        for i in range(2):
            for x in range(2):
                acc = ACC + (i*2 + x)*16
                cc = '0' if first else vr(acc, 16)
                a(f'v_mfma_f32_32x32x16_bf16 {vr(acc,16)}, {vr(WF[fb]+4*i,4)}, {vr(XF[fb]+4*x,4)}, {cc}')
                k = i*2 + x
                a(f'v_dot2c_f32_bf16 v{v_sq}, v{XF[fb]+k}, v{XF[fb]+k}')
                a(f'v_dot2c_f32_bf16 v{v_ws}, v{WF[fb]+k}, v{v_one}')

    issued = NB
    a(f's_waitcnt vmcnt({8*(issued-1)}) lgkmcnt(0)')
    a('s_barrier')
    reads(0, 0, 0)
    step = 0
    for c in range(9):
        for s in range(4):
            fb = step % 2
            if s < 3:
                reads(c, s+1, 1-fb)
                a('s_waitcnt lgkmcnt(6)')
            elif c < 8:
                a(f's_waitcnt vmcnt({8*(issued-1-(c+1))}) lgkmcnt(0)')
                a('s_barrier')
                reads(c+1, 0, 1-fb)
                if issued < 9:
                    issue_chunk(issued)
                    issued += 1
            else:
                a('s_waitcnt lgkmcnt(0)')
            compute(fb, step == 0)
            step += 1
    a(f'''
    v_mov_b32 v{vt}, v{v_sq}
    v_mov_b32 v{vt+1}, v{v_ws}
    v_permlane32_swap_b32 v{v_sq}, v{vt}
    v_permlane32_swap_b32 v{v_ws}, v{vt+1}
    v_add_f32 v{v_sq}, v{v_sq}, v{vt}
    v_add_f32 v{v_ws}, v{v_ws}, v{vt+1}
    ''')
    a(f'''
    s_and_b32 s{s_t0}, s{s_w}, 1
    s_lshr_b32 s{s_t1}, s{s_w}, 1
    s_lshl_b32 s{s_u}, s{s_t0}, 1
    s_add_u32 s{s_u}, s{s_u}, s{s_t1}
    s_lshl_b32 s{s_u}, s{s_u}, 7
    v_lshlrev_b32 v{vt}, 2, v{v_t}
    v_add_u32 v{vt+1}, s{s_u}, v{vt}
    ds_write_b32 v{vt+1}, v{v_sq}
    s_lshl_b32 s{s_u}, s{s_t1}, 1
    s_add_u32 s{s_u}, s{s_u}, s{s_t0}
    s_lshl_b32 s{s_u}, s{s_u}, 7
    v_add_u32 v{vt+1}, s{s_u}, v{vt}
    ds_write_b32 v{vt+1}, v{v_ws} offset:1024
    s_cmp_eq_u32 s{s_t1}, 0
    s_cbranch_scc1 {L}_nosx
    ''')
    a(f'''
    s_cmp_eq_u32 s{s_t0}, 1
    s_cselect_b64 s[{s_m}:{s_m+1}], -1, 0
    v_cndmask_b32 v{vt+2}, v{ACC+2*16+12}, v{ACC+0*16+12}, s[{s_m}:{s_m+1}]
    v_cndmask_b32 v{vt+3}, v{ACC+3*16+12}, v{ACC+1*16+12}, s[{s_m}:{s_m+1}]
    s_lshl_b32 s{s_u}, s{s_t0}, 8
    v_add_u32 v{vt+1}, s{s_u}, v{vt}
    ds_write_b32 v{vt+1}, v{vt+2} offset:{512+128}
    ds_write_b32 v{vt+1}, v{vt+3} offset:512
    {L}_nosx:
    s_waitcnt lgkmcnt(0)
    s_barrier
    ''')
    vM = [24, 25]; vR = [26, 27]; vS = 28
    WS0 = 32
    a(f'''
    s_lshl_b32 s{s_u}, s{s_t0}, 8
    s_lshl_b32 s{s_part}, s{s_t1}, 7
    s_add_u32 s{s_pair}, s{s_u}, s{s_part}
    s_xor_b32 s{s_part}, s{s_part}, 128
    s_add_u32 s{s_u}, s{s_u}, s{s_part}
    v_add_u32 v{vt+1}, s{s_pair}, v{vt}
    v_add_u32 v{vt+2}, s{s_u}, v{vt}
    ds_read_b32 v{vS}, v{vt+1}
    ds_read_b32 v{vS+1}, v{vt+1} offset:512
    ds_read_b32 v{vS+2}, v{vt+2}
    ds_read_b32 v{vS+3}, v{vt+2} offset:512
    ''')
    a(f'''
    s_lshl_b32 s{s_u}, s{s_t1}, 1
    s_add_u32 s{s_u}, s{s_u}, s{s_t0}
    s_lshl_b32 s{s_u}, s{s_u}, 7
    s_xor_b32 s{s_part}, s{s_u}, 128
    v_lshlrev_b32 v{vt+1}, 4, v{v_h}
    v_add_u32 v{vt+2}, s{s_part}, v{vt+1}
    v_add_u32 v{vt+1}, s{s_u}, v{vt+1}
    ''')
    for i in range(2):
        for g in range(4):
            a(f'ds_read_b128 {vr(WS0+16*i+4*g, 4)}, v{vt+1+i} offset:{1024+32*g}')
    a('s_waitcnt lgkmcnt(8)')
    for x in range(2):
        ln_scalars(a, vS+2*x+1, vS+2*x, vM[x], vR[x], vt+3)
    a('s_waitcnt lgkmcnt(0)')
    for i in range(2):
        for x in range(2):
            acc = ACC + (i*2+x)*16
            for r in range(16):
                a(f'v_fma_f32 v{acc+r}, -v{vM[x]}, v{WS0+16*i+r}, v{acc+r}')
    v_lin, v_vrec, v_e4, v_e40, v_off, v_sc = 4, 5, 6, 7, 8, 9
    PK = 32
    a(f'''
    v_lshlrev_b32 v{v_lin}, 4, v{v_l}
    v_mul_u32_u24 v{v_vrec}, 40, v{v_t}
    v_lshlrev_b32 v{v_e4}, 2, v{v_t}
    v_add_u32 v{v_e40}, 32, v{v_vrec}
    v_lshl_add_u32 v{v_vrec}, v{v_h}, 4, v{v_vrec}
    ''')

    def unit_params(u_expr_done):
        a(f'''
        s_lshr_b32 s{s_part}, s{s_u}, 4
        s_and_b32 s{s_pair}, s{s_u}, 15
        s_cmp_eq_u32 s{s_part}, 0
        s_cselect_b32 s{s_scale}, {f32(CQ)}, 1.0
        s_mov_b32 s{s_hs}, {HEADKV}
        s_cselect_b32 s{s_hs}, {HEADQ}, s{s_hs}
        s_cselect_b32 s{s_dst}, {WS_Q}, {WS_KV}
        s_lshl_b32 s{s_pair}, s{s_pair}, 1
        s_mul_i32 s{s_pair}, s{s_pair}, s{s_hs}
        s_add_u32 s{s_dst}, s{s_dst}, s{s_pair}
        ''')

    s_a, s_b, s_c = 44, 45, 46
    for i in range(2):
        a(f'''
        s_xor_b32 s{s_u}, s{s_t0}, {i}
        s_lshl_b32 s{s_a}, s{s_t1}, 1
        s_add_u32 s{s_u}, s{s_u}, s{s_a}
        s_cmp_eq_u32 s{s_u}, 3
        s_cbranch_scc1 {L}_ext{i}
        s_mul_i32 s{s_a}, s{s_cb}, 3
        s_add_u32 s{s_u}, s{s_u}, s{s_a}
        ''')
        unit_params(None)
        a(f'''
        s_cmp_eq_u32 s{s_part}, 2
        s_cselect_b64 s[{s_m}:{s_m+1}], -1, 0
        v_cndmask_b32 v{v_off}, v{v_lin}, v{v_vrec}, s[{s_m}:{s_m+1}]
        ''')
        for x in range(2):
            acc = ACC + (i*2+x)*16
            a(f'''
            s_xor_b32 s{s_gt}, s{s_t1}, {x}
            s_lshl_b32 s{s_a}, s{s_t0}, 1
            s_add_u32 s{s_gt}, s{s_gt}, s{s_a}
            s_lshl_b32 s{s_a}, s{s_tb}, 2
            s_add_u32 s{s_gt}, s{s_gt}, s{s_a}
            s_lshr_b32 s{s_a}, s{s_gt}, 3
            s_mul_i32 s{s_a}, s{s_a}, {CHUNK}
            s_and_b32 s{s_b}, s{s_gt}, 7
            s_mul_i32 s{s_c}, s{s_b}, 1280
            s_add_u32 s{s_c}, s{s_c}, 9216
            s_lshl_b32 s{s_b}, s{s_b}, 10
            s_cmp_eq_u32 s{s_part}, 2
            s_cselect_b32 s{s_b}, s{s_c}, s{s_b}
            s_add_u32 s{s_a}, s{s_a}, s{s_b}
            s_lshl_b32 s{s_b}, s{s_gt}, 10
            s_cmp_eq_u32 s{s_part}, 0
            s_cselect_b32 s{s_a}, s{s_b}, s{s_a}
            s_add_u32 s{s_a}, s{s_a}, s{s_dst}
            s_add_u32 s{s_b}, s{s_a}, s{s_hs}
            v_mul_f32 v{v_sc}, s{s_scale}, v{vR[x]}
            ''')
            for r in range(16):
                a(f'v_mul_f32 v{acc+r}, v{v_sc}, v{acc+r}')
            pk = PK + 8*x
            for k in range(8):
                a(f'v_cvt_pk_bf16_f32 v{pk+k}, v{acc+2*k}, v{acc+2*k+1}')
            a(f'buffer_store_dwordx4 {vr(pk,4)}, v{v_off}, s[{SWS}:{SWS+3}], s{s_a} offen')
            a(f'buffer_store_dwordx4 {vr(pk+4,4)}, v{v_off}, s[{SWS}:{SWS+3}], s{s_b} offen')
        a(f's_branch {L}_done{i}')
        a.label(f'{L}_ext{i}')
        a(f'v_cmp_eq_u32 vcc, 1, v{v_h}')
        for g in range(3):
            a(f'''
            s_mul_i32 s{s_u}, s{s_cb}, 3
            s_add_u32 s{s_u}, s{s_u}, {g}
            ''')
            unit_params(None)
            a(f'''
            s_cmp_eq_u32 s{s_part}, 2
            s_cselect_b64 s[{s_m}:{s_m+1}], -1, 0
            v_cndmask_b32 v{v_off}, v{v_e4}, v{v_e40}, s[{s_m}:{s_m+1}]
            v_mul_lo_u32 v{vt}, v{v_h}, s{s_hs}
            v_add_u32 v{v_off}, v{v_off}, v{vt}
            ''')
            for x in range(2):
                acc = ACC + (i*2+x)*16
                pk = PK + 4*x + 8*(g % 2)
                a(f'''
                s_xor_b32 s{s_gt}, s{s_t1}, {x}
                s_lshl_b32 s{s_a}, s{s_t0}, 1
                s_add_u32 s{s_gt}, s{s_gt}, s{s_a}
                s_lshl_b32 s{s_a}, s{s_tb}, 2
                s_add_u32 s{s_gt}, s{s_gt}, s{s_a}
                s_lshr_b32 s{s_a}, s{s_gt}, 3
                s_mul_i32 s{s_a}, s{s_a}, {CHUNK}
                s_and_b32 s{s_b}, s{s_gt}, 7
                s_mul_i32 s{s_c}, s{s_b}, 1280
                s_add_u32 s{s_c}, s{s_c}, 9216
                s_lshl_b32 s{s_b}, s{s_b}, 7
                s_add_u32 s{s_b}, s{s_b}, 8192
                s_cmp_eq_u32 s{s_part}, 2
                s_cselect_b32 s{s_b}, s{s_c}, s{s_b}
                s_add_u32 s{s_a}, s{s_a}, s{s_b}
                s_lshl_b32 s{s_b}, s{s_gt}, 7
                s_add_u32 s{s_b}, s{s_b}, 65536
                s_cmp_eq_u32 s{s_part}, 0
                s_cselect_b32 s{s_a}, s{s_b}, s{s_a}
                s_add_u32 s{s_a}, s{s_a}, s{s_dst}
                v_mul_f32 v{v_sc}, s{s_scale}, v{vR[x]}
                v_cndmask_b32 v{vt}, v{acc+4*g}, v{acc+4*g+2}, vcc
                v_cndmask_b32 v{vt+1}, v{acc+4*g+1}, v{acc+4*g+3}, vcc
                v_mul_f32 v{vt}, v{v_sc}, v{vt}
                v_mul_f32 v{vt+1}, v{v_sc}, v{vt+1}
                v_cvt_pk_bf16_f32 v{pk}, v{vt}, v{vt+1}
                v_mov_b32 v{pk+1}, 0x3f80
                s_cmp_eq_u32 s{s_part}, 2
                s_cbranch_scc1 {L}_e{i}{g}{x}v
                buffer_store_dword v{pk}, v{v_off}, s[{SWS}:{SWS+3}], s{s_a} offen
                s_branch {L}_e{i}{g}{x}d
                {L}_e{i}{g}{x}v:
                buffer_store_dwordx2 {vr(pk,2)}, v{v_off}, s[{SWS}:{SWS+3}], s{s_a} offen
                {L}_e{i}{g}{x}d:
                ''')
        a.label(f'{L}_done{i}')
    a.label(f'{L}_end')
    a('s_endpgm')
    kernels.append((L, 256, 256, 163840, 128, 64))

def k2(a):
    L = 'k2_attn_kernel'
    begin(a, L)
    SWS = 12
    s_head, s_qb, s_w, s_t0, s_t1, s_kv, s_mode, s_c, s_qs, s_kg, s_n = 20, 21, 22, 23, 24, 25, 26, 27, 28, 29, 30
    s_m = 32
    FLAG = HEADKV
    v_l, v_t, v_h = 1, 2, 3
    vKa, vKe, vVa, vlin = 4, 5, 6, 7
    vt = 8
    QM = [16, 20]; QE = [24, 26]
    KM = [28, 32]; KE = [36, 38]
    VF = [40, 48]
    P = 56
    S = [64, 80]
    O = [96, 112]
    a(f'''
    s_cmp_ge_u32 s2, 256
    s_cbranch_scc1 {L}_end
    s_load_dwordx2 s[8:9], s[0:1], 80
    s_and_b32 s10, s2, 7
    s_lshr_b32 s11, s2, 3
    s_lshl_b32 s{s_head}, s10, 2
    s_lshr_b32 s{s_t0}, s11, 3
    s_add_u32 s{s_head}, s{s_head}, s{s_t0}
    s_and_b32 s{s_qb}, s11, 7
    v_and_b32 v{v_l}, 63, v0
    v_lshrrev_b32 v{vt}, 6, v0
    v_and_b32 v{v_t}, 31, v0
    v_readfirstlane_b32 s{s_w}, v{vt}
    v_bfe_u32 v{v_h}, v0, 5, 1
    v_lshlrev_b32 v{vlin}, 4, v{v_l}
    s_and_b32 s{s_qs}, s{s_w}, 3
    s_lshr_b32 s{s_kg}, s{s_w}, 2
    s_mul_i32 s{s_kv}, s{s_head}, {HEADKV}
    s_add_u32 s{s_kv}, s{s_kv}, {WS_KV}
    s_mov_b32 s{s_mode}, 0
    s_waitcnt lgkmcnt(0)
    ''')
    srd(a, SWS, 8, WS_SIZE)
    a.label(f'{L}_start')
    a(f'''
    s_lshl_b32 s{s_t0}, s{s_qb}, 3
    s_lshl_b32 s{s_t1}, s{s_qs}, 1
    s_add_u32 s{s_t0}, s{s_t0}, s{s_t1}
    s_mul_i32 s{s_t1}, s{s_head}, {HEADQ}
    s_add_u32 s{s_t1}, s{s_t1}, {WS_Q}
    s_lshl_b32 s{s_c}, s{s_t0}, 10
    s_add_u32 s{s_c}, s{s_c}, s{s_t1}
    buffer_load_dwordx4 {vr(QM[0],4)}, v{vlin}, s[{SWS}:{SWS+3}], s{s_c} offen
    buffer_load_dwordx4 {vr(QM[1],4)}, v{vlin}, s[{SWS}:{SWS+3}], s{s_c} offen offset:1024
    s_lshl_b32 s{s_c}, s{s_t0}, 7
    s_add_u32 s{s_c}, s{s_c}, s{s_t1}
    s_add_u32 s{s_c}, s{s_c}, 65536
    v_lshlrev_b32 v{vt}, 2, v{v_t}
    buffer_load_dword v{QE[0]}, v{vt}, s[{SWS}:{SWS+3}], s{s_c} offen
    buffer_load_dword v{QE[1]}, v{vt}, s[{SWS}:{SWS+3}], s{s_c} offen offset:128
    s_lshl_b32 s{s_t0}, s{s_w}, 10
    s_add_u32 s{s_t1}, s{s_kv}, s{s_t0}
    ''')
    for j in range(19):
        a(f'''
        s_add_u32 m0, s{s_t0}, {j*8192}
        s_add_u32 s{s_c}, s{s_t1}, {j*8192}
        buffer_load_dwordx4 v{vlin}, s[{SWS}:{SWS+3}], s{s_c} offen lds
        ''')
    a(f'''
    v_mov_b32 v{vt}, {FLAG}
    v_mov_b32 v{vt+1}, 0
    ds_write_b32 v{vt}, v{vt+1}
    v_mov_b32 v{KE[0]+1}, 0x3f803f80
    v_mov_b32 v{KE[1]+1}, 0x3f803f80
    v_mov_b32 v{QE[0]+1}, 0
    v_mov_b32 v{QE[1]+1}, 0
    ''')
    a(f'''
    v_bfe_u32 v{vt}, v{v_l}, 2, 2
    v_lshl_add_u32 v{vt}, v{v_h}, 2, v{vt}
    s_lshl_b32 s{s_t0}, s{s_kg}, 7
    v_add_u32 v{vt}, s{s_t0}, v{vt}
    v_mul_u32_u24 v{vVa}, 40, v{vt}
    v_and_b32 v{vt}, 3, v{v_l}
    v_lshlrev_b32 v{vt}, 3, v{vt}
    v_and_b32 v{vt+1}, 16, v{v_l}
    v_cmp_ne_u32 vcc, 0, v{vt+1}
    v_cndmask_b32 v{vt}, v{vt}, 32, vcc
    v_add3_u32 v{vVa}, v{vVa}, v{vt}, 0
    v_add_u32 v{vVa}, 9216, v{vVa}
    ''')
    for r in range(16):
        a(f'v_mov_b32 v{O[0]+r}, 0')
        a(f'v_mov_b32 v{O[1]+r}, 0')
    for r in range(8):
        a(f'v_mov_b32 v{P+r}, 0')
    for r in range(4):
        a(f'v_mov_b32 v{VF[1]+4+r}, 0')
    a(f'''
    s_cmp_eq_u32 s{s_mode}, 0
    s_cbranch_scc1 {L}_w0
    s_waitcnt vmcnt(0)
    {L}_w0:
    s_waitcnt vmcnt({18-2}) lgkmcnt(0)
    s_barrier
    v_cmp_eq_u32 vcc, 0, v{v_h}
    v_cndmask_b32 v{QE[0]}, 0, v{QE[0]}, vcc
    v_cndmask_b32 v{QE[1]}, 0, v{QE[1]}, vcc
    ''')
    vmx = [vt+4, vt+5]
    a(f'''
    s_cmp_eq_u32 s{s_mode}, 0
    s_cselect_b32 s{s_n}, 1, 64
    s_mov_b32 s{s_c}, 0
    v_mov_b32 v{vmx[0]}, 0xff800000
    v_mov_b32 v{vmx[1]}, 0xff800000
    {L}_mx:
    s_lshr_b32 s{s_t0}, s{s_c}, 3
    s_mul_i32 s{s_t0}, s{s_t0}, {CHUNK}
    s_and_b32 s{s_t1}, s{s_c}, 7
    s_lshl_b32 s{s_t1}, s{s_t1}, 10
    s_add_u32 s{s_t1}, s{s_t1}, s{s_t0}
    v_add_u32 v{vt}, s{s_t1}, v{vlin}
    ds_read_b128 {vr(KM[0],4)}, v{vt}
    s_and_b32 s{s_t1}, s{s_c}, 7
    s_lshl_b32 s{s_t1}, s{s_t1}, 7
    s_add_u32 s{s_t1}, s{s_t1}, s{s_t0}
    v_lshl_add_u32 v{vt}, v{v_t}, 2, s{s_t1}
    ds_read_b32 v{KE[0]}, v{vt} offset:8192
    s_waitcnt lgkmcnt(0)
    ''')
    for q in range(2):
        a(f'v_mfma_f32_32x32x16_bf16 {vr(S[q],16)}, {vr(KM[0],4)}, {vr(QM[q],4)}, 0')
        a(f'v_mfma_f32_32x32x8_bf16 {vr(S[q],16)}, {vr(KE[0],2)}, {vr(QE[q],2)}, {vr(S[q],16)}')
    for q in range(2):
        for k in range(8):
            a(f'v_max3_f32 v{vmx[q]}, v{S[q]+2*k}, v{S[q]+2*k+1}, v{vmx[q]}')
    a(f'''
    s_add_u32 s{s_c}, s{s_c}, 1
    s_cmp_lt_u32 s{s_c}, s{s_n}
    s_cbranch_scc1 {L}_mx
    ''')
    a(f'v_cmp_eq_u32 vcc, 0, v{v_h}')
    for q in range(2):
        a(f'''
        v_mov_b32 v{vt}, v{vmx[q]}
        v_permlane32_swap_b32 v{vmx[q]}, v{vt}
        v_max_f32 v{vt}, v{vmx[q]}, v{vt}
        v_xor_b32 v{vt}, 0x80000000, v{vt}
        v_and_b32 v{vt+1}, 0xffff0000, v{vt}
        v_sub_f32 v{vt}, v{vt}, v{vt+1}
        v_and_b32 v{vt+2}, 0xffff0000, v{vt}
        v_sub_f32 v{vt}, v{vt}, v{vt+2}
        v_lshrrev_b32 v{vt+1}, 16, v{vt+1}
        v_or_b32 v{vt+1}, v{vt+1}, v{vt+2}
        v_lshrrev_b32 v{vt}, 16, v{vt}
        v_cndmask_b32 v{QE[q]+1}, v{vt}, v{vt+1}, vcc
        ''')
    a(f'''
    s_lshl_b32 s{s_t0}, s{s_kg}, 12
    v_add_u32 v{vKa}, s{s_t0}, v{vlin}
    s_lshl_b32 s{s_t0}, s{s_kg}, 9
    s_add_u32 s{s_t0}, s{s_t0}, 8192
    v_lshl_add_u32 v{vKe}, v{v_t}, 2, s{s_t0}
    ''')

    def koff(i):
        return (i // 4) * CHUNK + (i % 4) * 1024, (i // 4) * CHUNK + (i % 4) * 128

    def read_k(i, p):
        o1, o2 = koff(i)
        a(f'ds_read_b128 {vr(KM[p],4)}, v{vKa} offset:{o1}')
        a(f'ds_read_b32 v{KE[p]}, v{vKe} offset:{o2}')

    def read_v(i, p):
        base = (i // 4) * CHUNK + (i % 4) * 1280
        for m in range(2):
            for part in range(2):
                a(f'ds_read_b64_tr_b16 {vr(VF[p]+4*m+2*part,2)}, v{vVa} offset:{base + m*640 + part*320}')

    read_k(0, 0)
    read_k(1, 1)
    read_v(0, 0)
    a('s_waitcnt lgkmcnt(6)')
    a(f'v_mfma_f32_32x32x16_bf16 {vr(S[0],16)}, {vr(KM[0],4)}, {vr(QM[0],4)}, 0')
    a(f'v_mfma_f32_32x32x8_bf16 {vr(S[0],16)}, {vr(KE[0],2)}, {vr(QE[0],2)}, {vr(S[0],16)}')
    a(f's_mov_b32 s{s_c}, 0')
    a('s_nop 7')
    a('s_nop 3')
    a.label(f'{L}_loop')

    def gap(X, g):
        s = S[X]
        for e in range(4):
            a(f'v_exp_f32 v{s+4*g+e}, v{s+4*g+e}')
        a(f'v_cvt_pk_bf16_f32 v{P+2*g}, v{s+4*g}, v{s+4*g+1}')
        a(f'v_cvt_pk_bf16_f32 v{P+2*g+1}, v{s+4*g+2}, v{s+4*g+3}')

    for i in range(4):
        p = i % 2
        if i == 2:
            a(f'''
            s_cmp_gt_u32 s{s_c}, 1
            s_cbranch_scc1 {L}_nb
            s_cmp_eq_u32 s{s_c}, 0
            s_cbranch_scc1 {L}_b1
            s_waitcnt vmcnt(0)
            {L}_b1:
            s_waitcnt vmcnt({18-4})
            s_barrier
            {L}_nb:
            ''')
        a(f'v_mfma_f32_32x32x16_bf16 {vr(S[1],16)}, {vr(KM[p],4)}, {vr(QM[1],4)}, 0')
        gap(0, 0)
        a(f'v_mfma_f32_32x32x8_bf16 {vr(S[1],16)}, {vr(KE[p],2)}, {vr(QE[1],2)}, {vr(S[1],16)}')
        read_k(i+2, p)
        gap(0, 1)
        a(f'v_mfma_f32_32x32x16_bf16 {vr(O[1],16)}, {vr(VF[1-p]+4,4)}, {vr(P+4,4)}, {vr(O[1],16)}')
        read_v(i+1, 1-p)
        gap(0, 2)
        a('s_waitcnt lgkmcnt(6)')
        a(f'v_mfma_f32_32x32x16_bf16 {vr(O[0],16)}, {vr(VF[p],4)}, {vr(P,4)}, {vr(O[0],16)}')
        gap(0, 3)
        a(f'v_mfma_f32_32x32x16_bf16 {vr(S[0],16)}, {vr(KM[1-p],4)}, {vr(QM[0],4)}, 0')
        gap(1, 0)
        a(f'v_mfma_f32_32x32x8_bf16 {vr(S[0],16)}, {vr(KE[1-p],2)}, {vr(QE[0],2)}, {vr(S[0],16)}')
        gap(1, 1)
        a(f'v_mfma_f32_32x32x16_bf16 {vr(O[0],16)}, {vr(VF[p]+4,4)}, {vr(P+4,4)}, {vr(O[0],16)}')
        gap(1, 2)
        a(f'v_mfma_f32_32x32x16_bf16 {vr(O[1],16)}, {vr(VF[p],4)}, {vr(P,4)}, {vr(O[1],16)}')
        gap(1, 3)
    a(f'''
    v_add_u32 v{vKa}, {CHUNK}, v{vKa}
    v_add_u32 v{vKe}, {CHUNK}, v{vKe}
    v_add_u32 v{vVa}, {CHUNK}, v{vVa}
    s_add_u32 s{s_c}, s{s_c}, 1
    s_cmp_lt_u32 s{s_c}, 8
    s_cbranch_scc1 {L}_loop
    v_mfma_f32_32x32x16_bf16 {vr(O[1],16)}, {vr(VF[1]+4,4)}, {vr(P+4,4)}, {vr(O[1],16)}
    s_waitcnt lgkmcnt(0)
    s_barrier
    ''')
    a(f'''
    s_cmp_eq_u32 s{s_kg}, 1
    s_cselect_b64 s[{s_m}:{s_m+1}], -1, 0
    s_lshl_b32 s{s_t0}, s{s_qs}, 1
    s_add_u32 s{s_t0}, s{s_t0}, s{s_kg}
    s_xor_b32 s{s_t1}, s{s_t0}, 1
    s_mul_i32 s{s_t0}, s{s_t0}, 3072
    s_mul_i32 s{s_t1}, s{s_t1}, 3072
    v_add_u32 v{vt}, s{s_t1}, v{vlin}
    v_add_u32 v{vt+1}, s{s_t0}, v{vlin}
    ''')
    SND, KEEP = S[0], S[1]
    for r in range(12):
        a(f'v_cndmask_b32 v{SND+r}, v{O[1]+r}, v{O[0]+r}, s[{s_m}:{s_m+1}]')
        a(f'v_cndmask_b32 v{KEEP+r}, v{O[0]+r}, v{O[1]+r}, s[{s_m}:{s_m+1}]')
    for g in range(3):
        a(f'ds_write_b128 v{vt}, {vr(SND+4*g,4)} offset:{1024*g}')
    a('s_waitcnt lgkmcnt(0)')
    a('s_barrier')
    for g in range(3):
        a(f'ds_read_b128 {vr(SND+4*g,4)}, v{vt+1} offset:{1024*g}')
    a('s_waitcnt lgkmcnt(0)')
    for r in range(11):
        a(f'v_add_f32 v{KEEP+r}, v{KEEP+r}, v{SND+r}')
    a(f'''
    v_cmp_ngt_f32 vcc, {f32(2.0**60)}, v{KEEP+10}
    v_cmp_nlt_f32 s[{s_m}:{s_m+1}], {f32(2.0**-90)}, v{KEEP+10}
    ''' .replace(f'v_cmp_nlt_f32 s[{s_m}:{s_m+1}], {f32(2.0**-90)}, v{KEEP+10}', f'v_mov_b32 v{vt+2}, {f32(2.0**-90)}\n v_cmp_nlt_f32 s[{s_m}:{s_m+1}], v{vt+2}, v{KEEP+10}'))
    a(f'''
    v_rcp_f32 v{vt+3}, v{KEEP+10}
    s_or_b64 vcc, vcc, s[{s_m}:{s_m+1}]
    s_cbranch_vccz {L}_ok
    v_mov_b32 v{vt}, {FLAG}
    v_mov_b32 v{vt+1}, 1
    ds_write_b32 v{vt}, v{vt+1}
    {L}_ok:
    ''')
    for r in range(10):
        a(f'v_mul_f32 v{KEEP+r}, v{vt+3}, v{KEEP+r}')
    for k in range(5):
        a(f'v_cvt_pk_bf16_f32 v{P+k}, v{KEEP+2*k}, v{KEEP+2*k+1}')
    a(f'''
    s_lshl_b32 s{s_t0}, s{s_qb}, 3
    s_lshl_b32 s{s_t1}, s{s_qs}, 1
    s_add_u32 s{s_t0}, s{s_t0}, s{s_t1}
    s_add_u32 s{s_t0}, s{s_t0}, s{s_kg}
    s_mul_i32 s{s_t0}, s{s_t0}, {36*1024}
    s_add_u32 s{s_t0}, s{s_t0}, {WS_O}
    s_lshl_b32 s{s_t1}, s{s_head}, 10
    s_add_u32 s{s_t1}, s{s_t1}, s{s_t0}
    buffer_store_dwordx4 {vr(P,4)}, v{vlin}, s[{SWS}:{SWS+3}], s{s_t1} offen
    s_lshr_b32 s{s_t1}, s{s_head}, 3
    s_add_u32 s{s_t1}, s{s_t1}, 32
    s_lshl_b32 s{s_t1}, s{s_t1}, 10
    s_add_u32 s{s_t0}, s{s_t0}, s{s_t1}
    s_bfe_u32 s{s_t1}, s{s_head}, 0x10002
    s_lshl_b32 s{s_t1}, s{s_t1}, 9
    s_add_u32 s{s_t0}, s{s_t0}, s{s_t1}
    s_and_b32 s{s_t1}, s{s_head}, 3
    s_lshl_b32 s{s_t1}, s{s_t1}, 2
    s_add_u32 s{s_t0}, s{s_t0}, s{s_t1}
    v_lshlrev_b32 v{vt}, 4, v{v_t}
    buffer_store_dword v{P+4}, v{vt}, s[{SWS}:{SWS+3}], s{s_t0} offen
    s_cmp_eq_u32 s{s_mode}, 1
    s_cbranch_scc1 {L}_end
    s_waitcnt lgkmcnt(0)
    s_barrier
    v_mov_b32 v{vt}, {FLAG}
    ds_read_b32 v{vt+1}, v{vt}
    s_waitcnt lgkmcnt(0)
    v_readfirstlane_b32 s{s_t0}, v{vt+1}
    s_cmp_eq_u32 s{s_t0}, 0
    s_cbranch_scc1 {L}_end
    s_mov_b32 s{s_mode}, 1
    s_waitcnt vmcnt(0)
    s_barrier
    s_branch {L}_start
    {L}_end:
    s_endpgm
    ''')
    kernels.append((L, 256, 512, HEADKV + 64, 128, 64))

def k3(a):
    L = 'k3_oproj_kernel'
    begin(a, L)
    SX, SWO, SWR, SWS = 12, 16, 20, 24
    s_tb, s_cb, s_w, s_tt, s_kh, s_t0, s_t1, s_g, s_rb, s_gt = 28, 29, 30, 31, 32, 33, 34, 35, 36, 37
    s_m = 38
    v_l, v_t, v_h, vlin = 1, 2, 3, 4
    vt = 5
    vDm = 16
    vDe = 19
    vWa = 22
    vdo = 23
    XR = 24
    WR = 36
    WF = [48, 60]
    ACC = 72
    OF = 120
    EX = 110592
    a(f'''
    s_cmp_ge_u32 s2, 192
    s_cbranch_scc1 {L}_end
    s_load_dwordx2 s[4:5], s[0:1], 0
    s_load_dwordx2 s[6:7], s[0:1], 16
    s_load_dwordx2 s[8:9], s[0:1], 32
    s_load_dwordx2 s[10:11], s[0:1], 80
    s_and_b32 s{s_t0}, s2, 7
    s_lshr_b32 s{s_t1}, s2, 3
    s_mul_i32 s{s_g}, s{s_t1}, 43
    s_lshr_b32 s{s_g}, s{s_g}, 8
    s_mul_i32 s{s_cb}, s{s_g}, 6
    s_sub_u32 s{s_cb}, s{s_t1}, s{s_cb}
    s_lshl_b32 s{s_tb}, s{s_t0}, 2
    s_add_u32 s{s_tb}, s{s_tb}, s{s_g}
    v_and_b32 v{v_l}, 63, v0
    v_lshrrev_b32 v{vt}, 6, v0
    v_and_b32 v{v_t}, 31, v0
    v_readfirstlane_b32 s{s_w}, v{vt}
    v_bfe_u32 v{v_h}, v0, 5, 1
    v_lshlrev_b32 v{vlin}, 4, v{v_l}
    s_and_b32 s{s_tt}, s{s_w}, 1
    s_lshr_b32 s{s_kh}, s{s_w}, 1
    s_lshl_b32 s{s_gt}, s{s_tb}, 1
    s_add_u32 s{s_gt}, s{s_gt}, s{s_tt}
    ''')
    for i3 in range(3):
        a(f'''
        v_add_u32 v{vt}, {64*i3}, v{v_l}
        v_mul_u32_u24 v{vt+1}, 1366, v{vt}
        v_lshrrev_b32 v{vt+1}, 14, v{vt+1}
        v_mul_u32_u24 v{vt+2}, 12, v{vt+1}
        v_sub_u32 v{vt+2}, v{vt}, v{vt+2}
        v_lshlrev_b32 v{vt+2}, 4, v{vt+2}
        ''')
        a(f'''
        v_mul_u32_u24 v{vt+3}, 1152, v{vt+1}
        v_add_u32 v{vDm+i3}, v{vt+3}, v{vt+2}
        ''')
        a(f'''
        v_lshrrev_b32 v{vt+3}, 1, v{vt+1}
        v_mul_u32_u24 v{vt+4}, 18, v{vt+3}
        v_and_b32 v{vt+5}, 1, v{vt+1}
        v_add_u32 v{vt+4}, v{vt+4}, v{vt+5}
        v_and_b32 v{vt+3}, 1, v{vt+3}
        v_xor_b32 v{vt+3}, 1, v{vt+3}
        v_lshl_add_u32 v{vt+4}, v{vt+3}, 4, v{vt+4}
        v_mul_u32_u24 v{vt+4}, 1152, v{vt+4}
        v_add_u32 v{vDe+i3}, v{vt+4}, v{vt+2}
        ''')
    a('s_waitcnt lgkmcnt(0)')
    srd(a, SX, 4, 2048*1152)
    srd(a, SWO, 6, 576*1152)
    srd(a, SWR, 8, 1152)
    srd(a, SWS, 10, WS_SIZE)
    vm = []

    def stage(st):
        for k in range(3):
            a(f'''
            s_mul_i32 s{s_g}, s{s_tt}, 3
            s_mul_i32 s{s_t0}, s{s_kh}, 18
            s_add_u32 s{s_g}, s{s_g}, s{s_t0}
            s_add_u32 s{s_g}, s{s_g}, {6*st + k}
            s_and_b32 s{s_t0}, s{s_g}, 1
            s_lshl_b32 s{s_t0}, s{s_t0}, 1
            s_mul_i32 s{s_rb}, s{s_g}, 18
            s_add_u32 s{s_rb}, s{s_rb}, s{s_t0}
            ''')
            if st == 2:
                a(f'''
                s_sub_u32 s{s_t0}, s{s_g}, 32
                s_mul_i32 s{s_t0}, s{s_t0}, 144
                s_cmp_ge_u32 s{s_g}, 32
                s_cselect_b32 s{s_rb}, s{s_t0}, s{s_rb}
                s_cselect_b64 s[{s_m}:{s_m+1}], -1, 0
                ''')
            a(f'''
            s_mul_i32 s{s_rb}, s{s_rb}, 1152
            s_mul_i32 s{s_t0}, s{s_cb}, 192
            s_add_u32 s{s_rb}, s{s_rb}, s{s_t0}
            s_mul_i32 s{s_g}, s{s_g}, 3072
            ''')
            for i3 in range(3):
                src = vDm + i3
                if st == 2:
                    a(f'v_cndmask_b32 v{vdo}, v{vDm+i3}, v{vDe+i3}, s[{s_m}:{s_m+1}]')
                    src = vdo
                a(f'''
                s_add_u32 m0, s{s_g}, {i3*1024}
                s_nop 0
                buffer_load_dwordx4 v{src}, s[{SWO}:{SWO+3}], s{s_rb} offen lds
                ''')
                vm.append(f'W{st}')

    def oloads(i0):
        a(f'''
        s_mul_i32 s{s_t0}, s{s_gt}, 36
        s_mul_i32 s{s_t1}, s{s_kh}, 18
        s_add_u32 s{s_t0}, s{s_t0}, s{s_t1}
        s_add_u32 s{s_t0}, s{s_t0}, {i0}
        s_lshl_b32 s{s_t0}, s{s_t0}, 10
        s_add_u32 s{s_t0}, s{s_t0}, {WS_O}
        s_add_u32 s{s_t1}, s{s_t0}, 3072
        ''')
        for i in range(6):
            sreg = s_t0 if i < 3 else s_t1
            a(f'buffer_load_dwordx4 {vr(OF+4*(i0+i),4)}, v{vlin}, s[{SWS}:{SWS+3}], s{sreg} offen offset:{(i%3)*1024}')
            vm.append(f'O{i0+i}')

    for st in range(3):
        stage(st)
        oloads(6*st)
    a(f'''
    v_mul_u32_u24 v{vt}, 1152, v{v_t}
    v_lshl_add_u32 v{vt}, v{v_h}, 3, v{vt}
    v_lshlrev_b32 v{vt+1}, 3, v{v_h}
    s_mul_i32 s{s_t0}, s{s_cb}, 192
    s_mul_i32 s{s_t1}, s{s_kh}, 96
    s_add_u32 s{s_t0}, s{s_t0}, s{s_t1}
    s_mul_i32 s{s_t1}, s{s_gt}, {32*1152}
    s_add_u32 s{s_t1}, s{s_t1}, s{s_t0}
    ''')
    for j in range(6):
        a(f'buffer_load_dwordx2 {vr(XR+2*j,2)}, v{vt}, s[{SX}:{SX+3}], s{s_t1} offen offset:{16*j}')
        vm.append('X')
    for j in range(6):
        a(f'buffer_load_dwordx2 {vr(WR+2*j,2)}, v{vt+1}, s[{SWR}:{SWR+3}], s{s_t0} offen offset:{16*j}')
        vm.append('X')
    v_hoff = 15
    a(f'v_mov_b32 v{v_hoff}, v{vt}')
    s_hoff = 40
    a(f's_add_u32 s{s_hoff}, s{s_t1}, {WS_H}')

    def wait_for(tag):
        idx = max(i for i, t in enumerate(vm) if t == tag)
        return len(vm) - 1 - idx

    a(f'''
    v_bfe_u32 v{vt}, v{v_l}, 2, 2
    v_lshl_add_u32 v{vt}, v{v_h}, 3, v{vt}
    v_mul_u32_u24 v{vWa}, 192, v{vt}
    v_bfe_u32 v{vt}, v{v_l}, 4, 1
    v_lshl_add_u32 v{vWa}, v{vt}, 5, v{vWa}
    v_and_b32 v{vt}, 3, v{v_l}
    v_lshl_add_u32 v{vWa}, v{vt}, 3, v{vWa}
    s_mul_i32 s{s_t0}, s{s_kh}, {18*3072}
    v_add_u32 v{vWa}, s{s_t0}, v{vWa}
    ''')

    def reads(i, fb):
        for ct in range(3):
            for j in range(2):
                a(f'ds_read_b64_tr_b16 {vr(WF[fb]+4*ct+2*j,2)}, v{vWa} offset:{i*3072 + j*768 + ct*64}')

    a(f's_waitcnt vmcnt({wait_for("W0")})')
    a('s_barrier')
    reads(0, 0)
    for i in range(18):
        fb = i % 2
        if i < 17:
            if (i + 1) % 6 == 0:
                a(f's_waitcnt vmcnt({wait_for("W%d" % ((i+1)//6))})')
                a('s_barrier')
            reads(i+1, 1-fb)
            a(f's_waitcnt vmcnt({wait_for("O%d" % i)}) lgkmcnt(6)')
        else:
            a(f's_waitcnt vmcnt({wait_for("O%d" % i)}) lgkmcnt(0)')
        for ct in range(3):
            acc = ACC + 16*ct
            cc = '0' if i == 0 else vr(acc, 16)
            a(f'v_mfma_f32_32x32x16_bf16 {vr(acc,16)}, {vr(WF[fb]+4*ct,4)}, {vr(OF+4*i,4)}, {cc}')
    SND, KEEP = OF, OF + 24
    a(f'''
    s_cmp_eq_u32 s{s_kh}, 1
    s_cselect_b64 s[{s_m}:{s_m+1}], -1, 0
    s_mul_i32 s{s_t0}, s{s_w}, 6144
    s_xor_b32 s{s_t1}, s{s_w}, 2
    s_mul_i32 s{s_t1}, s{s_t1}, 6144
    v_add_u32 v{vt}, s{s_t0}, v{vlin}
    v_add_u32 v{vt+1}, s{s_t1}, v{vlin}
    v_add_u32 v{vt}, {EX}, v{vt}
    v_add_u32 v{vt+1}, {EX}, v{vt+1}
    ''')
    for r in range(24):
        a(f'v_cndmask_b32 v{SND+r}, v{ACC+24+r}, v{ACC+r}, s[{s_m}:{s_m+1}]')
    for g in range(6):
        a(f'ds_write_b128 v{vt}, {vr(SND+4*g,4)} offset:{1024*g}')
    for r in range(24):
        a(f'v_cndmask_b32 v{KEEP+r}, v{ACC+r}, v{ACC+24+r}, s[{s_m}:{s_m+1}]')
    a('s_waitcnt lgkmcnt(0)')
    a('s_barrier')
    RCV = ACC
    for g in range(6):
        a(f'ds_read_b128 {vr(RCV+4*g,4)}, v{vt+1} offset:{1024*g}')
    v1, v2, v3 = vt+2, vt+3, vt+4
    a(f'''
    v_mov_b32 v{v1}, 0
    v_mov_b32 v{v2}, 0
    v_mov_b32 v{v3}, 0
    s_waitcnt vmcnt(0) lgkmcnt(0)
    ''')
    HP = ACC + 24
    for g in range(6):
        for e in range(4):
            r = 4*g + e
            xr = XR + 2*g + e//2
            a(f'v_add_f32 v{KEEP+r}, v{KEEP+r}, v{RCV+r}')
        for k in range(2):
            a(f'v_cvt_pk_bf16_f32 v{vt+5}, v{KEEP+4*g+2*k}, v{KEEP+4*g+2*k+1}')
            xr = XR + 2*g + k
            a(f'''
            v_lshlrev_b32 v{KEEP+4*g+2*k}, 16, v{vt+5}
            v_and_b32 v{KEEP+4*g+2*k+1}, 0xffff0000, v{vt+5}
            v_lshlrev_b32 v{vt+6}, 16, v{xr}
            v_and_b32 v{vt+7}, 0xffff0000, v{xr}
            v_add_f32 v{KEEP+4*g+2*k}, v{KEEP+4*g+2*k}, v{vt+6}
            v_add_f32 v{KEEP+4*g+2*k+1}, v{KEEP+4*g+2*k+1}, v{vt+7}
            v_cvt_pk_bf16_f32 v{HP+2*g+k}, v{KEEP+4*g+2*k}, v{KEEP+4*g+2*k+1}
            v_lshlrev_b32 v{vt+6}, 16, v{HP+2*g+k}
            v_and_b32 v{vt+7}, 0xffff0000, v{HP+2*g+k}
            v_add_f32 v{v1}, v{v1}, v{vt+6}
            v_add_f32 v{v1}, v{v1}, v{vt+7}
            v_fmac_f32 v{v2}, v{vt+6}, v{vt+6}
            v_fmac_f32 v{v2}, v{vt+7}, v{vt+7}
            v_lshlrev_b32 v{vt+8}, 16, v{WR+2*g+k}
            v_and_b32 v{vt+9}, 0xffff0000, v{WR+2*g+k}
            v_fmac_f32 v{v3}, v{vt+6}, v{vt+8}
            v_fmac_f32 v{v3}, v{vt+7}, v{vt+9}
            ''')
        a(f'buffer_store_dwordx2 {vr(HP+2*g,2)}, v{v_hoff}, s[{SWS}:{SWS+3}], s{s_hoff} offen offset:{16*g}')
    a(f'''
    v_mov_b32 v{vt+5}, v{v3}
    v_permlane32_swap_b32 v{v1}, v{v2}
    v_permlane32_swap_b32 v{v3}, v{vt+5}
    v_add_f32 v{v1}, v{v1}, v{v2}
    v_add_f32 v{v3}, v{v3}, v{vt+5}
    v_lshlrev_b32 v{vt+6}, 13, v{v_h}
    v_lshl_add_u32 v{vt+6}, v{v_t}, 2, v{vt+6}
    s_lshl_b32 s{s_t0}, s{s_gt}, 7
    s_add_u32 s{s_t0}, s{s_t0}, {WS_STAT}
    s_add_u32 s{s_t1}, s{s_t0}, 16384
    buffer_atomic_add_f32 v{v1}, v{vt+6}, s[{SWS}:{SWS+3}], s{s_t0} offen
    s_mov_b64 exec, 0xffffffff
    buffer_atomic_add_f32 v{v3}, v{vt+6}, s[{SWS}:{SWS+3}], s{s_t1} offen
    {L}_end:
    s_endpgm
    ''')
    kernels.append((L, 192, 256, EX + 24576, 192, 64))

NFF = 144
def k4(a):
    L = 'k4_ffn_kernel'
    begin(a, L)
    SG, SU, SD, SWS, SO, SWR = 16, 20, 24, 28, 32, 36
    s_w, s_t0, s_t1, s_fb, s_idx, s_c = 40, 41, 42, 43, 44, 45
    s_m = 46
    v_l, v_t, v_h, vlin = 1, 2, 3, 4
    vt = 6
    a(f'''
    s_cmp_ge_u32 s2, {NFF+128}
    s_cbranch_scc1 {L}_end
    s_load_dwordx8 s[4:11], s[0:1], 32
    s_load_dwordx2 s[12:13], s[0:1], 64
    s_load_dwordx2 s[14:15], s[0:1], 80
    v_and_b32 v{v_l}, 63, v0
    v_lshrrev_b32 v{vt}, 6, v0
    v_and_b32 v{v_t}, 31, v0
    v_readfirstlane_b32 s{s_w}, v{vt}
    v_bfe_u32 v{v_h}, v0, 5, 1
    v_lshlrev_b32 v{vlin}, 4, v{v_l}
    s_waitcnt lgkmcnt(0)
    ''')
    srd(a, SWR, 4, 1152)
    srd(a, SG, 6, 576*9216)
    srd(a, SU, 8, 576*9216)
    srd(a, SD, 10, 4608*1152)
    srd(a, SO, 12, 2048*1152)
    srd(a, SWS, 14, WS_SIZE)
    a(f'''
    s_cmp_ge_u32 s2, {NFF}
    s_cbranch_scc1 {L}_out
    ''')
    LG, LU, LD, LX, LR = 0, 36864, 73728, 110592, 112640
    a(f'''
    s_and_b32 s{s_t0}, s2, 7
    s_mul_i32 s{s_fb}, s{s_t0}, 18
    s_lshr_b32 s{s_t0}, s2, 3
    s_add_u32 s{s_fb}, s{s_fb}, s{s_t0}
    ''')
    ST = 32
    a(f'''
    v_lshlrev_b32 v{vt}, 5, v0
    s_mov_b32 s{s_t0}, {WS_STAT}
    s_mov_b32 s{s_t1}, {WS_STAT+8192}
    s_mov_b32 s{s_c}, {WS_STAT+16384}
    buffer_load_dwordx4 {vr(ST,4)}, v{vt}, s[{SWS}:{SWS+3}], s{s_t0} offen
    buffer_load_dwordx4 {vr(ST+4,4)}, v{vt}, s[{SWS}:{SWS+3}], s{s_t0} offen offset:16
    buffer_load_dwordx4 {vr(ST+8,4)}, v{vt}, s[{SWS}:{SWS+3}], s{s_t1} offen
    buffer_load_dwordx4 {vr(ST+12,4)}, v{vt}, s[{SWS}:{SWS+3}], s{s_t1} offen offset:16
    buffer_load_dwordx4 {vr(ST+16,4)}, v{vt}, s[{SWS}:{SWS+3}], s{s_c} offen
    buffer_load_dwordx4 {vr(ST+20,4)}, v{vt}, s[{SWS}:{SWS+3}], s{s_c} offen offset:16
    ''')
    WRR = 56
    a(f'v_lshlrev_b32 v{vt}, 2, v{v_l}')
    for j in range(5):
        a(f'buffer_load_dword v{WRR+j}, v{vt}, s[{SWR}:{SWR+3}], 0 offen offset:{256*j}')
    a(f'''
    v_lshrrev_b32 v{vt}, 2, v{v_l}
    s_lshl_b32 s{s_t0}, s{s_w}, 4
    v_add_u32 v{vt}, s{s_t0}, v{vt}
    v_mul_u32_u24 v{vt}, 9216, v{vt}
    v_and_b32 v{vt+1}, 3, v{v_l}
    v_lshl_add_u32 v{vt}, v{vt+1}, 4, v{vt}
    s_lshl_b32 s{s_t1}, s{s_fb}, 6
    s_lshl_b32 s{s_c}, s{s_w}, 10
    ''')
    for j in range(9):
        for (S_, LB) in ((SG, LG), (SU, LU)):
            a(f'''
            s_add_u32 m0, s{s_c}, {LB + j*4096}
            s_add_u32 s{s_t0}, s{s_t1}, {j*64*9216}
            buffer_load_dwordx4 v{vt}, s[{S_}:{S_+3}], s{s_t0} offen lds
            ''')
    a(f'''
    s_mul_i32 s{s_t1}, s{s_fb}, 36864
    s_add_u32 s{s_t1}, s{s_t1}, s{s_c}
    ''')
    for j in range(9):
        a(f'''
        s_add_u32 m0, s{s_c}, {LD + j*4096}
        s_add_u32 s{s_t0}, s{s_t1}, {j*4096}
        buffer_load_dwordx4 v{vlin}, s[{SD}:{SD+3}], s{s_t0} offen lds
        ''')
    a('s_waitcnt vmcnt(27)')
    v_swr = vt+2
    a(f'''
    v_mov_b32 v{v_swr}, 0
    v_mov_b32 v{vt+3}, 0x3f803f80
    ''')
    for j in range(5):
        a(f'v_dot2c_f32_bf16 v{v_swr}, v{WRR+j}, v{vt+3}')

    def wave_reduce(reg, op, tmp):
        for off in (0x041F, 0x081F, 0x101F, 0x201F, 0x401F):
            a(f'''
            ds_swizzle_b32 v{tmp}, v{reg} offset:{off}
            s_waitcnt lgkmcnt(0)
            {op} v{reg}, v{reg}, v{tmp}
            ''')
        a(f'''
        v_mov_b32 v{tmp}, v{reg}
        v_permlane32_swap_b32 v{reg}, v{tmp}
        {op} v{reg}, v{reg}, v{tmp}
        ''')
    wave_reduce(v_swr, 'v_add_f32', vt+3)
    v_best, v_bi = vt+4, vt+5
    a(f'''
    v_mov_b32 v{v_best}, 0xff800000
    v_lshlrev_b32 v{v_bi}, 3, v0
    v_lshlrev_b32 v{vt+10}, 3, v0
    ''')
    for e in range(8):
        ln_scalars(a, ST+e, ST+8+e, vt+6, vt+7, vt+8)
        a(f'''
        v_fma_f32 v{vt+8}, -v{vt+6}, v{v_swr}, v{ST+16+e}
        v_mul_f32 v{vt+8}, v{vt+8}, v{vt+7}
        v_cmp_gt_f32 vcc, v{vt+8}, v{v_best}
        v_add_u32 v{vt+9}, {e}, v{vt+10}
        v_cndmask_b32 v{v_best}, v{v_best}, v{vt+8}, vcc
        v_cndmask_b32 v{v_bi}, v{v_bi}, v{vt+9}, vcc
        ''')
    a(f'v_mov_b32 v{vt+6}, v{v_best}')
    wave_reduce(vt+6, 'v_max_f32', vt+7)
    a(f'''
    v_cmp_eq_f32 vcc, v{vt+6}, v{v_best}
    v_mov_b32 v{vt+7}, 0x7fffffff
    v_cndmask_b32 v{vt+8}, v{vt+7}, v{v_bi}, vcc
    ''')
    wave_reduce(vt+8, 'v_min_u32', vt+7)
    a(f'''
    s_lshl_b32 s{s_t0}, s{s_w}, 3
    s_add_u32 s{s_t0}, s{s_t0}, {LR}
    v_mov_b32 v{vt+9}, s{s_t0}
    v_mov_b32 v{vt+7}, v{vt+8}
    ds_write_b64 v{vt+9}, v[{vt+6}:{vt+7}]
    s_waitcnt lgkmcnt(0)
    s_barrier
    v_mov_b32 v{vt+9}, {LR}
    ds_read_b128 v[200:203], v{vt+9}
    ds_read_b128 v[204:207], v{vt+9} offset:16
    s_waitcnt lgkmcnt(0)
    ''')
    a(f'''
    v_cmp_gt_f32 vcc, v202, v200
    v_cndmask_b32 v200, v200, v202, vcc
    v_cndmask_b32 v201, v201, v203, vcc
    v_cmp_gt_f32 vcc, v204, v200
    v_cndmask_b32 v200, v200, v204, vcc
    v_cndmask_b32 v201, v201, v205, vcc
    v_cmp_gt_f32 vcc, v206, v200
    v_cndmask_b32 v200, v200, v206, vcc
    v_cndmask_b32 v201, v201, v207, vcc
    v_min_u32 v201, 2047, v201
    v_readfirstlane_b32 s{s_idx}, v201
    ''')
    a(f'''
    s_mul_i32 s{s_t0}, s{s_idx}, 1152
    s_add_u32 s{s_t0}, s{s_t0}, {WS_H}
    s_lshl_b32 s{s_t1}, s{s_idx}, 2
    s_add_u32 s{s_t1}, s{s_t1}, {WS_STAT}
    s_add_u32 s{s_c}, s{s_t1}, 8192
    v_min_u32 v{vt}, 143, v0
    v_lshlrev_b32 v{vt}, 3, v{vt}
    v_mov_b32 v{vt+1}, 0
    buffer_load_dwordx2 v[202:203], v{vt}, s[{SWS}:{SWS+3}], s{s_t0} offen
    buffer_load_dword v204, v{vt+1}, s[{SWS}:{SWS+3}], s{s_t1} offen
    buffer_load_dword v205, v{vt+1}, s[{SWS}:{SWS+3}], s{s_c} offen
    s_waitcnt vmcnt(0)
    ''')
    ln_scalars(a, 204, 205, 206, 207, 208)
    for k in range(2):
        a(f'''
        v_lshlrev_b32 v209, 16, v{202+k}
        v_and_b32 v210, 0xffff0000, v{202+k}
        v_sub_f32 v209, v209, v206
        v_sub_f32 v210, v210, v206
        v_cvt_pk_bf16_f32 v211, v209, v210
        v_lshlrev_b32 v209, 16, v211
        v_and_b32 v210, 0xffff0000, v211
        v_mul_f32 v209, v209, v207
        v_mul_f32 v210, v210, v207
        v_cvt_pk_bf16_f32 v{212+k}, v209, v210
        ''')
    a(f'''
    v_add_u32 v{vt}, {LX}, v{vt}
    ds_write_b64 v{vt}, v[212:213]
    ''')
    a(f'''
    s_cmp_lg_u32 s2, 0
    s_cbranch_scc1 {L}_nosel
    v_mov_b32 v214, v201
    v_mov_b32 v215, v206
    v_mov_b32 v216, v207
    v_mov_b32 v217, v200
    s_mov_b32 s{s_t0}, {WS_SEL}
    s_mov_b64 exec, 1
    buffer_store_dwordx4 v[214:217], v{vt+1}, s[{SWS}:{SWS+3}], s{s_t0} offen
    s_mov_b64 exec, -1
    {L}_nosel:
    s_waitcnt lgkmcnt(0)
    s_barrier
    ''')
    vA, vB = vt, vt+1
    XFR = 32
    BFR = 40
    AC = 48
    a(f'''
    s_lshr_b32 s{s_t0}, s{s_w}, 1
    s_mul_i32 s{s_t1}, s{s_t0}, {18*32}
    s_add_u32 s{s_t1}, s{s_t1}, {LX}
    v_lshl_add_u32 v{vA}, v{v_h}, 4, s{s_t1}
    s_mul_i32 s{s_t0}, s{s_t0}, {18*1024}
    s_and_b32 s{s_t1}, s{s_w}, 1
    s_mul_i32 s{s_t1}, s{s_t1}, {LU}
    s_add_u32 s{s_t0}, s{s_t0}, s{s_t1}
    v_bfe_u32 v{vt+2}, v{v_l}, 2, 2
    v_lshl_add_u32 v{vt+2}, v{v_h}, 3, v{vt+2}
    v_lshlrev_b32 v{vB}, 6, v{vt+2}
    v_bfe_u32 v{vt+3}, v{v_l}, 4, 1
    v_lshl_add_u32 v{vB}, v{vt+3}, 5, v{vB}
    v_and_b32 v{vt+4}, 3, v{v_l}
    v_lshl_add_u32 v{vB}, v{vt+4}, 3, v{vB}
    v_add_u32 v{vB}, s{s_t0}, v{vB}
    ''')

    def rd(i, fb):
        a(f'ds_read_b128 {vr(XFR+4*fb,4)}, v{vA} offset:{32*i}')
        a(f'ds_read_b64_tr_b16 {vr(BFR+4*fb,2)}, v{vB} offset:{1024*i}')
        a(f'ds_read_b64_tr_b16 {vr(BFR+4*fb+2,2)}, v{vB} offset:{1024*i+256}')
    rd(0, 0)
    for i in range(18):
        fb = i % 2
        if i < 17:
            rd(i+1, 1-fb)
            a('s_waitcnt lgkmcnt(3)')
        else:
            a('s_waitcnt lgkmcnt(0)')
        cc = '0' if i == 0 else vr(AC, 16)
        a(f'v_mfma_f32_32x32x16_bf16 {vr(AC,16)}, {vr(XFR+4*fb,4)}, {vr(BFR+4*fb,4)}, {cc}')
    a(f'''
    s_lshl_b32 s{s_t0}, s{s_w}, 7
    s_add_u32 s{s_t0}, s{s_t0}, {LR+64}
    v_lshl_add_u32 v{vt+5}, v{v_t}, 2, s{s_t0}
    ds_write_b32 v{vt+5}, v{AC}
    s_waitcnt lgkmcnt(0)
    s_barrier
    v_lshlrev_b32 v{vt+5}, 2, v{v_t}
    v_add_u32 v{vt+5}, {LR+64}, v{vt+5}
    ds_read_b32 v200, v{vt+5}
    ds_read_b32 v201, v{vt+5} offset:128
    ds_read_b32 v202, v{vt+5} offset:256
    ds_read_b32 v203, v{vt+5} offset:384
    s_waitcnt lgkmcnt(0)
    v_add_f32 v200, v200, v202
    v_add_f32 v201, v201, v203
    ''')
    bf16_round(a, 200, 200)
    bf16_round(a, 201, 201)
    a(f'''
    v_mul_f32 v202, {f32(-math.log2(math.e))}, v200
    v_exp_f32 v202, v202
    v_add_f32 v202, 1.0, v202
    v_rcp_f32 v202, v202
    v_mul_f32 v202, v200, v202
    ''')
    bf16_round(a, 202, 202)
    a(f'''
    v_mul_f32 v202, v202, v201
    v_cvt_pk_bf16_f32 v202, v202, v202
    v_lshlrev_b32 v{vt+5}, 1, v{v_t}
    s_lshl_b32 s{s_t0}, s{s_w}, 6
    s_add_u32 s{s_t0}, s{s_t0}, {LR+1024}
    v_add_u32 v{vt+5}, s{s_t0}, v{vt+5}
    ds_write_b16 v{vt+5}, v202
    v_lshl_add_u32 v{vA}, v{v_h}, 4, s{s_t0}
    s_waitcnt lgkmcnt(0)
    ds_read_b128 {vr(XFR,4)}, v{vA}
    ds_read_b128 {vr(XFR+4,4)}, v{vA} offset:32
    ''')
    a(f'''
    v_mul_u32_u24 v{vB}, 1152, v{vt+2}
    v_lshl_add_u32 v{vB}, v{vt+3}, 5, v{vB}
    v_lshl_add_u32 v{vB}, v{vt+4}, 3, v{vB}
    s_lshl_b32 s{s_t0}, s{s_w}, 6
    s_add_u32 s{s_t0}, s{s_t0}, {LD}
    v_add_u32 v{vB}, s{s_t0}, v{vB}
    s_mul_i32 s{s_t1}, s{s_fb}, 2304
    s_add_u32 s{s_t1}, s{s_t1}, {WS_Y}
    s_lshl_b32 s{s_t0}, s{s_w}, 7
    s_add_u32 s{s_t1}, s{s_t1}, s{s_t0}
    v_lshlrev_b32 v{vt+5}, 2, v{v_t}
    ''')
    DB = 64
    DA = 104
    for j in range(5):
        for s in range(2):
            for jj in range(2):
                a(f'ds_read_b64_tr_b16 {vr(DB+8*j+4*s+2*jj,2)}, v{vB} offset:{(16*s+4*jj)*1152 + j*256}')
    a('s_waitcnt lgkmcnt(0)')
    for j in range(5):
        a(f'v_mfma_f32_32x32x16_bf16 {vr(DA+16*j,16)}, {vr(XFR,4)}, {vr(DB+8*j,4)}, 0')
        a(f'v_mfma_f32_32x32x16_bf16 {vr(DA+16*j,16)}, {vr(XFR+4,4)}, {vr(DB+8*j+4,4)}, {vr(DA+16*j,16)}')
    a('s_mov_b64 exec, 0xffffffff')
    for j in range(4):
        a(f'buffer_store_dword v{DA+16*j}, v{vt+5}, s[{SWS}:{SWS+3}], s{s_t1} offen offset:{512*j}')
    a(f'''
    s_cmp_gt_u32 s{s_w}, 1
    s_cbranch_scc1 {L}_end
    buffer_store_dword v{DA+64}, v{vt+5}, s[{SWS}:{SWS+3}], s{s_t1} offen offset:2048
    s_endpgm
    ''')
    a.label(f'{L}_out')
    HB = 32
    SB = 52
    a(f'''
    s_sub_u32 s{s_t0}, s2, {NFF}
    s_mul_i32 s{s_t1}, s{s_t0}, {16*1152}
    s_add_u32 s{s_c}, s{s_t1}, {WS_H}
    s_lshl_b32 s{s_t0}, s{s_t0}, 6
    s_add_u32 s{s_t0}, s{s_t0}, {WS_STAT}
    s_add_u32 s{s_fb}, s{s_t0}, 8192
    ''')
    for j in range(5):
        a(f'''
        v_add_u32 v{vt}, {256*j}, v0
        v_min_u32 v{vt}, 1151, v{vt}
        v_lshlrev_b32 v{vt+10+j}, 4, v{vt}
        v_mul_u32_u24 v{vt+1}, 911, v{vt}
        v_lshrrev_b32 v{vt+1}, 16, v{vt+1}
        v_lshlrev_b32 v{vt+1}, 2, v{vt+1}
        buffer_load_dwordx4 {vr(HB+4*j,4)}, v{vt+10+j}, s[{SWS}:{SWS+3}], s{s_c} offen
        buffer_load_dword v{SB+2*j}, v{vt+1}, s[{SWS}:{SWS+3}], s{s_t0} offen
        buffer_load_dword v{SB+2*j+1}, v{vt+1}, s[{SWS}:{SWS+3}], s{s_fb} offen
        ''')
    OB = 64
    for j in range(5):
        a(f's_waitcnt vmcnt({3*(4-j) + j})')
        ln_scalars(a, SB+2*j, SB+2*j+1, vt, vt+1, vt+2)
        for k in range(4):
            hh = HB+4*j+k
            a(f'''
            v_lshlrev_b32 v{vt+3}, 16, v{hh}
            v_and_b32 v{vt+4}, 0xffff0000, v{hh}
            v_sub_f32 v{vt+5}, v{vt+3}, v{vt}
            v_sub_f32 v{vt+6}, v{vt+4}, v{vt}
            v_cvt_pk_bf16_f32 v{vt+7}, v{vt+5}, v{vt+6}
            v_lshlrev_b32 v{vt+5}, 16, v{vt+7}
            v_and_b32 v{vt+6}, 0xffff0000, v{vt+7}
            v_mul_f32 v{vt+5}, v{vt+5}, v{vt+1}
            v_mul_f32 v{vt+6}, v{vt+6}, v{vt+1}
            v_cvt_pk_bf16_f32 v{vt+7}, v{vt+5}, v{vt+6}
            v_lshlrev_b32 v{vt+5}, 16, v{vt+7}
            v_and_b32 v{vt+6}, 0xffff0000, v{vt+7}
            v_add_f32 v{vt+5}, v{vt+5}, v{vt+3}
            v_add_f32 v{vt+6}, v{vt+6}, v{vt+4}
            v_cvt_pk_bf16_f32 v{OB+4*j+k}, v{vt+5}, v{vt+6}
            ''')
        a(f'buffer_store_dwordx4 {vr(OB+4*j,4)}, v{vt+10+j}, s[{SO}:{SO+3}], s{s_t1} offen')
    a(f'''
    {L}_end:
    s_endpgm
    ''')
    kernels.append((L, NFF+128, 256, LR + 2048, 232, 64))

def k5(a):
    L = 'k5_final_kernel'
    begin(a, L)
    SWS, SO = 12, 16
    s_t0, s_t1, s_idx = 20, 21, 22
    a(f'''
    s_cmp_ge_u32 s2, 18
    s_cbranch_scc1 {L}_end
    s_load_dwordx2 s[4:5], s[0:1], 64
    s_load_dwordx2 s[6:7], s[0:1], 80
    v_and_b32 v1, 31, v0
    v_lshrrev_b32 v2, 5, v0
    v_mul_u32_u24 v3, {18*2304}, v2
    v_lshl_add_u32 v3, v1, 2, v3
    v_mov_b32 v4, 0
    s_waitcnt lgkmcnt(0)
    ''')
    srd(a, SO, 4, 2048*1152)
    srd(a, SWS, 6, WS_SIZE)
    a(f'''
    s_mov_b32 s{s_t1}, {WS_SEL}
    buffer_load_dwordx4 v[8:11], v4, s[{SWS}:{SWS+3}], s{s_t1} offen
    s_lshl_b32 s{s_t0}, s2, 7
    s_add_u32 s{s_t0}, s{s_t0}, {WS_Y}
    ''')
    for j in range(18):
        a(f'buffer_load_dword v{16+j}, v3, s[{SWS}:{SWS+3}], s{s_t0} offen')
        a(f's_add_u32 s{s_t0}, s{s_t0}, 2304')
    a(f'''
    s_waitcnt vmcnt(18)
    v_min_u32 v8, 2047, v8
    v_mul_u32_u24 v5, 1152, v8
    v_lshl_add_u32 v5, v1, 1, v5
    s_lshl_b32 s{s_t1}, s2, 6
    s_add_u32 s{s_t0}, s{s_t1}, {WS_H}
    buffer_load_ushort v12, v5, s[{SWS}:{SWS+3}], s{s_t0} offen
    s_waitcnt vmcnt(1)
    ''')
    for j in range(1, 18):
        a(f'v_add_f32 v16, v16, v{16+j}')
    a(f'''
    v_lshlrev_b32 v6, 2, v0
    ds_write_b32 v6, v16
    s_waitcnt lgkmcnt(0)
    s_barrier
    v_lshlrev_b32 v6, 2, v1
    ''')
    for j in range(8):
        a(f'ds_read_b32 v{16+j}, v6 offset:{128*j}')
    a('s_waitcnt vmcnt(0) lgkmcnt(0)')
    for j in range(1, 8):
        a(f'v_add_f32 v16, v16, v{16+j}')
    bf16_round(a, 16, 16)
    bf16_round(a, 11, 11)
    a(f'''
    v_mul_f32 v13, {f32(-math.log2(math.e))}, v11
    v_exp_f32 v13, v13
    v_add_f32 v13, 1.0, v13
    v_rcp_f32 v13, v13
    ''')
    bf16_round(a, 13, 13)
    a('v_mul_f32 v16, v16, v13')
    bf16_round(a, 16, 16)
    a(f'''
    v_lshlrev_b32 v12, 16, v12
    v_sub_f32 v14, v12, v9
    ''')
    bf16_round(a, 14, 14)
    a('v_mul_f32 v14, v14, v10')
    bf16_round(a, 14, 14)
    a('v_add_f32 v14, v14, v16')
    bf16_round(a, 14, 14)
    a(f'''
    v_add_f32 v14, v14, v12
    v_cvt_pk_bf16_f32 v14, v14, v14
    v_cmp_gt_u32 vcc, 32, v0
    s_and_saveexec_b64 s[24:25], vcc
    s_cbranch_execz {L}_end
    buffer_store_short v14, v5, s[{SO}:{SO+3}], s{s_t1} offen
    {L}_end:
    s_endpgm
    ''')
    kernels.append((L, 18, 256, 1024, 64, 64))


def build(extra_empty=0):
    a = Asm()
    a.raw('.amdgcn_target "amdgcn-amd-amdhsa--gfx950"')
    a.raw('.text')
    k1(a); k2(a); k3(a); k4(a); k5(a)
    nk = len(kernels)
    if extra_empty:
        begin(a, 'empty_kernel')
        a('s_endpgm')
        kernels.append(('empty_kernel', 256, 256, 0, 8, 16))
    body = a.render()
    hdr = ''
    for (lab, grid, block, lds, vg, sg) in kernels[:nk]:
        hdr += f'; @launch kernel={lab} grid=({grid},1,1) block=({block},1,1) lds={lds}\n'
    for i in range(extra_empty):
        hdr += f'; @launch kernel=empty_kernel grid=(256,1,1) block=(256,1,1) lds=0\n'
    desc = '.section .rodata,"a"\n'
    for (lab, grid, block, lds, vg, sg) in kernels:
        desc += f'''.p2align 6
.amdhsa_kernel {lab}
  .amdhsa_next_free_vgpr {vg}
  .amdhsa_next_free_sgpr {sg}
  .amdhsa_accum_offset {(vg+3)//4*4}
  .amdhsa_group_segment_fixed_size 0
  .amdhsa_kernarg_size 88
  .amdhsa_user_sgpr_count 2
  .amdhsa_user_sgpr_kernarg_segment_ptr 1
  .amdhsa_system_sgpr_workgroup_id_x 1
  .amdhsa_float_denorm_mode_32 3
.end_amdhsa_kernel
'''
    return hdr + body + desc

if __name__ == '__main__':
    out = sys.argv[1] if len(sys.argv) > 1 else f'cdna_kernels/{NAME}.s'
    open(out, 'w').write(build(int(sys.argv[2]) if len(sys.argv) > 2 else 0))
    print('wrote', out)
```

```python
import sys, struct, math
from asmlib import Asm

NAME = 'sequential_preLN__mha_block__moe_arch_mod__prompt'

CHUNK = 19456
HEADKV = 8 * CHUNK
WS_KV = 0
WS_Q = 0x500000
HEADQ = 73728
WS_O = 0x800000
WS_H = 0xB00000
WS_STAT = 0xE00000
WS_SEL = 0xE08000
WS_Y = 0xE10000
WS_SIZE = 0x1100000

def f32(x):
    return '0x%08x' % struct.unpack('<I', struct.pack('<f', x))[0]

CQ = (18 ** -0.5) * math.log2(math.e)

def srd(a, d, lo, nbytes):
    a(f'''
    s_mov_b32 s{d}, s{lo}
    s_mov_b32 s{d+1}, s{lo+1}
    s_mov_b32 s{d+2}, {nbytes}
    s_mov_b32 s{d+3}, 0x00020000
    ''')

def vr(b, n):
    return f'v[{b}:{b+n-1}]' if n > 1 else f'v{b}'

def bf16_round(a, dst, src):
    a(f'v_cvt_pk_bf16_f32 v{dst}, v{src}, v{src}')
    a(f'v_lshlrev_b32 v{dst}, 16, v{dst}')

def ln_scalars(a, vsum, vsq, vm, vrinv, vt):
    a(f'''
    v_mul_f32 v{vm}, {f32(1.0/576)}, v{vsum}
    v_mul_f32 v{vt}, {f32(1.0/576)}, v{vsq}
    v_fma_f32 v{vt}, -v{vm}, v{vm}, v{vt}
    v_max_f32 v{vt}, 0, v{vt}
    ''')
    bf16_round(a, vt, vt)
    a(f'v_add_f32 v{vt}, {f32(1e-5)}, v{vt}')
    bf16_round(a, vt, vt)
    a(f'v_sqrt_f32 v{vt}, v{vt}')
    bf16_round(a, vt, vt)
    a(f'v_rcp_f32 v{vrinv}, v{vt}')
    bf16_round(a, vm, vm)

kernels = []
DIAG = False
WS_DIAG = 0xF00000
ST0 = 80

import os
OPT = dict(kv.split('=') for kv in os.environ.get('OPT', '').split(',') if kv)

def stamp(a, i, cyc=False):
    if DIAG:
        a(f'{"s_memtime" if (DIAG == 2 or cyc) else "s_memrealtime"} s[{ST0+2*i}:{ST0+2*i+1}]')

def stamps_init(a):
    if DIAG:
        for i in range(16):
            a(f's_mov_b32 s{ST0+i}, 0')

def stamps_flush(a, kidx, sws, s_w, vtmp):
    if not DIAG:
        return
    a(f'''
    s_waitcnt lgkmcnt(0)
    s_lshl_b32 s96, s2, 9
    s_lshl_b32 s97, s{s_w}, 6
    s_add_u32 s96, s96, s97
    s_add_u32 s96, s96, {WS_DIAG + kidx*0x28000}
    s_mov_b64 exec, 1
    v_mov_b32 v{vtmp+4}, 0
    ''')
    for j in range(4):
        for k in range(4):
            a(f'v_mov_b32 v{vtmp+k}, s{ST0+4*j+k}')
        a(f'buffer_store_dwordx4 v[{vtmp}:{vtmp+3}], v{vtmp+4}, s[{sws}:{sws+3}], s96 offen offset:{16*j}')
        a('s_nop 1')

def begin(a, label):
    a.raw('.p2align 8')
    a.raw(f'.globl {label}')
    a.raw(f'.type {label},@function')
    a.label(label)

def k1(a):
    L = 'k1_qkv_kernel'
    begin(a, L)
    BUF = 32768
    EXA = 131072
    SX, SW, SWS = 12, 16, 20
    s_cb, s_tb, s_w, s_w1k, s_xb, s_wb, s_t0, s_t1 = 24, 25, 26, 27, 28, 29, 30, 31
    s_wmask = 32
    s_m = 34
    s_c, s_lds, s_xo, s_wo, s_wp, s_cp, s_a, s_b = 36, 37, 38, 39, 40, 41, 42, 43
    s_ub, s_uh, s_us, s_up = 44, 47, 50, 53
    s_tok = 56
    s_off = 66
    s_hs2, s_sc2, s_pt2, s_g, s_ct = 68, 69, 70, 71, 72
    s_eoff = 4
    v_l, v_t, v_h = 1, 2, 3
    vX, vW = 4, 5
    vXa, vXb, vWa = 6, 8, 10
    v_sq, v_ws, v_one = 12, 13, 14
    v_sq2, v_ws2 = 56, 57
    vt = 16
    XF = [24, 32]
    WF = [40, 48]
    ACC = 64
    ADDR = list(range(vXa, vXa+6))
    a(f"""
    s_cmp_ge_u32 s2, 256
    s_cbranch_scc1 {L}_end
    s_load_dwordx4 s[4:7], s[0:1], 0
    s_load_dwordx2 s[8:9], s[0:1], 80
    s_and_b32 s10, s2, 7
    s_lshr_b32 s11, s2, 3
    s_and_b32 s{s_cb}, s10, 3
    s_lshl_b32 s{s_cb}, s{s_cb}, 2
    s_and_b32 s{s_t0}, s11, 3
    s_add_u32 s{s_cb}, s{s_cb}, s{s_t0}
    s_lshr_b32 s{s_tb}, s10, 2
    s_lshl_b32 s{s_tb}, s{s_tb}, 3
    s_lshr_b32 s{s_t0}, s11, 2
    s_add_u32 s{s_tb}, s{s_tb}, s{s_t0}
    v_and_b32 v{v_l}, 63, v0
    v_lshrrev_b32 v{vt}, 6, v0
    v_and_b32 v{v_t}, 31, v0
    v_readfirstlane_b32 s{s_w}, v{vt}
    v_bfe_u32 v{v_h}, v0, 5, 1
    s_lshl_b32 s{s_w1k}, s{s_w}, 10
    s_mul_i32 s{s_xb}, s{s_tb}, {128*1152}
    s_mul_i32 s{s_wb}, s{s_cb}, 216
    s_and_b32 s{s_wp}, s{s_w}, 1
    s_bfe_u32 s{s_cp}, s{s_w}, 0x10001
    s_lshr_b32 s{s_g}, s{s_w}, 2
    s_xor_b32 s{s_ct}, s{s_wp}, s{s_g}
    s_lshl_b32 s{s_t0}, s{s_cp}, 1
    s_add_u32 s{s_ct}, s{s_ct}, s{s_t0}
    """)
    a(f"""
    v_lshrrev_b32 v{vt}, 3, v{v_l}
    s_lshl_b32 s{s_t0}, s{s_w}, 3
    v_add_u32 v{vt}, s{s_t0}, v{vt}
    v_mul_u32_u24 v{vX}, 1152, v{vt}
    s_lshl_b32 s{s_t0}, s{s_wp}, 2
    v_lshrrev_b32 v{vt}, 4, v{v_l}
    v_add_u32 v{vt+1}, s{s_t0}, v{vt}
    v_and_b32 v{vt+2}, 7, v{v_l}
    v_xor_b32 v{vt+2}, v{vt+2}, v{vt+1}
    v_lshl_add_u32 v{vX}, v{vt+2}, 4, v{vX}
    s_lshl_b32 s{s_t0}, s{s_w}, 2
    v_add_u32 v{vt+1}, s{s_t0}, v{vt}
    v_mul_u32_u24 v{vW}, 3456, v{vt+1}
    v_and_b32 v{vt+2}, 15, v{v_l}
    v_lshlrev_b32 v{vt+3}, 2, v{vt}
    v_xor_b32 v{vt+2}, v{vt+2}, v{vt+3}
    v_lshl_add_u32 v{vW}, v{vt+2}, 4, v{vW}
    v_cmp_gt_u32 s[{s_wmask}:{s_wmask+1}], 14, v{vt+2}
    s_waitcnt lgkmcnt(0)
    """)
    srd(a, SX, 4, 2048*1152)
    srd(a, SW, 6, 576*3456)
    srd(a, SWS, 8, WS_SIZE)
    stamps_init(a); stamp(a, 0)

    def dma(j):
        a(f"""
        s_mov_b64 exec, s[{s_wmask}:{s_wmask+1}]
        s_add_u32 m0, s{s_lds}, {16384 + j*8192}
        s_add_u32 s{s_t0}, s{s_wo}, {32*j*3456}
        buffer_load_dwordx4 v{vW}, s[{SW}:{SW+3}], s{s_t0} offen lds
        s_mov_b64 exec, -1
        s_add_u32 m0, s{s_lds}, {j*8192}
        s_add_u32 s{s_t0}, s{s_xo}, {j*64*1152}
        buffer_load_dwordx4 v{vX}, s[{SX}:{SX+3}], s{s_t0} offen lds
        """)

    a(f"""
    s_mov_b32 s{s_lds}, s{s_w1k}
    s_mov_b32 s{s_xo}, s{s_xb}
    s_mov_b32 s{s_wo}, s{s_wb}
    s_mov_b32 s{s_c}, 0
    {L}_pro:
    """)
    dma(0); dma(1)
    if not OPT.get('nopf1'):
        a(f"""
        s_cmp_lg_u32 s{s_c}, 0
        s_cbranch_scc1 {L}_nopf
        s_lshr_b32 s{s_t0}, s10, 2
        s_mul_i32 s{s_t0}, s{s_t0}, {1024*1152}
        s_mul_i32 s{s_t1}, s11, {576*64}
        s_add_u32 s{s_t0}, s{s_t0}, s{s_t1}
        v_lshlrev_b32 v{vt}, 6, v0
        buffer_load_dword v{vt+7}, v{vt}, s[{SX}:{SX+3}], s{s_t0} offen
        s_cmp_lg_u32 s{s_w}, 0
        s_cbranch_scc1 {L}_pfw
        s_add_u32 s{s_t0}, s{s_t0}, {512*64}
        buffer_load_dword v{vt+7}, v{vt}, s[{SX}:{SX+3}], s{s_t0} offen
        s_branch {L}_nopf
        {L}_pfw:
        v_subrev_u32 v{vt}, 64, v0
        v_min_u32 v{vt}, 287, v{vt}
        v_lshrrev_b32 v{vt+1}, 4, v{vt}
        v_and_b32 v{vt}, 15, v{vt}
        v_mul_u32_u24 v{vt+1}, 3456, v{vt+1}
        v_lshl_add_u32 v{vt}, v{vt}, 6, v{vt+1}
        s_and_b32 s{s_t0}, s10, 3
        s_mul_i32 s{s_t0}, s{s_t0}, 864
        s_and_b32 s{s_t0}, s{s_t0}, 0xffffffc0
        s_mul_i32 s{s_t1}, s11, {18*3456}
        s_add_u32 s{s_t0}, s{s_t0}, s{s_t1}
        buffer_load_dword v{vt+7}, v{vt}, s[{SW}:{SW+3}], s{s_t0} offen
        {L}_nopf:
        """)
    a(f"""
    s_add_u32 s{s_lds}, s{s_lds}, {BUF}
    s_add_u32 s{s_xo}, s{s_xo}, 128
    s_add_u32 s{s_wo}, s{s_wo}, {64*3456}
    s_add_u32 s{s_c}, s{s_c}, 1
    s_cmp_lt_u32 s{s_c}, 3
    s_cbranch_scc1 {L}_pro
    """)
    a(f"""
    v_and_b32 v{vt}, 3, v{v_l}
    v_lshlrev_b32 v{vt}, 2, v{vt}
    v_xor_b32 v{vt}, 14, v{vt}
    v_lshlrev_b32 v{vt}, 4, v{vt}
    v_lshl_add_u32 v{vt}, v{v_l}, 8, v{vt}
    s_and_b32 s{s_t0}, s{s_w}, 3
    s_lshl_b32 s{s_t0}, s{s_t0}, 15
    v_add_u32 v{vt+1}, s{s_t0}, v{vt}
    v_mov_b32 v{vt+2}, 0x3f80
    v_mov_b32 v{vt+3}, 0
    ds_write_b64 v{vt+1}, v[{vt+2}:{vt+3}] offset:16384
    v_mov_b32 v{v_one}, 0x3f803f80
    v_mov_b32 v{v_sq}, 0
    v_mov_b32 v{v_ws}, 0
    v_mov_b32 v{v_sq2}, 0
    v_mov_b32 v{v_ws2}, 0
    """)
    a(f"""
    s_lshl_b32 s{s_t0}, s{s_wp}, 13
    v_lshlrev_b32 v{vt}, 7, v{v_t}
    v_add_u32 v{vt}, s{s_t0}, v{vt}
    v_bfe_u32 v{vt+1}, v{v_t}, 1, 3
    v_xor_b32 v{vt+1}, v{vt+1}, v{v_h}
    v_lshl_add_u32 v{vt}, v{vt+1}, 4, v{vt}
    s_lshl_b32 s{s_t0}, s{s_cp}, 12
    v_add_u32 v{vt}, s{s_t0}, v{vt}
    s_lshl_b32 s{s_t0}, s{s_g}, 5
    v_xor_b32 v{vXa}, s{s_t0}, v{vt}
    v_xor_b32 v{vXa+1}, 64, v{vXa}
    v_xor_b32 v{vXb}, 0x1000, v{vXa}
    v_xor_b32 v{vXb+1}, 0x1000, v{vXa+1}
    """)
    v_r, v_c4, v_gp = vt+4, vt+5, vt+6
    a(f"""
    v_bfe_u32 v{v_r}, v{v_l}, 2, 2
    v_and_b32 v{v_c4}, 3, v{v_l}
    v_bfe_u32 v{v_gp}, v{v_l}, 4, 1
    v_lshrrev_b32 v{vt+1}, 1, v{v_c4}
    v_lshl_add_u32 v{vt+1}, v{v_gp}, 1, v{vt+1}
    v_mul_u32_u24 v{vt+2}, 72, v{vt+1}
    v_add_u32 v{vt+2}, 32, v{vt+2}
    v_min_u32 v{vt+2}, 224, v{vt+2}
    v_mul_u32_u24 v{vt+3}, 40, v{v_gp}
    v_lshl_add_u32 v{vt+3}, v{v_c4}, 3, v{vt+3}
    s_lshl_b32 s{s_a}, s{s_g}, 12
    s_add_u32 s{s_a}, s{s_a}, 16384
    """)
    for i in range(2):
        a(f"""
        s_xor_b32 s{s_t0}, s{s_ct}, {i}
        s_mul_i32 s{s_t1}, s{s_t0}, 72
        v_add_u32 v{vt}, s{s_t1}, v{vt+3}
        s_cmp_eq_u32 s{s_t0}, 3
        s_cselect_b64 s[{s_m}:{s_m+1}], -1, 0
        v_cndmask_b32 v{vt}, v{vt}, v{vt+2}, s[{s_m}:{s_m+1}]
        v_lshlrev_b32 v{vt+1}, 6, v{v_r}
        v_xor_b32 v{vt}, v{vt}, v{vt+1}
        v_lshl_add_u32 v{vt+1}, v{v_h}, 3, v{v_r}
        v_lshl_add_u32 v{vt}, v{vt+1}, 8, v{vt}
        v_add_u32 v{vWa+i}, s{s_a}, v{vt}
        """)
    for r in range(64):
        a(f'v_mov_b32 v{ACC+r}, 0')
    for g in range(3):
        a(f"""
        s_mul_i32 s{s_t0}, s{s_cb}, 3
        s_add_u32 s{s_t0}, s{s_t0}, {g}
        s_lshr_b32 s{s_up+g}, s{s_t0}, 4
        s_and_b32 s{s_t0}, s{s_t0}, 15
        s_cmp_eq_u32 s{s_up+g}, 0
        s_cselect_b32 s{s_us+g}, {f32(CQ)}, 1.0
        s_mov_b32 s{s_uh+g}, {HEADKV}
        s_cselect_b32 s{s_uh+g}, {HEADQ}, s{s_uh+g}
        s_cselect_b32 s{s_ub+g}, {WS_Q}, {WS_KV}
        s_lshl_b32 s{s_t0}, s{s_t0}, 1
        s_mul_i32 s{s_t0}, s{s_t0}, s{s_uh+g}
        s_add_u32 s{s_ub+g}, s{s_ub+g}, s{s_t0}
        """)
    for x in range(2):
        k = s_tok + 5*x
        a(f"""
        s_xor_b32 s{s_t0}, s{s_cp}, {x}
        s_lshl_b32 s{s_t1}, s{s_wp}, 1
        s_add_u32 s{s_t0}, s{s_t0}, s{s_t1}
        s_lshl_b32 s{s_t1}, s{s_tb}, 2
        s_add_u32 s{s_t0}, s{s_t0}, s{s_t1}
        s_lshl_b32 s{k}, s{s_t0}, 10
        s_lshl_b32 s{k+3}, s{s_t0}, 7
        s_add_u32 s{k+3}, s{k+3}, 65536
        s_lshr_b32 s{s_t1}, s{s_t0}, 3
        s_mul_i32 s{s_t1}, s{s_t1}, {CHUNK}
        s_and_b32 s{s_t0}, s{s_t0}, 7
        s_lshl_b32 s{k+1}, s{s_t0}, 10
        s_add_u32 s{k+1}, s{k+1}, s{s_t1}
        s_mul_i32 s{k+2}, s{s_t0}, 1280
        s_add_u32 s{k+2}, s{k+2}, s{s_t1}
        s_add_u32 s{k+2}, s{k+2}, 9216
        s_lshl_b32 s{k+4}, s{s_t0}, 7
        s_add_u32 s{k+4}, s{k+4}, s{s_t1}
        s_add_u32 s{k+4}, s{k+4}, 8192
        """)
    for g in range(3):
        for x in range(2):
            k = s_tok + 5*x
            d = s_eoff + 2*g + x
            a(f"""
            s_cmp_eq_u32 s{s_up+g}, 0
            s_cselect_b32 s{d}, s{k+3}, s{k+4}
            s_cmp_eq_u32 s{s_up+g}, 2
            s_cselect_b32 s{d}, s{k+2}, s{d}
            s_add_u32 s{d}, s{d}, s{s_ub+g}
            """)
    a(f"""
    s_cmp_eq_u32 s{s_ct}, 1
    s_cselect_b32 s{s_a}, s{s_ub+1}, s{s_ub}
    s_cselect_b32 s{s_hs2}, s{s_uh+1}, s{s_uh}
    s_cselect_b32 s{s_sc2}, s{s_us+1}, s{s_us}
    s_cselect_b32 s{s_pt2}, s{s_up+1}, s{s_up}
    s_cmp_eq_u32 s{s_ct}, 2
    s_cselect_b32 s{s_a}, s{s_ub+2}, s{s_a}
    s_cselect_b32 s{s_hs2}, s{s_uh+2}, s{s_hs2}
    s_cselect_b32 s{s_sc2}, s{s_us+2}, s{s_sc2}
    s_cselect_b32 s{s_pt2}, s{s_up+2}, s{s_pt2}
    """)
    for x in range(2):
        k = s_tok + 5*x
        d = s_off + x
        a(f"""
        s_cmp_eq_u32 s{s_pt2}, 0
        s_cselect_b32 s{d}, s{k}, s{k+1}
        s_cmp_eq_u32 s{s_pt2}, 2
        s_cselect_b32 s{d}, s{k+2}, s{d}
        s_add_u32 s{d}, s{d}, s{s_a}
        """)

    def rd_list(ls, fb):
        r = []
        r.append(f'ds_read_b128 {vr(XF[fb], 4)}, v{vXa+ls}')
        r.append(f'ds_read_b64_tr_b16 {vr(WF[fb], 2)}, v{vWa} offset:{ls*8192}')
        r.append(f'ds_read_b64_tr_b16 {vr(WF[fb]+2, 2)}, v{vWa} offset:{ls*8192 + 1024}')
        r.append(f'ds_read_b128 {vr(XF[fb]+4, 4)}, v{vXb+ls}')
        r.append(f'ds_read_b64_tr_b16 {vr(WF[fb]+4, 2)}, v{vWa+1} offset:{ls*8192}')
        r.append(f'ds_read_b64_tr_b16 {vr(WF[fb]+6, 2)}, v{vWa+1} offset:{ls*8192 + 1024}')
        return r

    def compute(fb, rds, tail):
        k = 0
        for i in range(2):
            for x in range(2):
                acc = ACC + (i*2 + x)*16
                if not OPT.get('x_nomfma'):
                    a(f'v_mfma_f32_32x32x16_bf16 {vr(acc,16)}, {vr(WF[fb]+4*i,4)}, {vr(XF[fb]+4*x,4)}, {vr(acc,16)}')
                if k < 3:
                    for rr in (rds[2*k], rds[2*k+1]):
                        if OPT.get('x_notr') and '_tr_' in rr: continue
                        if OPT.get('x_nob128') and 'b128' in rr: continue
                        a(rr)
                mode = OPT.get('k1stat', 'valu')
                if mode == 'dot':
                    a(f'v_dot2c_f32_bf16 v{v_sq}, v{XF[fb]+k}, v{XF[fb]+k}')
                    a(f'v_dot2c_f32_bf16 v{v_ws}, v{WF[fb]+k}, v{v_one}')
                elif mode == 'valu':
                    a(f"""
                    v_lshlrev_b32 v{vt}, 16, v{XF[fb]+k}
                    v_and_b32 v{vt+1}, 0xffff0000, v{XF[fb]+k}
                    v_lshlrev_b32 v{vt+2}, 16, v{WF[fb]+k}
                    v_and_b32 v{vt+3}, 0xffff0000, v{WF[fb]+k}
                    v_fmac_f32 v{v_sq}, v{vt}, v{vt}
                    v_fmac_f32 v{v_sq2}, v{vt+1}, v{vt+1}
                    v_add_f32 v{v_ws}, v{v_ws}, v{vt+2}
                    v_add_f32 v{v_ws2}, v{v_ws2}, v{vt+3}
                    """)
                if k == 3:
                    tail()
                k += 1

    def adv():
        for r in ADDR:
            a(f'v_add_u32 v{r}, {BUF}, v{r}')
            a(f'v_and_b32 v{r}, 0x1ffff, v{r}')

    stamp(a, 1)
    a('s_waitcnt vmcnt(%d) lgkmcnt(0)' % (8 if OPT.get('nopf1') else 10))
    a('s_barrier')
    stamp(a, 2)
    for r in rd_list(0, 0):
        a(r)
    a(f's_mov_b32 s{s_c}, 0')
    a.label(f'{L}_loop')
    a(f"""
    s_and_b32 s{s_lds}, s{s_lds}, 0x1ffff
    s_cmp_ge_u32 s{s_c}, 6
    s_cselect_b32 s{s_xo}, 0x7f000000, s{s_xo}
    s_waitcnt lgkmcnt(0)
    """)
    nd = OPT.get('x_nodma')
    compute(0, rd_list(1, 1), lambda: (None if nd else dma(0), adv()))
    a('s_waitcnt vmcnt(6) lgkmcnt(0)')
    a('s_barrier')
    compute(1, rd_list(0, 0), lambda: None if nd else dma(1))
    a(f"""
    s_add_u32 s{s_lds}, s{s_lds}, {BUF}
    s_add_u32 s{s_xo}, s{s_xo}, 128
    s_add_u32 s{s_wo}, s{s_wo}, {64*3456}
    s_add_u32 s{s_c}, s{s_c}, 1
    s_cmp_lt_u32 s{s_c}, 9
    s_cbranch_scc1 {L}_loop
    """)
    stamp(a, 3)
    v_lin = 4
    a(f"""
    v_add_f32 v{v_sq}, v{v_sq}, v{v_sq2}
    v_add_f32 v{v_ws}, v{v_ws}, v{v_ws2}
    v_mov_b32 v{vt}, v{v_sq}
    v_mov_b32 v{vt+1}, v{v_ws}
    v_permlane32_swap_b32 v{v_sq}, v{vt}
    v_permlane32_swap_b32 v{v_ws}, v{vt+1}
    v_add_f32 v{v_sq}, v{v_sq}, v{vt}
    v_add_f32 v{v_ws}, v{v_ws}, v{vt+1}
    s_lshl_b32 s{s_a}, s{s_wp}, 1
    s_add_u32 s{s_a}, s{s_a}, s{s_cp}
    s_lshl_b32 s{s_a}, s{s_a}, 7
    s_add_u32 s{s_a}, s{s_a}, {EXA}
    v_lshlrev_b32 v{vt}, 2, v{v_t}
    v_add_u32 v{vt+1}, s{s_a}, v{vt}
    s_lshl_b32 s{s_t0}, s{s_g}, 9
    v_add_u32 v{vt+5}, s{s_t0}, v{vt+1}
    ds_write_b32 v{vt+5}, v{v_sq}
    s_lshl_b32 s{s_b}, s{s_ct}, 7
    s_add_u32 s{s_b}, s{s_b}, {EXA}
    s_add_u32 s{s_t1}, s{s_b}, s{s_t0}
    v_add_u32 v{vt+2}, s{s_t1}, v{vt}
    ds_write_b32 v{vt+2}, v{v_ws} offset:2048
    v_xor_b32 v{vt+2}, 128, v{vt+1}
    v_xor_b32 v{vt+6}, 128, v{vt+5}
    v_lshlrev_b32 v{v_lin}, 4, v{v_l}
    s_cmp_eq_u32 s{s_cp}, 0
    s_cbranch_scc1 {L}_nosx
    s_cmp_eq_u32 s{s_ct}, 3
    s_cselect_b64 s[{s_m}:{s_m+1}], -1, 0
    v_cndmask_b32 v{vt+3}, v{ACC+2*16+12}, v{ACC+0*16+12}, s[{s_m}:{s_m+1}]
    v_cndmask_b32 v{vt+4}, v{ACC+3*16+12}, v{ACC+1*16+12}, s[{s_m}:{s_m+1}]
    ds_write_b32 v{vt+5}, v{vt+3} offset:1024
    ds_write_b32 v{vt+6}, v{vt+4} offset:1024
    {L}_nosx:
    s_lshl_b32 s{s_t0}, s{s_w}, 13
    s_xor_b32 s{s_t1}, s{s_t0}, {4<<13}
    v_add_u32 v{vt+5}, s{s_t0}, v{v_lin}
    v_add_u32 v{vt+6}, s{s_t1}, v{v_lin}
    s_waitcnt vmcnt(0) lgkmcnt(0)
    s_barrier
    """)
    for g in range(8):
        a(f'ds_write_b128 v{vt+5}, {vr(ACC+32+4*g,4)} offset:{1024*g}')
    vM = [24, 26]; vR = [28, 29]; vS = 48
    WS0 = 32
    a(f"""
    ds_read_b32 v{vS}, v{vt+1}
    ds_read_b32 v{vS+1}, v{vt+1} offset:1024
    ds_read_b32 v{vS+2}, v{vt+2}
    ds_read_b32 v{vS+3}, v{vt+2} offset:1024
    ds_read_b32 v{vS+4}, v{vt+1} offset:512
    ds_read_b32 v{vS+5}, v{vt+1} offset:1536
    ds_read_b32 v{vS+6}, v{vt+2} offset:512
    ds_read_b32 v{vS+7}, v{vt+2} offset:1536
    v_lshl_add_u32 v{vt+1}, v{v_h}, 4, s{s_b}
    """)
    WS1 = 128
    for g in range(4):
        a(f'ds_read_b128 {vr(WS0+4*g, 4)}, v{vt+1} offset:{2048+32*g}')
        a(f'ds_read_b128 {vr(WS1+4*g, 4)}, v{vt+1} offset:{2048+512+32*g}')
    v_vrec, v_e4, v_e40, v_off, v_sc = 5, 6, 7, 8, 30
    a(f"""
    v_mul_u32_u24 v{v_vrec}, 40, v{v_t}
    v_lshlrev_b32 v{v_e4}, 2, v{v_t}
    v_add_u32 v{v_e40}, 32, v{v_vrec}
    v_lshl_add_u32 v{v_vrec}, v{v_h}, 4, v{v_vrec}
    v_lshlrev_b32 v{vt}, 2, v0
    v_mov_b32 v{vt+2}, 0
    s_mul_i32 s{s_t0}, s2, 96
    s_add_u32 s{s_t0}, s{s_t0}, {WS_STAT}
    s_cmp_lg_u32 s{s_w}, 0
    s_cbranch_scc1 {L}_nz
    s_mov_b64 exec, 0xffffff
    buffer_store_dword v{vt+2}, v{vt}, s[{SWS}:{SWS+3}], s{s_t0} offen
    s_mov_b64 exec, -1
    {L}_nz:
    s_waitcnt lgkmcnt(8)
    s_barrier
    """)
    RC = ACC + 32
    for g in range(8):
        a(f'ds_read_b128 {vr(RC+4*g,4)}, v{vt+6} offset:{1024*g}')
    for k in range(4):
        a(f'v_add_f32 v{vS+k}, v{vS+k}, v{vS+4+k}')
    for x in range(2):
        ln_scalars(a, vS+2*x+1, vS+2*x, vM[x], vR[x], vt+3)
    a('s_waitcnt lgkmcnt(8)')
    for r in range(0, 16, 2):
        a(f'v_pk_add_f32 {vr(WS0+r,2)}, {vr(WS0+r,2)}, {vr(WS1+r,2)}')
    for x in range(2):
        acc = ACC + x*16
        for r in range(0, 16, 2):
            a(f'v_pk_fma_f32 {vr(acc+r,2)}, {vr(WS0+r,2)}, {vr(vM[x],2)}, {vr(acc+r,2)} op_sel_hi:[1,0,1] neg_lo:[0,1,0] neg_hi:[0,1,0]')
    a('s_waitcnt lgkmcnt(0)')
    for r in range(0, 32, 2):
        a(f'v_pk_add_f32 {vr(ACC+r,2)}, {vr(ACC+r,2)}, {vr(RC+r,2)}')
    stamp(a, 6)
    PK = 32
    a(f"""
    s_cmp_eq_u32 s{s_ct}, 3
    s_cbranch_scc1 {L}_ext
    s_cmp_eq_u32 s{s_pt2}, 2
    s_cselect_b64 s[{s_m}:{s_m+1}], -1, 0
    v_cndmask_b32 v{v_off}, v{v_lin}, v{v_vrec}, s[{s_m}:{s_m+1}]
    """)
    for x in range(2):
        acc = ACC + x*16
        a(f'v_mul_f32 v{v_sc}, s{s_sc2}, v{vR[x]}')
        a(f's_add_u32 s{s_a}, s{s_off+x}, s{s_hs2}')
        for r in range(0, 16, 2):
            a(f'v_pk_mul_f32 {vr(acc+r,2)}, {vr(acc+r,2)}, {vr(v_sc,2)} op_sel_hi:[1,0]')
        pk = PK + 8*x
        for k in range(8):
            a(f'v_cvt_pk_bf16_f32 v{pk+k}, v{acc+2*k}, v{acc+2*k+1}')
        a(f'buffer_store_dwordx4 {vr(pk,4)}, v{v_off}, s[{SWS}:{SWS+3}], s{s_off+x} offen')
        a(f'buffer_store_dwordx4 {vr(pk+4,4)}, v{v_off}, s[{SWS}:{SWS+3}], s{s_a} offen')
    a(f's_branch {L}_done')
    a.label(f'{L}_ext')
    a(f'v_cmp_eq_u32 vcc, 1, v{v_h}')
    for g in range(3):
        a(f"""
        s_cmp_eq_u32 s{s_up+g}, 2
        s_cselect_b64 s[{s_m}:{s_m+1}], -1, 0
        v_cndmask_b32 v{v_off}, v{v_e4}, v{v_e40}, s[{s_m}:{s_m+1}]
        v_mul_lo_u32 v{vt}, v{v_h}, s{s_uh+g}
        v_add_u32 v{v_off}, v{v_off}, v{vt}
        """)
        for x in range(2):
            acc = ACC + x*16
            pk = PK + 4*g + 2*x
            a(f"""
            v_mul_f32 v{v_sc}, s{s_us+g}, v{vR[x]}
            v_cndmask_b32 v{vt}, v{acc+4*g}, v{acc+4*g+2}, vcc
            v_cndmask_b32 v{vt+1}, v{acc+4*g+1}, v{acc+4*g+3}, vcc
            v_mul_f32 v{vt}, v{v_sc}, v{vt}
            v_mul_f32 v{vt+1}, v{v_sc}, v{vt+1}
            v_cvt_pk_bf16_f32 v{pk}, v{vt}, v{vt+1}
            v_mov_b32 v{pk+1}, 0x3f80
            """)
        pk = PK + 4*g
        a(f"""
        s_cbranch_scc1 {L}_e{g}v
        buffer_store_dword v{pk}, v{v_off}, s[{SWS}:{SWS+3}], s{s_eoff+2*g} offen
        buffer_store_dword v{pk+2}, v{v_off}, s[{SWS}:{SWS+3}], s{s_eoff+2*g+1} offen
        s_branch {L}_e{g}d
        {L}_e{g}v:
        buffer_store_dwordx2 {vr(pk,2)}, v{v_off}, s[{SWS}:{SWS+3}], s{s_eoff+2*g} offen
        buffer_store_dwordx2 {vr(pk+2,2)}, v{v_off}, s[{SWS}:{SWS+3}], s{s_eoff+2*g+1} offen
        {L}_e{g}d:
        """)
    a.label(f'{L}_done')
    stamp(a, 7)
    stamps_flush(a, 0, SWS, s_w, 16)
    a.label(f'{L}_end')
    a('s_endpgm')
    kernels.append((L, 256, 512, EXA + 4096, 144, 100))

def k2(a):
    L = 'k2_attn_kernel'
    begin(a, L)
    SWS = 12
    s_head, s_qb, s_w, s_t0, s_t1, s_kv, s_mode, s_c, s_qs, s_kg, s_n = 20, 21, 22, 23, 24, 25, 26, 27, 28, 29, 30
    s_m = 32
    FLAG = HEADKV
    v_l, v_t, v_h = 1, 2, 3
    vKa, vKe, vVa, vlin = 4, 5, 6, 7
    vt = 8
    QM = [16, 20]; QE = [24, 26]
    KM = [28, 32]; KE = [36, 38]
    VF = [40, 48]
    P = 56
    S = [64, 80]
    O = [96, 112]
    a(f'''
    s_cmp_ge_u32 s2, 256
    s_cbranch_scc1 {L}_end
    s_load_dwordx2 s[8:9], s[0:1], 80
    s_load_dwordx2 s[4:5], s[0:1], 0
    s_load_dwordx2 s[6:7], s[0:1], 16
    s_load_dwordx4 s[56:59], s[0:1], 40
    s_load_dwordx2 s[60:61], s[0:1], 56
    s_and_b32 s10, s2, 7
    s_lshr_b32 s11, s2, 3
    s_lshl_b32 s{s_head}, s10, 2
    s_lshr_b32 s{s_t0}, s11, 3
    s_add_u32 s{s_head}, s{s_head}, s{s_t0}
    s_and_b32 s{s_qb}, s11, 7
    v_and_b32 v{v_l}, 63, v0
    v_lshrrev_b32 v{vt}, 6, v0
    v_and_b32 v{v_t}, 31, v0
    v_readfirstlane_b32 s{s_w}, v{vt}
    v_bfe_u32 v{v_h}, v0, 5, 1
    v_lshlrev_b32 v{vlin}, 4, v{v_l}
    s_and_b32 s{s_qs}, s{s_w}, 3
    s_lshr_b32 s{s_kg}, s{s_w}, 2
    s_mul_i32 s{s_kv}, s{s_head}, {HEADKV}
    s_add_u32 s{s_kv}, s{s_kv}, {WS_KV}
    s_mov_b32 s{s_mode}, 0
    s_waitcnt lgkmcnt(0)
    ''')
    srd(a, SWS, 8, WS_SIZE)
    SPX, SPO, SPG, SPU, SPD = 36, 40, 44, 48, 52
    srd(a, SPX, 4, 2048*1152)
    srd(a, SPO, 6, 576*1152)
    srd(a, SPG, 56, 576*9216)
    srd(a, SPU, 58, 576*9216)
    srd(a, SPD, 60, 4608*1152)
    stamps_init(a); stamp(a, 0)
    a.label(f'{L}_start')
    a(f'''
    s_cmp_eq_u32 s{s_w}, 8
    s_cbranch_scc1 {L}_loader
    ''')
    a(f'''
    s_lshl_b32 s{s_t0}, s{s_qb}, 3
    s_lshl_b32 s{s_t1}, s{s_qs}, 1
    s_add_u32 s{s_t0}, s{s_t0}, s{s_t1}
    s_mul_i32 s{s_t1}, s{s_head}, {HEADQ}
    s_add_u32 s{s_t1}, s{s_t1}, {WS_Q}
    s_lshl_b32 s{s_c}, s{s_t0}, 10
    s_add_u32 s{s_c}, s{s_c}, s{s_t1}
    buffer_load_dwordx4 {vr(QM[0],4)}, v{vlin}, s[{SWS}:{SWS+3}], s{s_c} offen
    buffer_load_dwordx4 {vr(QM[1],4)}, v{vlin}, s[{SWS}:{SWS+3}], s{s_c} offen offset:1024
    s_lshl_b32 s{s_c}, s{s_t0}, 7
    s_add_u32 s{s_c}, s{s_c}, s{s_t1}
    s_add_u32 s{s_c}, s{s_c}, 65536
    v_lshlrev_b32 v{vt}, 2, v{v_t}
    buffer_load_dword v{QE[0]}, v{vt}, s[{SWS}:{SWS+3}], s{s_c} offen
    buffer_load_dword v{QE[1]}, v{vt}, s[{SWS}:{SWS+3}], s{s_c} offen offset:128
    s_lshl_b32 s{s_t0}, s{s_w}, 10
    s_add_u32 s{s_t1}, s{s_kv}, s{s_t0}
    ''')
    s_dl, s_dg = 62, 63
    a(f'''
    s_mov_b32 s{s_dl}, s{s_t0}
    s_mov_b32 s{s_dg}, s{s_t1}
    ''')

    def kvdma(js):
        for j in js:
            a(f'''
            s_add_u32 m0, s{s_dl}, {j*8192}
            s_add_u32 s{s_t1}, s{s_dg}, {j*8192}
            buffer_load_dwordx4 v{vlin}, s[{SWS}:{SWS+3}], s{s_t1} offen lds
            ''')
    kvdma(range(3))
    a(f'''
    v_mov_b32 v{vt}, {FLAG}
    v_mov_b32 v{vt+1}, 0
    ds_write_b32 v{vt}, v{vt+1}
    v_mov_b32 v{KE[0]+1}, 0x3f803f80
    v_mov_b32 v{KE[1]+1}, 0x3f803f80
    v_mov_b32 v{QE[0]+1}, 0
    v_mov_b32 v{QE[1]+1}, 0
    ''')
    a(f'''
    v_bfe_u32 v{vt}, v{v_l}, 2, 2
    v_lshl_add_u32 v{vt}, v{v_h}, 2, v{vt}
    s_lshl_b32 s{s_t0}, s{s_kg}, 7
    v_add_u32 v{vt}, s{s_t0}, v{vt}
    v_mul_u32_u24 v{vVa}, 40, v{vt}
    v_and_b32 v{vt}, 3, v{v_l}
    v_lshlrev_b32 v{vt}, 3, v{vt}
    v_and_b32 v{vt+1}, 16, v{v_l}
    v_cmp_ne_u32 vcc, 0, v{vt+1}
    v_cndmask_b32 v{vt}, v{vt}, 32, vcc
    v_add3_u32 v{vVa}, v{vVa}, v{vt}, 0
    v_add_u32 v{vVa}, 9216, v{vVa}
    ''')
    if OPT.get('vzero'):
        a(f'''
        v_and_b32 v{vt}, 18, v{v_l}
        v_cmp_eq_u32 vcc, 18, v{vt}
        v_add_u32 v{vt}, 0x100000, v{vVa}
        v_cndmask_b32 v{vVa}, v{vVa}, v{vt}, vcc
        ''')
    for r in range(16):
        a(f'v_mov_b32 v{O[0]+r}, 0')
        a(f'v_mov_b32 v{O[1]+r}, 0')
    for r in range(8):
        a(f'v_mov_b32 v{P+r}, 0')
    for r in range(4):
        a(f'v_mov_b32 v{VF[1]+4+r}, 0')
    stamp(a, 1)
    a(f'''
    s_waitcnt vmcnt(0) lgkmcnt(0)
    s_barrier
    v_cmp_eq_u32 vcc, 0, v{v_h}
    v_cndmask_b32 v{QE[0]}, 0, v{QE[0]}, vcc
    v_cndmask_b32 v{QE[1]}, 0, v{QE[1]}, vcc
    ''')
    stamp(a, 2)
    vmx = [vt+4, vt+5]
    a(f'''
    s_cmp_eq_u32 s{s_mode}, 0
    s_cselect_b32 s{s_n}, 1, 64
    s_mov_b32 s{s_c}, 0
    v_mov_b32 v{vmx[0]}, 0xff800000
    v_mov_b32 v{vmx[1]}, 0xff800000
    {L}_mx:
    s_lshr_b32 s{s_t0}, s{s_c}, 3
    s_mul_i32 s{s_t0}, s{s_t0}, {CHUNK}
    s_and_b32 s{s_t1}, s{s_c}, 7
    s_lshl_b32 s{s_t1}, s{s_t1}, 10
    s_add_u32 s{s_t1}, s{s_t1}, s{s_t0}
    v_add_u32 v{vt}, s{s_t1}, v{vlin}
    ds_read_b128 {vr(KM[0],4)}, v{vt}
    s_and_b32 s{s_t1}, s{s_c}, 7
    s_lshl_b32 s{s_t1}, s{s_t1}, 7
    s_add_u32 s{s_t1}, s{s_t1}, s{s_t0}
    v_lshl_add_u32 v{vt}, v{v_t}, 2, s{s_t1}
    ds_read_b32 v{KE[0]}, v{vt} offset:8192
    s_waitcnt lgkmcnt(0)
    ''')
    for q in range(2):
        a(f'v_mfma_f32_32x32x16_bf16 {vr(S[q],16)}, {vr(KM[0],4)}, {vr(QM[q],4)}, 0')
        a(f'v_mfma_f32_32x32x8_bf16 {vr(S[q],16)}, {vr(KE[0],2)}, {vr(QE[q],2)}, {vr(S[q],16)}')
    for q in range(2):
        for k in range(8):
            a(f'v_max3_f32 v{vmx[q]}, v{S[q]+2*k}, v{S[q]+2*k+1}, v{vmx[q]}')
    a(f'''
    s_add_u32 s{s_c}, s{s_c}, 1
    s_cmp_lt_u32 s{s_c}, s{s_n}
    s_cbranch_scc1 {L}_mx
    ''')
    a(f'v_cmp_eq_u32 vcc, 0, v{v_h}')
    for q in range(2):
        a(f'''
        v_mov_b32 v{vt}, v{vmx[q]}
        v_permlane32_swap_b32 v{vmx[q]}, v{vt}
        v_max_f32 v{vt}, v{vmx[q]}, v{vt}
        v_xor_b32 v{vt}, 0x80000000, v{vt}
        v_and_b32 v{vt+1}, 0xffff0000, v{vt}
        v_sub_f32 v{vt}, v{vt}, v{vt+1}
        v_and_b32 v{vt+2}, 0xffff0000, v{vt}
        v_sub_f32 v{vt}, v{vt}, v{vt+2}
        v_lshrrev_b32 v{vt+1}, 16, v{vt+1}
        v_or_b32 v{vt+1}, v{vt+1}, v{vt+2}
        v_lshrrev_b32 v{vt}, 16, v{vt}
        v_cndmask_b32 v{QE[q]+1}, v{vt}, v{vt+1}, vcc
        ''')
    a(f'''
    s_lshl_b32 s{s_t0}, s{s_kg}, 12
    v_add_u32 v{vKa}, s{s_t0}, v{vlin}
    s_lshl_b32 s{s_t0}, s{s_kg}, 9
    s_add_u32 s{s_t0}, s{s_t0}, 8192
    v_lshl_add_u32 v{vKe}, v{v_t}, 2, s{s_t0}
    ''')

    def koff(i):
        return (i // 4) * CHUNK + (i % 4) * 1024, (i // 4) * CHUNK + (i % 4) * 128

    def read_k(i, p):
        o1, o2 = koff(i)
        a(f'ds_read_b128 {vr(KM[p],4)}, v{vKa} offset:{o1}')
        a(f'ds_read_b32 v{KE[p]}, v{vKe} offset:{o2}')

    def read_v(i, p):
        base = (i // 4) * CHUNK + (i % 4) * 1280
        for m in range(2):
            for part in range(2):
                a(f'ds_read_b64_tr_b16 {vr(VF[p]+4*m+2*part,2)}, v{vVa} offset:{base + m*640 + part*320}')

    read_k(0, 0)
    read_k(1, 1)
    read_v(0, 0)
    a('s_waitcnt lgkmcnt(6)')
    a(f'v_mfma_f32_32x32x16_bf16 {vr(S[0],16)}, {vr(KM[0],4)}, {vr(QM[0],4)}, 0')
    a(f'v_mfma_f32_32x32x8_bf16 {vr(S[0],16)}, {vr(KE[0],2)}, {vr(QE[0],2)}, {vr(S[0],16)}')
    a(f's_mov_b32 s{s_c}, 0')
    stamp(a, 3)
    stamp(a, 4, True)
    a('s_nop 7')
    a('s_nop 3')
    a.label(f'{L}_loop')

    def gap(X, g):
        s = S[X]
        for e in range(4):
            a(f'v_exp_f32 v{s+4*g+e}, v{s+4*g+e}')
        a(f'v_cvt_pk_bf16_f32 v{P+2*g}, v{s+4*g}, v{s+4*g+1}')
        a(f'v_cvt_pk_bf16_f32 v{P+2*g+1}, v{s+4*g+2}, v{s+4*g+3}')

    for i in range(4):
        p = i % 2
        if i == 2:
            a(f'''
            s_cmp_gt_u32 s{s_c}, 3
            s_cbranch_scc1 {L}_nb
            s_barrier
            ''')
            a.label(f'{L}_nb')
        a(f'v_mfma_f32_32x32x16_bf16 {vr(S[1],16)}, {vr(KM[p],4)}, {vr(QM[1],4)}, 0')
        gap(0, 0)
        a(f'v_mfma_f32_32x32x8_bf16 {vr(S[1],16)}, {vr(KE[p],2)}, {vr(QE[1],2)}, {vr(S[1],16)}')
        read_k(i+2, p)
        gap(0, 1)
        a(f'v_mfma_f32_32x32x16_bf16 {vr(O[1],16)}, {vr(VF[1-p]+4,4)}, {vr(P+4,4)}, {vr(O[1],16)}')
        read_v(i+1, 1-p)
        gap(0, 2)
        a('s_waitcnt lgkmcnt(6)')
        a(f'v_mfma_f32_32x32x16_bf16 {vr(O[0],16)}, {vr(VF[p],4)}, {vr(P,4)}, {vr(O[0],16)}')
        gap(0, 3)
        a(f'v_mfma_f32_32x32x16_bf16 {vr(S[0],16)}, {vr(KM[1-p],4)}, {vr(QM[0],4)}, 0')
        gap(1, 0)
        a(f'v_mfma_f32_32x32x8_bf16 {vr(S[0],16)}, {vr(KE[1-p],2)}, {vr(QE[0],2)}, {vr(S[0],16)}')
        gap(1, 1)
        a(f'v_mfma_f32_32x32x16_bf16 {vr(O[0],16)}, {vr(VF[p]+4,4)}, {vr(P+4,4)}, {vr(O[0],16)}')
        gap(1, 2)
        a(f'v_mfma_f32_32x32x16_bf16 {vr(O[1],16)}, {vr(VF[p],4)}, {vr(P,4)}, {vr(O[1],16)}')
        gap(1, 3)
    a(f'''
    v_add_u32 v{vKa}, {CHUNK}, v{vKa}
    v_add_u32 v{vKe}, {CHUNK}, v{vKe}
    v_add_u32 v{vVa}, {CHUNK}, v{vVa}
    s_add_u32 s{s_c}, s{s_c}, 1
    s_cmp_lt_u32 s{s_c}, 8
    s_cbranch_scc1 {L}_loop
    v_mfma_f32_32x32x16_bf16 {vr(O[1],16)}, {vr(VF[1]+4,4)}, {vr(P+4,4)}, {vr(O[1],16)}
    ''')
    a('''
    s_waitcnt lgkmcnt(0)
    s_barrier
    ''')
    stamp(a, 5, True)
    stamp(a, 6)
    a(f'''
    s_cmp_eq_u32 s{s_kg}, 1
    s_cselect_b64 s[{s_m}:{s_m+1}], -1, 0
    s_lshl_b32 s{s_t0}, s{s_qs}, 1
    s_add_u32 s{s_t0}, s{s_t0}, s{s_kg}
    s_xor_b32 s{s_t1}, s{s_t0}, 1
    s_mul_i32 s{s_t0}, s{s_t0}, 3072
    s_mul_i32 s{s_t1}, s{s_t1}, 3072
    v_add_u32 v{vt}, s{s_t1}, v{vlin}
    v_add_u32 v{vt+1}, s{s_t0}, v{vlin}
    ''')
    SND, KEEP = S[0], S[1]
    for r in range(12):
        a(f'v_cndmask_b32 v{SND+r}, v{O[1]+r}, v{O[0]+r}, s[{s_m}:{s_m+1}]')
        a(f'v_cndmask_b32 v{KEEP+r}, v{O[0]+r}, v{O[1]+r}, s[{s_m}:{s_m+1}]')
    for g in range(3):
        a(f'ds_write_b128 v{vt}, {vr(SND+4*g,4)} offset:{1024*g}')
    a('s_waitcnt lgkmcnt(0)')
    a('s_barrier')
    for g in range(3):
        a(f'ds_read_b128 {vr(SND+4*g,4)}, v{vt+1} offset:{1024*g}')
    a('s_waitcnt lgkmcnt(0)')
    for r in range(11):
        a(f'v_add_f32 v{KEEP+r}, v{KEEP+r}, v{SND+r}')
    a(f'''
    v_cmp_ngt_f32 vcc, {f32(2.0**60)}, v{KEEP+10}
    v_cmp_nlt_f32 s[{s_m}:{s_m+1}], {f32(2.0**-90)}, v{KEEP+10}
    ''' .replace(f'v_cmp_nlt_f32 s[{s_m}:{s_m+1}], {f32(2.0**-90)}, v{KEEP+10}', f'v_mov_b32 v{vt+2}, {f32(2.0**-90)}\n v_cmp_nlt_f32 s[{s_m}:{s_m+1}], v{vt+2}, v{KEEP+10}'))
    a(f'''
    v_rcp_f32 v{vt+3}, v{KEEP+10}
    s_or_b64 vcc, vcc, s[{s_m}:{s_m+1}]
    s_cbranch_vccz {L}_ok
    v_mov_b32 v{vt}, {FLAG}
    v_mov_b32 v{vt+1}, 1
    ds_write_b32 v{vt}, v{vt+1}
    {L}_ok:
    ''')
    for r in range(10):
        a(f'v_mul_f32 v{KEEP+r}, v{vt+3}, v{KEEP+r}')
    for k in range(5):
        a(f'v_cvt_pk_bf16_f32 v{P+k}, v{KEEP+2*k}, v{KEEP+2*k+1}')
    a(f'''
    s_lshl_b32 s{s_t0}, s{s_qb}, 3
    s_lshl_b32 s{s_t1}, s{s_qs}, 1
    s_add_u32 s{s_t0}, s{s_t0}, s{s_t1}
    s_add_u32 s{s_t0}, s{s_t0}, s{s_kg}
    s_mul_i32 s{s_t0}, s{s_t0}, {36*1024}
    s_add_u32 s{s_t0}, s{s_t0}, {WS_O}
    s_lshl_b32 s{s_t1}, s{s_head}, 10
    s_add_u32 s{s_t1}, s{s_t1}, s{s_t0}
    buffer_store_dwordx4 {vr(P,4)}, v{vlin}, s[{SWS}:{SWS+3}], s{s_t1} offen
    s_lshr_b32 s{s_t1}, s{s_head}, 3
    s_add_u32 s{s_t1}, s{s_t1}, 32
    s_lshl_b32 s{s_t1}, s{s_t1}, 10
    s_add_u32 s{s_t0}, s{s_t0}, s{s_t1}
    s_bfe_u32 s{s_t1}, s{s_head}, 0x10002
    s_lshl_b32 s{s_t1}, s{s_t1}, 9
    s_add_u32 s{s_t0}, s{s_t0}, s{s_t1}
    s_and_b32 s{s_t1}, s{s_head}, 3
    s_lshl_b32 s{s_t1}, s{s_t1}, 2
    s_add_u32 s{s_t0}, s{s_t0}, s{s_t1}
    v_lshlrev_b32 v{vt}, 4, v{v_t}
    buffer_store_dword v{P+4}, v{vt}, s[{SWS}:{SWS+3}], s{s_t0} offen
    ''')
    stamp(a, 7)
    stamps_flush(a, 1, SWS, s_w, 40)
    a(f'''
    s_mov_b64 exec, -1
    {L}_tail:
    s_cmp_eq_u32 s{s_mode}, 1
    s_cbranch_scc1 {L}_end
    s_waitcnt lgkmcnt(0)
    s_barrier
    v_mov_b32 v{vt}, {FLAG}
    ds_read_b32 v{vt+1}, v{vt}
    s_waitcnt lgkmcnt(0)
    v_readfirstlane_b32 s{s_t0}, v{vt+1}
    s_cmp_eq_u32 s{s_t0}, 0
    s_cbranch_scc1 {L}_end
    s_mov_b32 s{s_mode}, 1
    s_waitcnt vmcnt(0)
    s_barrier
    s_branch {L}_start
    {L}_loader:
    s_mov_b32 s{s_c}, {24*1024}
    ''')

    def ldr(upto, tag):
        a(f'''
        {L}_ld{tag}:
        s_mov_b32 m0, s{s_c}
        s_add_u32 s{s_t1}, s{s_kv}, s{s_c}
        buffer_load_dwordx4 v{vlin}, s[{SWS}:{SWS+3}], s{s_t1} offen lds
        s_add_u32 s{s_c}, s{s_c}, 1024
        s_cmp_lt_u32 s{s_c}, {upto*1024}
        s_cbranch_scc1 {L}_ld{tag}
        ''')
    a(f'''
    s_cmp_eq_u32 s{s_mode}, 0
    s_cbranch_scc1 {L}_lfast
    ''')
    ldr(152, 'x')
    a(f'''
    s_waitcnt vmcnt(0)
    s_barrier
    s_barrier
    s_barrier
    s_barrier
    s_barrier
    s_branch {L}_lend
    {L}_lfast:
    ''')
    ldr(38, 'a')
    a('s_barrier')
    ldr(57, 'b')
    a('s_waitcnt vmcnt(19)')
    a('s_barrier')
    ldr(95, 'c')
    a('s_waitcnt vmcnt(38)')
    a('s_barrier')
    ldr(133, 'd')
    a('s_waitcnt vmcnt(57)')
    a('s_barrier')
    ldr(152, 'e')
    a('s_waitcnt vmcnt(0)')
    a('s_barrier')
    if not OPT.get('nopf2'):
        a(f'''
        v_mov_b32 v{vt+3}, v{v_l}
        s_mov_b32 s{s_c}, 0
        {L}_pfl:
        ''')
        a(f'''
        v_min_u32 v{vt}, 323, v{vt+3}
        v_lshlrev_b32 v{vt+1}, 6, v{vt}
        s_mul_i32 s{s_t0}, s11, {324*64}
        buffer_load_dword v{vt+7}, v{vt+1}, s[{SPO}:{SPO+3}], s{s_t0} offen
        s_mul_i32 s{s_t1}, s10, 663552
        s_add_u32 s{s_t0}, s{s_t0}, s{s_t1}
        buffer_load_dword v{vt+7}, v{vt+1}, s[{SPD}:{SPD+3}], s{s_t0} offen
        v_mul_u32_u24 v{vt+1}, 3641, v{vt}
        v_lshrrev_b32 v{vt+1}, 16, v{vt+1}
        v_mul_u32_u24 v{vt+2}, 18, v{vt+1}
        v_sub_u32 v{vt+2}, v{vt}, v{vt+2}
        v_mul_u32_u24 v{vt+1}, 9216, v{vt+1}
        v_lshl_add_u32 v{vt+1}, v{vt+2}, 6, v{vt+1}
        s_mul_i32 s{s_t0}, s11, {18*9216}
        s_mul_i32 s{s_t1}, s10, 1152
        s_add_u32 s{s_t0}, s{s_t0}, s{s_t1}
        buffer_load_dword v{vt+7}, v{vt+1}, s[{SPG}:{SPG+3}], s{s_t0} offen
        buffer_load_dword v{vt+7}, v{vt+1}, s[{SPU}:{SPU+3}], s{s_t0} offen
        v_min_u32 v{vt}, 143, v{vt+3}
        v_lshlrev_b32 v{vt+1}, 6, v{vt}
        s_mul_i32 s{s_t0}, s11, {144*64}
        s_mul_i32 s{s_t1}, s10, 294912
        s_add_u32 s{s_t0}, s{s_t0}, s{s_t1}
        buffer_load_dword v{vt+7}, v{vt+1}, s[{SPX}:{SPX+3}], s{s_t0} offen
        s_getpc_b64 s[64:65]
        {L}_pc:
        s_add_u32 s64, s64, k3_oproj_kernel-{L}_pc
        s_addc_u32 s65, s65, 0
        v_min_u32 v{vt}, (code_end_marker-k3_oproj_kernel)/64, v{vt+3}
        v_lshlrev_b32 v{vt+1}, 6, v{vt}
        global_load_dword v{vt+7}, v{vt+1}, s[64:65]
        v_add_u32 v{vt+3}, 64, v{vt+3}
        s_add_u32 s{s_c}, s{s_c}, 1
        s_cmp_lt_u32 s{s_c}, 6
        s_cbranch_scc1 {L}_pfl
        ''')
    a(f'''
    {L}_lend:
    s_barrier
    s_barrier
    s_branch {L}_tail
    {L}_end:
    s_endpgm
    ''')
    kernels.append((L, 256, 576, HEADKV + 64, 128, 100))

def k3(a):
    L = 'k3_oproj_kernel'
    begin(a, L)
    SX, SWO, SWR, SWS = 12, 16, 20, 24
    s_tb, s_cb, s_w, s_tt, s_kh, s_t0, s_t1, s_g, s_rb, s_gt = 28, 29, 30, 31, 32, 33, 34, 35, 36, 37
    s_m = 38
    v_l, v_t, v_h, vlin = 1, 2, 3, 4
    vt = 5
    vDm = 16
    vDe = 19
    vWa = 22
    vdo = 23
    XR = 24
    WR = 36
    WF = [48, 60]
    ACC = 72
    OF = 120
    EX = 110592
    a(f'''
    s_cmp_ge_u32 s2, 192
    s_cbranch_scc1 {L}_end
    s_load_dwordx2 s[4:5], s[0:1], 0
    s_load_dwordx2 s[6:7], s[0:1], 16
    s_load_dwordx2 s[8:9], s[0:1], 32
    s_load_dwordx2 s[10:11], s[0:1], 80
    s_and_b32 s{s_t0}, s2, 7
    s_lshr_b32 s{s_t1}, s2, 3
    s_mul_i32 s{s_g}, s{s_t1}, 43
    s_lshr_b32 s{s_g}, s{s_g}, 8
    s_mul_i32 s{s_cb}, s{s_g}, 6
    s_sub_u32 s{s_cb}, s{s_t1}, s{s_cb}
    s_lshl_b32 s{s_tb}, s{s_t0}, 2
    s_add_u32 s{s_tb}, s{s_tb}, s{s_g}
    v_and_b32 v{v_l}, 63, v0
    v_lshrrev_b32 v{vt}, 6, v0
    v_and_b32 v{v_t}, 31, v0
    v_readfirstlane_b32 s{s_w}, v{vt}
    v_bfe_u32 v{v_h}, v0, 5, 1
    v_lshlrev_b32 v{vlin}, 4, v{v_l}
    s_and_b32 s{s_tt}, s{s_w}, 1
    s_lshr_b32 s{s_kh}, s{s_w}, 1
    s_lshl_b32 s{s_gt}, s{s_tb}, 1
    s_add_u32 s{s_gt}, s{s_gt}, s{s_tt}
    ''')
    for i3 in range(3):
        a(f'''
        v_add_u32 v{vt}, {64*i3}, v{v_l}
        v_mul_u32_u24 v{vt+1}, 1366, v{vt}
        v_lshrrev_b32 v{vt+1}, 14, v{vt+1}
        v_mul_u32_u24 v{vt+2}, 12, v{vt+1}
        v_sub_u32 v{vt+2}, v{vt}, v{vt+2}
        v_lshlrev_b32 v{vt+2}, 4, v{vt+2}
        ''')
        a(f'''
        v_mul_u32_u24 v{vt+3}, 1152, v{vt+1}
        v_add_u32 v{vDm+i3}, v{vt+3}, v{vt+2}
        ''')
        a(f'''
        v_lshrrev_b32 v{vt+3}, 1, v{vt+1}
        v_mul_u32_u24 v{vt+4}, 18, v{vt+3}
        v_and_b32 v{vt+5}, 1, v{vt+1}
        v_add_u32 v{vt+4}, v{vt+4}, v{vt+5}
        v_and_b32 v{vt+3}, 1, v{vt+3}
        v_xor_b32 v{vt+3}, 1, v{vt+3}
        v_lshl_add_u32 v{vt+4}, v{vt+3}, 4, v{vt+4}
        v_mul_u32_u24 v{vt+4}, 1152, v{vt+4}
        v_add_u32 v{vDe+i3}, v{vt+4}, v{vt+2}
        ''')
    a('s_waitcnt lgkmcnt(0)')
    srd(a, SX, 4, 2048*1152)
    srd(a, SWO, 6, 576*1152)
    srd(a, SWR, 8, 1152)
    srd(a, SWS, 10, WS_SIZE)
    stamps_init(a); stamp(a, 0)
    vm = []

    def stage(st):
        for k in range(3):
            a(f'''
            s_mul_i32 s{s_g}, s{s_tt}, 3
            s_mul_i32 s{s_t0}, s{s_kh}, 18
            s_add_u32 s{s_g}, s{s_g}, s{s_t0}
            s_add_u32 s{s_g}, s{s_g}, {6*st + k}
            s_and_b32 s{s_t0}, s{s_g}, 1
            s_lshl_b32 s{s_t0}, s{s_t0}, 1
            s_mul_i32 s{s_rb}, s{s_g}, 18
            s_add_u32 s{s_rb}, s{s_rb}, s{s_t0}
            ''')
            if st == 2:
                a(f'''
                s_sub_u32 s{s_t0}, s{s_g}, 32
                s_mul_i32 s{s_t0}, s{s_t0}, 144
                s_cmp_ge_u32 s{s_g}, 32
                s_cselect_b32 s{s_rb}, s{s_t0}, s{s_rb}
                s_cselect_b64 s[{s_m}:{s_m+1}], -1, 0
                ''')
            a(f'''
            s_mul_i32 s{s_rb}, s{s_rb}, 1152
            s_mul_i32 s{s_t0}, s{s_cb}, 192
            s_add_u32 s{s_rb}, s{s_rb}, s{s_t0}
            s_mul_i32 s{s_g}, s{s_g}, 3072
            ''')
            for i3 in range(3):
                src = vDm + i3
                if st == 2:
                    a(f'v_cndmask_b32 v{vdo}, v{vDm+i3}, v{vDe+i3}, s[{s_m}:{s_m+1}]')
                    src = vdo
                a(f'''
                s_add_u32 m0, s{s_g}, {i3*1024}
                s_nop 0
                buffer_load_dwordx4 v{src}, s[{SWO}:{SWO+3}], s{s_rb} offen lds
                ''')
                vm.append(f'W{st}')

    def oloads(i0):
        a(f'''
        s_mul_i32 s{s_t0}, s{s_gt}, 36
        s_mul_i32 s{s_t1}, s{s_kh}, 18
        s_add_u32 s{s_t0}, s{s_t0}, s{s_t1}
        s_add_u32 s{s_t0}, s{s_t0}, {i0}
        s_lshl_b32 s{s_t0}, s{s_t0}, 10
        s_add_u32 s{s_t0}, s{s_t0}, {WS_O}
        s_add_u32 s{s_t1}, s{s_t0}, 3072
        ''')
        for i in range(6):
            sreg = s_t0 if i < 3 else s_t1
            a(f'buffer_load_dwordx4 {vr(OF+4*(i0+i),4)}, v{vlin}, s[{SWS}:{SWS+3}], s{sreg} offen offset:{(i%3)*1024}')
            vm.append(f'O{i0+i}')

    for st in range(3):
        stage(st)
        oloads(6*st)
    a(f'''
    v_mul_u32_u24 v{vt}, 1152, v{v_t}
    v_lshl_add_u32 v{vt}, v{v_h}, 3, v{vt}
    v_lshlrev_b32 v{vt+1}, 3, v{v_h}
    s_mul_i32 s{s_t0}, s{s_cb}, 192
    s_mul_i32 s{s_t1}, s{s_kh}, 96
    s_add_u32 s{s_t0}, s{s_t0}, s{s_t1}
    s_mul_i32 s{s_t1}, s{s_gt}, {32*1152}
    s_add_u32 s{s_t1}, s{s_t1}, s{s_t0}
    ''')
    for j in range(6):
        a(f'buffer_load_dwordx2 {vr(XR+2*j,2)}, v{vt}, s[{SX}:{SX+3}], s{s_t1} offen offset:{16*j}')
        vm.append('X')
    for j in range(6):
        a(f'buffer_load_dwordx2 {vr(WR+2*j,2)}, v{vt+1}, s[{SWR}:{SWR+3}], s{s_t0} offen offset:{16*j}')
        vm.append('X')
    v_hoff = 15
    a(f'v_mov_b32 v{v_hoff}, v{vt}')
    s_hoff = 40
    a(f's_add_u32 s{s_hoff}, s{s_t1}, {WS_H}')

    def wait_for(tag):
        idx = max(i for i, t in enumerate(vm) if t == tag)
        return len(vm) - 1 - idx

    a(f'''
    v_bfe_u32 v{vt}, v{v_l}, 2, 2
    v_lshl_add_u32 v{vt}, v{v_h}, 3, v{vt}
    v_mul_u32_u24 v{vWa}, 192, v{vt}
    v_bfe_u32 v{vt}, v{v_l}, 4, 1
    v_lshl_add_u32 v{vWa}, v{vt}, 5, v{vWa}
    v_and_b32 v{vt}, 3, v{v_l}
    v_lshl_add_u32 v{vWa}, v{vt}, 3, v{vWa}
    s_mul_i32 s{s_t0}, s{s_kh}, {18*3072}
    v_add_u32 v{vWa}, s{s_t0}, v{vWa}
    ''')

    def reads(i, fb):
        for ct in range(3):
            for j in range(2):
                a(f'ds_read_b64_tr_b16 {vr(WF[fb]+4*ct+2*j,2)}, v{vWa} offset:{i*3072 + j*768 + ct*64}')

    stamp(a, 1)
    a(f's_waitcnt vmcnt({wait_for("W0")})')
    a('s_barrier')
    stamp(a, 2)
    reads(0, 0)
    for i in range(18):
        fb = i % 2
        if i < 17:
            if (i + 1) % 6 == 0:
                a(f's_waitcnt vmcnt({wait_for("W%d" % ((i+1)//6))})')
                a('s_barrier')
                stamp(a, 2 + (i+1)//6)
            reads(i+1, 1-fb)
            a(f's_waitcnt vmcnt({wait_for("O%d" % i)}) lgkmcnt(6)')
        else:
            a(f's_waitcnt vmcnt({wait_for("O%d" % i)}) lgkmcnt(0)')
        for ct in range(3):
            acc = ACC + 16*ct
            cc = '0' if i == 0 else vr(acc, 16)
            a(f'v_mfma_f32_32x32x16_bf16 {vr(acc,16)}, {vr(WF[fb]+4*ct,4)}, {vr(OF+4*i,4)}, {cc}')
    stamp(a, 5)
    SND, KEEP = OF, OF + 24
    a(f'''
    s_cmp_eq_u32 s{s_kh}, 1
    s_cselect_b64 s[{s_m}:{s_m+1}], -1, 0
    s_mul_i32 s{s_t0}, s{s_w}, 6144
    s_xor_b32 s{s_t1}, s{s_w}, 2
    s_mul_i32 s{s_t1}, s{s_t1}, 6144
    v_add_u32 v{vt}, s{s_t0}, v{vlin}
    v_add_u32 v{vt+1}, s{s_t1}, v{vlin}
    v_add_u32 v{vt}, {EX}, v{vt}
    v_add_u32 v{vt+1}, {EX}, v{vt+1}
    ''')
    for r in range(24):
        a(f'v_cndmask_b32 v{SND+r}, v{ACC+24+r}, v{ACC+r}, s[{s_m}:{s_m+1}]')
    for g in range(6):
        a(f'ds_write_b128 v{vt}, {vr(SND+4*g,4)} offset:{1024*g}')
    for r in range(24):
        a(f'v_cndmask_b32 v{KEEP+r}, v{ACC+r}, v{ACC+24+r}, s[{s_m}:{s_m+1}]')
    a('s_waitcnt lgkmcnt(0)')
    a('s_barrier')
    RCV = ACC
    for g in range(6):
        a(f'ds_read_b128 {vr(RCV+4*g,4)}, v{vt+1} offset:{1024*g}')
    v1, v2, v3 = vt+2, vt+3, vt+4
    a(f'''
    v_mov_b32 v{v1}, 0
    v_mov_b32 v{v2}, 0
    v_mov_b32 v{v3}, 0
    s_waitcnt vmcnt(0) lgkmcnt(0)
    ''')
    stamp(a, 6)
    HP = ACC + 24
    for g in range(6):
        for e in range(4):
            r = 4*g + e
            xr = XR + 2*g + e//2
            a(f'v_add_f32 v{KEEP+r}, v{KEEP+r}, v{RCV+r}')
        for k in range(2):
            a(f'v_cvt_pk_bf16_f32 v{vt+5}, v{KEEP+4*g+2*k}, v{KEEP+4*g+2*k+1}')
            xr = XR + 2*g + k
            a(f'''
            v_lshlrev_b32 v{KEEP+4*g+2*k}, 16, v{vt+5}
            v_and_b32 v{KEEP+4*g+2*k+1}, 0xffff0000, v{vt+5}
            v_lshlrev_b32 v{vt+6}, 16, v{xr}
            v_and_b32 v{vt+7}, 0xffff0000, v{xr}
            v_add_f32 v{KEEP+4*g+2*k}, v{KEEP+4*g+2*k}, v{vt+6}
            v_add_f32 v{KEEP+4*g+2*k+1}, v{KEEP+4*g+2*k+1}, v{vt+7}
            v_cvt_pk_bf16_f32 v{HP+2*g+k}, v{KEEP+4*g+2*k}, v{KEEP+4*g+2*k+1}
            v_lshlrev_b32 v{vt+6}, 16, v{HP+2*g+k}
            v_and_b32 v{vt+7}, 0xffff0000, v{HP+2*g+k}
            v_add_f32 v{v1}, v{v1}, v{vt+6}
            v_add_f32 v{v1}, v{v1}, v{vt+7}
            v_fmac_f32 v{v2}, v{vt+6}, v{vt+6}
            v_fmac_f32 v{v2}, v{vt+7}, v{vt+7}
            v_lshlrev_b32 v{vt+8}, 16, v{WR+2*g+k}
            v_and_b32 v{vt+9}, 0xffff0000, v{WR+2*g+k}
            v_fmac_f32 v{v3}, v{vt+6}, v{vt+8}
            v_fmac_f32 v{v3}, v{vt+7}, v{vt+9}
            ''')
        a(f'buffer_store_dwordx2 {vr(HP+2*g,2)}, v{v_hoff}, s[{SWS}:{SWS+3}], s{s_hoff} offen offset:{16*g}')
    a(f'''
    v_mov_b32 v{vt+5}, v{v3}
    v_permlane32_swap_b32 v{v1}, v{v2}
    v_permlane32_swap_b32 v{v3}, v{vt+5}
    v_add_f32 v{v1}, v{v1}, v{v2}
    v_add_f32 v{v3}, v{v3}, v{vt+5}
    v_lshlrev_b32 v{vt+6}, 13, v{v_h}
    v_lshl_add_u32 v{vt+6}, v{v_t}, 2, v{vt+6}
    s_lshl_b32 s{s_t0}, s{s_gt}, 7
    s_add_u32 s{s_t0}, s{s_t0}, {WS_STAT}
    s_add_u32 s{s_t1}, s{s_t0}, 16384
    buffer_atomic_add_f32 v{v1}, v{vt+6}, s[{SWS}:{SWS+3}], s{s_t0} offen
    s_mov_b64 exec, 0xffffffff
    buffer_atomic_add_f32 v{v3}, v{vt+6}, s[{SWS}:{SWS+3}], s{s_t1} offen
    ''')
    stamp(a, 7)
    stamps_flush(a, 2, SWS, s_w, 48)
    a(f'''
    {L}_end:
    s_endpgm
    ''')
    kernels.append((L, 192, 256, EX + 24576, 192, 100))

NFF = 144
NOUT = 64
def dpp_reduce(a, op, reg):
    for sh in (1, 2, 4, 8):
        a(f'{op}_dpp v{reg}, v{reg}, v{reg} row_shr:{sh} row_mask:0xf bank_mask:0xf bound_ctrl:0')
    a(f'{op}_dpp v{reg}, v{reg}, v{reg} row_bcast:15 row_mask:0xa bank_mask:0xf')
    a(f'{op}_dpp v{reg}, v{reg}, v{reg} row_bcast:31 row_mask:0xc bank_mask:0xf')

def k4(a):
    L = 'k4_ffn_kernel'
    begin(a, L)
    SG, SU, SD, SWS, SO, SWR = 16, 20, 24, 28, 32, 36
    s_w, s_t0, s_t1, s_fb, s_idx, s_c, s_swr, s_go, s_do, s_w1k = 40, 41, 42, 43, 44, 45, 46, 47, 48, 49
    v_l, v_t, v_h, vlin, vgu = 1, 2, 3, 4, 5
    vt = 6
    a(f"""
    s_cmp_ge_u32 s2, {NFF+NOUT}
    s_cbranch_scc1 {L}_end
    s_load_dwordx8 s[4:11], s[0:1], 32
    s_load_dwordx2 s[12:13], s[0:1], 64
    s_load_dwordx2 s[14:15], s[0:1], 80
    v_and_b32 v{v_l}, 63, v0
    v_lshrrev_b32 v{vt}, 6, v0
    v_and_b32 v{v_t}, 31, v0
    v_readfirstlane_b32 s{s_w}, v{vt}
    v_bfe_u32 v{v_h}, v0, 5, 1
    v_lshlrev_b32 v{vlin}, 4, v{v_l}
    s_and_b32 s{s_t0}, s2, 7
    s_mul_i32 s{s_fb}, s{s_t0}, 18
    s_lshr_b32 s{s_t0}, s2, 3
    s_add_u32 s{s_fb}, s{s_fb}, s{s_t0}
    v_lshrrev_b32 v{vt}, 2, v{v_l}
    s_lshl_b32 s{s_t0}, s{s_w}, 4
    v_add_u32 v{vt}, s{s_t0}, v{vt}
    v_mul_u32_u24 v{vt}, 9216, v{vt}
    v_and_b32 v{vt+1}, 3, v{v_l}
    v_lshl_add_u32 v{vgu}, v{vt+1}, 4, v{vt}
    s_lshl_b32 s{s_go}, s{s_fb}, 6
    s_lshl_b32 s{s_w1k}, s{s_w}, 10
    s_mul_i32 s{s_do}, s{s_fb}, 36864
    s_add_u32 s{s_do}, s{s_do}, s{s_w1k}
    v_lshlrev_b32 v{vt}, 4, v0
    v_lshlrev_b32 v{vt+1}, 2, v{v_l}
    s_waitcnt lgkmcnt(0)
    """)
    srd(a, SWS, 14, WS_SIZE)
    srd(a, SWR, 4, 1152)
    srd(a, SG, 6, 576*9216)
    srd(a, SU, 8, 576*9216)
    srd(a, SD, 10, 4608*1152)
    srd(a, SO, 12, 2048*1152)
    stamps_init(a); stamp(a, 0)
    a(f"""
    s_cmp_ge_u32 s2, {NFF}
    s_cbranch_scc1 {L}_out
    """)
    LG, LU, LD, LX, LR = 0, 40960, 81920, 122880, 124928
    ST = 24
    WRR = 36
    a(f"""
    s_mov_b32 s{s_t0}, {WS_STAT}
    s_mov_b32 s{s_t1}, {WS_STAT+8192}
    s_mov_b32 s{s_c}, {WS_STAT+16384}
    buffer_load_dwordx4 {vr(ST,4)}, v{vt}, s[{SWS}:{SWS+3}], s{s_t0} offen
    buffer_load_dwordx4 {vr(ST+4,4)}, v{vt}, s[{SWS}:{SWS+3}], s{s_t1} offen
    buffer_load_dwordx4 {vr(ST+8,4)}, v{vt}, s[{SWS}:{SWS+3}], s{s_c} offen
    """)
    for j in range(5):
        a(f'buffer_load_dword v{WRR+j}, v{vt+1}, s[{SWR}:{SWR+3}], 0 offen offset:{256*j}')

    def wdma(j, which):
        S_, LB, so, step, vo = {'g': (SG, LG, s_go, 128*9216, vgu), 'u': (SU, LU, s_go, 128*9216, vgu), 'd': (SD, LD, s_do, 8192, vlin)}[which]
        a(f"""
        s_add_u32 m0, s{s_w1k}, {LB + j*8192}
        s_add_u32 s{s_t0}, s{so}, {j*step}
        buffer_load_dwordx4 v{vo}, s[{S_}:{S_+3}], s{s_t0} offen lds
        """)
    for j in range(4):
        wdma(j, 'g'); wdma(j, 'u')
    stamp(a, 1)
    a('s_waitcnt vmcnt(8)')
    stamp(a, 2)
    v_swr, v_key = vt+2, vt+4
    a(f"""
    v_mov_b32 v{v_swr}, 0
    v_mov_b32 v{vt+3}, 0x3f803f80
    """)
    for j in range(5):
        a(f'v_dot2c_f32_bf16 v{v_swr}, v{WRR+j}, v{vt+3}')
    dpp_reduce(a, 'v_add_f32', v_swr)
    a(f"""
    v_lshlrev_b32 v{vt+10}, 2, v0
    v_sub_u32 v{vt+10}, 2047, v{vt+10}
    v_mov_b32 v{v_key}, 0
    s_mov_b32 s{s_c}, 0xfffff800
    v_readlane_b32 s{s_swr}, v{v_swr}, 63
    """)
    for e in range(4):
        a(f"""
        v_mul_f32 v{vt+5}, {f32(1.0/576)}, v{ST+e}
        v_mul_f32 v{vt+6}, {f32(1.0/576)}, v{ST+4+e}
        v_fma_f32 v{vt+6}, -v{vt+5}, v{vt+5}, v{vt+6}
        v_max_f32 v{vt+6}, 0, v{vt+6}
        v_add_f32 v{vt+6}, {f32(1e-5)}, v{vt+6}
        v_rsq_f32 v{vt+6}, v{vt+6}
        v_fma_f32 v{vt+5}, -v{vt+5}, s{s_swr}, v{ST+8+e}
        v_mul_f32 v{vt+5}, v{vt+5}, v{vt+6}
        v_ashrrev_i32 v{vt+6}, 31, v{vt+5}
        v_or_b32 v{vt+6}, 0x80000000, v{vt+6}
        v_xor_b32 v{vt+5}, v{vt+5}, v{vt+6}
        v_subrev_u32 v{vt+6}, {e}, v{vt+10}
        v_and_or_b32 v{vt+5}, v{vt+5}, s{s_c}, v{vt+6}
        v_max_u32 v{v_key}, v{v_key}, v{vt+5}
        """)
    dpp_reduce(a, 'v_max_u32', v_key)
    a(f"""
    s_lshl_b32 s{s_t0}, s{s_w}, 2
    s_add_u32 s{s_t0}, s{s_t0}, {LR}
    v_mov_b32 v{vt+9}, s{s_t0}
    s_mov_b32 exec_lo, 0
    s_mov_b32 exec_hi, 0x80000000
    ds_write_b32 v{vt+9}, v{v_key}
    s_mov_b64 exec, -1
    v_mov_b32 v{vt+9}, {LR}
    s_waitcnt lgkmcnt(0)
    s_barrier
    ds_read_b128 {vr(ST,4)}, v{vt+9}
    ds_read_b128 {vr(ST+4,4)}, v{vt+9} offset:16
    v_min_u32 v{vt}, 143, v0
    v_lshlrev_b32 v{vt}, 3, v{vt}
    v_mov_b32 v{vt+1}, 0
    s_waitcnt lgkmcnt(0)
    v_max3_u32 v{ST}, v{ST}, v{ST+1}, v{ST+2}
    v_max3_u32 v{ST+3}, v{ST+3}, v{ST+4}, v{ST+5}
    v_max3_u32 v{ST}, v{ST}, v{ST+6}, v{ST+7}
    v_max_u32 v{ST}, v{ST}, v{ST+3}
    v_readfirstlane_b32 s{s_idx}, v{ST}
    s_and_b32 s{s_idx}, s{s_idx}, 0x7ff
    s_sub_u32 s{s_idx}, 2047, s{s_idx}
    """)
    stamp(a, 3)
    HR = 24
    a(f"""
    s_mul_i32 s{s_t0}, s{s_idx}, 1152
    s_add_u32 s{s_t0}, s{s_t0}, {WS_H}
    s_lshl_b32 s{s_t1}, s{s_idx}, 2
    s_add_u32 s{s_t1}, s{s_t1}, {WS_STAT}
    s_add_u32 s{s_c}, s{s_t1}, 8192
    buffer_load_dwordx2 v[{HR}:{HR+1}], v{vt}, s[{SWS}:{SWS+3}], s{s_t0} offen
    buffer_load_dword v{HR+2}, v{vt+1}, s[{SWS}:{SWS+3}], s{s_t1} offen
    buffer_load_dword v{HR+3}, v{vt+1}, s[{SWS}:{SWS+3}], s{s_c} offen
    s_add_u32 s{s_c}, s{s_c}, 8192
    buffer_load_dword v{HR+4}, v{vt+1}, s[{SWS}:{SWS+3}], s{s_c} offen
    """)
    wdma(4, 'g'); wdma(4, 'u')
    for j in range(5):
        wdma(j, 'd')
    a('s_waitcnt vmcnt(7)')
    stamp(a, 4)
    vm_, vri, vsb = 30, 31, 32
    ln_scalars(a, HR+2, HR+3, vm_, vri, vsb)
    for k in range(2):
        a(f"""
        v_lshlrev_b32 v{vt+5}, 16, v{HR+k}
        v_and_b32 v{vt+6}, 0xffff0000, v{HR+k}
        v_sub_f32 v{vt+5}, v{vt+5}, v{vm_}
        v_sub_f32 v{vt+6}, v{vt+6}, v{vm_}
        v_cvt_pk_bf16_f32 v{vt+7}, v{vt+5}, v{vt+6}
        v_lshlrev_b32 v{vt+5}, 16, v{vt+7}
        v_and_b32 v{vt+6}, 0xffff0000, v{vt+7}
        v_mul_f32 v{vt+5}, v{vt+5}, v{vri}
        v_mul_f32 v{vt+6}, v{vt+6}, v{vri}
        v_cvt_pk_bf16_f32 v{34+k}, v{vt+5}, v{vt+6}
        """)
    a(f"""
    v_add_u32 v{vt}, {LX}, v{vt}
    ds_write_b64 v{vt}, v[34:35]
    s_or_b32 s{s_t0}, s2, s{s_w}
    s_cmp_lg_u32 s{s_t0}, 0
    s_cbranch_scc1 {L}_nosel
    v_mov_b32 v36, s{s_idx}
    v_mov_b32 v37, v{vm_}
    v_mov_b32 v38, v{vri}
    v_fma_f32 v39, -v{vm_}, s{s_swr}, v{HR+4}
    v_mul_f32 v39, v39, v{vri}
    s_mov_b32 s{s_t0}, {WS_SEL}
    s_mov_b64 exec, 1
    buffer_store_dwordx4 v[36:39], v{vt+1}, s[{SWS}:{SWS+3}], s{s_t0} offen
    s_mov_b64 exec, -1
    {L}_nosel:
    """)
    vA, vB = vt, vt+1
    XFR = 40
    BFR = 76
    AC = 112
    a(f"""
    s_lshr_b32 s{s_t0}, s{s_w}, 1
    s_mul_i32 s{s_t1}, s{s_t0}, {9*32}
    s_add_u32 s{s_t1}, s{s_t1}, {LX}
    v_lshl_add_u32 v{vA}, v{v_h}, 4, s{s_t1}
    s_mul_i32 s{s_t0}, s{s_t0}, {9*1024}
    s_and_b32 s{s_t1}, s{s_w}, 1
    s_mul_i32 s{s_t1}, s{s_t1}, {LU}
    s_add_u32 s{s_t0}, s{s_t0}, s{s_t1}
    v_bfe_u32 v{vt+2}, v{v_l}, 2, 2
    v_lshl_add_u32 v{vt+2}, v{v_h}, 3, v{vt+2}
    v_lshlrev_b32 v{vB}, 6, v{vt+2}
    v_bfe_u32 v{vt+3}, v{v_l}, 4, 1
    v_lshl_add_u32 v{vB}, v{vt+3}, 5, v{vB}
    v_and_b32 v{vt+4}, 3, v{v_l}
    v_lshl_add_u32 v{vB}, v{vt+4}, 3, v{vB}
    v_add_u32 v{vB}, s{s_t0}, v{vB}
    s_waitcnt vmcnt(0) lgkmcnt(0)
    s_barrier
    """)
    for i in range(9):
        a(f'ds_read_b128 {vr(XFR+4*i,4)}, v{vA} offset:{32*i}')
        a(f'ds_read_b64_tr_b16 {vr(BFR+4*i,2)}, v{vB} offset:{1024*i}')
        a(f'ds_read_b64_tr_b16 {vr(BFR+4*i+2,2)}, v{vB} offset:{1024*i+256}')
        if i >= 3:
            k = i - 3
            a('s_waitcnt lgkmcnt(9)')
            a(f'v_mfma_f32_32x32x16_bf16 {vr(AC,16)}, {vr(XFR+4*k,4)}, {vr(BFR+4*k,4)}, {"0" if k == 0 else vr(AC,16)}')
    DB = 128
    DA = 152
    a(f"""
    v_mul_u32_u24 v{vB}, 1152, v{vt+2}
    v_lshl_add_u32 v{vB}, v{vt+3}, 5, v{vB}
    v_lshl_add_u32 v{vB}, v{vt+4}, 3, v{vB}
    s_lshl_b32 s{s_t0}, s{s_w}, 6
    s_add_u32 s{s_t0}, s{s_t0}, {LD}
    v_add_u32 v{vB}, s{s_t0}, v{vB}
    """)
    for k in range(6, 9):
        a(f's_waitcnt lgkmcnt({3*(8-k)})')
        a(f'v_mfma_f32_32x32x16_bf16 {vr(AC,16)}, {vr(XFR+4*k,4)}, {vr(BFR+4*k,4)}, {vr(AC,16)}')
    for j in range(3):
        for s_ in range(2):
            for jj in range(2):
                a(f'ds_read_b64_tr_b16 {vr(DB+8*j+4*s_+2*jj,2)}, v{vB} offset:{(16*s_+4*jj)*1152 + j*512}')
    stamp(a, 5)
    a(f"""
    s_lshl_b32 s{s_t0}, s{s_w}, 7
    s_add_u32 s{s_t0}, s{s_t0}, {LR+64}
    v_lshl_add_u32 v{vt+5}, v{v_t}, 2, s{s_t0}
    ds_write_b32 v{vt+5}, v{AC}
    v_lshlrev_b32 v{vt+5}, 2, v{v_t}
    v_add_u32 v{vt+5}, {LR+64}, v{vt+5}
    s_waitcnt lgkmcnt(0)
    s_barrier
    """)
    for j in range(8):
        a(f'ds_read_b32 v{24+j}, v{vt+5} offset:{128*j}')
    a(f"""
    s_mul_i32 s{s_t1}, s{s_fb}, 2304
    s_add_u32 s{s_t1}, s{s_t1}, {WS_Y}
    s_lshl_b32 s{s_t0}, s{s_w}, 7
    s_add_u32 s{s_t1}, s{s_t1}, s{s_t0}
    s_lshl_b32 s{s_t0}, s{s_w}, 6
    s_add_u32 s{s_t0}, s{s_t0}, {LR+1536}
    v_lshlrev_b32 v{vt+5}, 1, v{v_t}
    v_add_u32 v{vt+5}, s{s_t0}, v{vt+5}
    v_lshl_add_u32 v{vA}, v{v_h}, 4, s{s_t0}
    s_waitcnt lgkmcnt(0)
    v_add_f32 v24, v24, v26
    v_add_f32 v25, v25, v27
    v_add_f32 v28, v28, v30
    v_add_f32 v29, v29, v31
    v_add_f32 v24, v24, v28
    v_add_f32 v25, v25, v29
    """)
    bf16_round(a, 24, 24)
    bf16_round(a, 25, 25)
    a(f"""
    v_mul_f32 v26, {f32(-math.log2(math.e))}, v24
    v_exp_f32 v26, v26
    v_add_f32 v26, 1.0, v26
    v_rcp_f32 v26, v26
    v_mul_f32 v26, v24, v26
    """)
    bf16_round(a, 26, 26)
    a(f"""
    v_mul_f32 v26, v26, v25
    v_cvt_pk_bf16_f32 v26, v26, v26
    ds_write_b16 v{vt+5}, v26
    v_lshlrev_b32 v{vt+5}, 2, v{v_t}
    s_waitcnt lgkmcnt(0)
    ds_read_b128 {vr(XFR,4)}, v{vA}
    ds_read_b128 {vr(XFR+4,4)}, v{vA} offset:32
    s_waitcnt lgkmcnt(0)
    """)
    for j in range(3):
        a(f'v_mfma_f32_32x32x16_bf16 {vr(DA+16*j,16)}, {vr(XFR,4)}, {vr(DB+8*j,4)}, 0')
        a(f'v_mfma_f32_32x32x16_bf16 {vr(DA+16*j,16)}, {vr(XFR+4,4)}, {vr(DB+8*j+4,4)}, {vr(DA+16*j,16)}')
    a('s_mov_b64 exec, 0xffffffff')
    for j in range(2):
        a(f'buffer_store_dword v{DA+16*j}, v{vt+5}, s[{SWS}:{SWS+3}], s{s_t1} offen offset:{1024*j}')
    a(f"""
    s_cmp_gt_u32 s{s_w}, 1
    s_cbranch_scc1 {L}_fin
    buffer_store_dword v{DA+32}, v{vt+5}, s[{SWS}:{SWS+3}], s{s_t1} offen offset:2048
    {L}_fin:
    """)
    stamp(a, 7)
    stamps_flush(a, 3, SWS, s_w, 24)
    a('s_endpgm')
    a.label(f'{L}_out')
    HB = 32
    SB = 52
    a(f"""
    s_sub_u32 s{s_t0}, s2, {NFF}
    s_mul_i32 s{s_t1}, s{s_t0}, {32*1152}
    s_add_u32 s{s_c}, s{s_t1}, {WS_H}
    s_lshl_b32 s{s_t0}, s{s_t0}, 7
    s_add_u32 s{s_t0}, s{s_t0}, {WS_STAT}
    s_add_u32 s{s_fb}, s{s_t0}, 8192
    """)
    for j in range(5):
        a(f"""
        v_add_u32 v{vt}, {512*j}, v0
        v_min_u32 v{vt}, 2303, v{vt}
        v_lshlrev_b32 v{vt+10+j}, 4, v{vt}
        v_mul_u32_u24 v{vt+1}, 3641, v{vt}
        v_lshrrev_b32 v{vt+1}, 18, v{vt+1}
        v_lshlrev_b32 v{vt+1}, 2, v{vt+1}
        buffer_load_dwordx4 {vr(HB+4*j,4)}, v{vt+10+j}, s[{SWS}:{SWS+3}], s{s_c} offen
        buffer_load_dword v{SB+2*j}, v{vt+1}, s[{SWS}:{SWS+3}], s{s_t0} offen
        buffer_load_dword v{SB+2*j+1}, v{vt+1}, s[{SWS}:{SWS+3}], s{s_fb} offen
        """)
    OB = 64
    for j in range(5):
        a(f's_waitcnt vmcnt({3*(4-j) + j})')
        ln_scalars(a, SB+2*j, SB+2*j+1, vt, vt+1, vt+2)
        for k in range(4):
            hh = HB+4*j+k
            a(f"""
            v_lshlrev_b32 v{vt+3}, 16, v{hh}
            v_and_b32 v{vt+4}, 0xffff0000, v{hh}
            v_sub_f32 v{vt+5}, v{vt+3}, v{vt}
            v_sub_f32 v{vt+6}, v{vt+4}, v{vt}
            v_cvt_pk_bf16_f32 v{vt+7}, v{vt+5}, v{vt+6}
            v_lshlrev_b32 v{vt+5}, 16, v{vt+7}
            v_and_b32 v{vt+6}, 0xffff0000, v{vt+7}
            v_mul_f32 v{vt+5}, v{vt+5}, v{vt+1}
            v_mul_f32 v{vt+6}, v{vt+6}, v{vt+1}
            v_cvt_pk_bf16_f32 v{vt+7}, v{vt+5}, v{vt+6}
            v_lshlrev_b32 v{vt+5}, 16, v{vt+7}
            v_and_b32 v{vt+6}, 0xffff0000, v{vt+7}
            v_add_f32 v{vt+5}, v{vt+5}, v{vt+3}
            v_add_f32 v{vt+6}, v{vt+6}, v{vt+4}
            v_cvt_pk_bf16_f32 v{OB+4*j+k}, v{vt+5}, v{vt+6}
            """)
        a(f'buffer_store_dwordx4 {vr(OB+4*j,4)}, v{vt+10+j}, s[{SO}:{SO+3}], s{s_t1} offen')
    stamp(a, 7)
    stamps_flush(a, 3, SWS, s_w, 100)
    a(f"""
    {L}_end:
    s_endpgm
    """)
    kernels.append((L, NFF+NOUT, 512, LR + 2048, 200, 100))

def k5(a):
    L = 'k5_final_kernel'
    begin(a, L)
    SWS, SO = 12, 16
    s_t0, s_t1, s_idx = 20, 21, 22
    a(f'''
    s_cmp_ge_u32 s2, 18
    s_cbranch_scc1 {L}_end
    s_load_dwordx2 s[4:5], s[0:1], 64
    s_load_dwordx2 s[6:7], s[0:1], 80
    v_and_b32 v1, 31, v0
    v_lshrrev_b32 v2, 5, v0
    v_mul_u32_u24 v3, {18*2304}, v2
    v_lshl_add_u32 v3, v1, 2, v3
    v_mov_b32 v4, 0
    s_waitcnt lgkmcnt(0)
    ''')
    srd(a, SO, 4, 2048*1152)
    srd(a, SWS, 6, WS_SIZE)
    a(f'''
    s_mov_b32 s{s_t1}, {WS_SEL}
    buffer_load_dwordx4 v[8:11], v4, s[{SWS}:{SWS+3}], s{s_t1} offen
    s_lshl_b32 s{s_t0}, s2, 7
    s_add_u32 s{s_t0}, s{s_t0}, {WS_Y}
    ''')
    for j in range(18):
        a(f'buffer_load_dword v{16+j}, v3, s[{SWS}:{SWS+3}], s{s_t0} offen')
        a(f's_add_u32 s{s_t0}, s{s_t0}, 2304')
    a(f'''
    s_waitcnt vmcnt(18)
    v_min_u32 v8, 2047, v8
    v_mul_u32_u24 v5, 1152, v8
    v_lshl_add_u32 v5, v1, 1, v5
    s_lshl_b32 s{s_t1}, s2, 6
    s_add_u32 s{s_t0}, s{s_t1}, {WS_H}
    buffer_load_ushort v12, v5, s[{SWS}:{SWS+3}], s{s_t0} offen
    s_waitcnt vmcnt(1)
    ''')
    for j in range(1, 18):
        a(f'v_add_f32 v16, v16, v{16+j}')
    a(f'''
    v_lshlrev_b32 v6, 2, v0
    ds_write_b32 v6, v16
    s_waitcnt lgkmcnt(0)
    s_barrier
    v_lshlrev_b32 v6, 2, v1
    ''')
    for j in range(8):
        a(f'ds_read_b32 v{16+j}, v6 offset:{128*j}')
    a('s_waitcnt vmcnt(0) lgkmcnt(0)')
    for j in range(1, 8):
        a(f'v_add_f32 v16, v16, v{16+j}')
    bf16_round(a, 16, 16)
    bf16_round(a, 11, 11)
    a(f'''
    v_mul_f32 v13, {f32(-math.log2(math.e))}, v11
    v_exp_f32 v13, v13
    v_add_f32 v13, 1.0, v13
    v_rcp_f32 v13, v13
    ''')
    bf16_round(a, 13, 13)
    a('v_mul_f32 v16, v16, v13')
    bf16_round(a, 16, 16)
    a(f'''
    v_lshlrev_b32 v12, 16, v12
    v_sub_f32 v14, v12, v9
    ''')
    bf16_round(a, 14, 14)
    a('v_mul_f32 v14, v14, v10')
    bf16_round(a, 14, 14)
    a('v_add_f32 v14, v14, v16')
    bf16_round(a, 14, 14)
    a(f'''
    v_add_f32 v14, v14, v12
    v_cvt_pk_bf16_f32 v14, v14, v14
    v_cmp_gt_u32 vcc, 32, v0
    s_and_saveexec_b64 s[24:25], vcc
    s_cbranch_execz {L}_end
    buffer_store_short v14, v5, s[{SO}:{SO+3}], s{s_t1} offen
    {L}_end:
    s_endpgm
    ''')
    kernels.append((L, 18, 256, 1024, 64, 64))


def build(extra_empty=0):
    a = Asm()
    a.raw('.amdgcn_target "amdgcn-amd-amdhsa--gfx950"')
    a.raw('.text')
    k1(a); k2(a); k3(a); k4(a); k5(a)
    nk = len(kernels)
    a.raw('code_end_marker:')
    a('s_endpgm')
    if extra_empty:
        begin(a, 'empty_kernel')
        a('s_endpgm')
        kernels.append(('empty_kernel', 256, 256, 0, 8, 16))
    body = a.render()
    hdr = ''
    for (lab, grid, block, lds, vg, sg) in kernels[:nk]:
        hdr += f'; @launch kernel={lab} grid=({grid},1,1) block=({block},1,1) lds={lds}\n'
    for i in range(extra_empty):
        hdr += f'; @launch kernel=empty_kernel grid=(256,1,1) block=(256,1,1) lds=0\n'
    desc = '.section .rodata,"a"\n'
    for (lab, grid, block, lds, vg, sg) in kernels:
        desc += f'''.p2align 6
.amdhsa_kernel {lab}
  .amdhsa_next_free_vgpr {vg}
  .amdhsa_next_free_sgpr {sg}
  .amdhsa_accum_offset {(vg+3)//4*4}
  .amdhsa_group_segment_fixed_size 0
  .amdhsa_kernarg_size 88
  .amdhsa_user_sgpr_count 2
  .amdhsa_user_sgpr_kernarg_segment_ptr 1
  .amdhsa_system_sgpr_workgroup_id_x 1
  .amdhsa_float_denorm_mode_32 3
.end_amdhsa_kernel
'''
    return hdr + body + desc

if __name__ == '__main__':
    if len(sys.argv) > 3 and sys.argv[3] == 'diag':
        DIAG = True
    if len(sys.argv) > 3 and sys.argv[3] == 'diagc':
        DIAG = 2
    out = sys.argv[1] if len(sys.argv) > 1 else f'cdna_kernels/{NAME}.s'
    open(out, 'w').write(build(int(sys.argv[2]) if len(sys.argv) > 2 else 0))
    print('wrote', out)
```

```python
import sys, struct, math
from asmlib import Asm

NAME = 'sequential_preLN__mha_block__moe_arch_mod__prompt'

CHUNK = 19456
HEADKV = 8 * CHUNK
WS_KV = 0
WS_Q = 0x500000
HEADQ = 73728
WS_O = 0x800000
WS_H = 0xB00000
WS_STAT = 0xE00000
WS_SEL = 0xE08000
WS_Y = 0xE10000
WS_SIZE = 0x1100000

def f32(x):
    return '0x%08x' % struct.unpack('<I', struct.pack('<f', x))[0]

CQ = (18 ** -0.5) * math.log2(math.e)

def srd(a, d, lo, nbytes):
    a(f'''
    s_mov_b32 s{d}, s{lo}
    s_mov_b32 s{d+1}, s{lo+1}
    s_mov_b32 s{d+2}, {nbytes}
    s_mov_b32 s{d+3}, 0x00020000
    ''')

def vr(b, n):
    return f'v[{b}:{b+n-1}]' if n > 1 else f'v{b}'

def bf16_round(a, dst, src):
    a(f'v_cvt_pk_bf16_f32 v{dst}, v{src}, v{src}')
    a(f'v_lshlrev_b32 v{dst}, 16, v{dst}')

def ln_scalars(a, vsum, vsq, vm, vrinv, vt):
    a(f'''
    v_mul_f32 v{vm}, {f32(1.0/576)}, v{vsum}
    v_mul_f32 v{vt}, {f32(1.0/576)}, v{vsq}
    v_fma_f32 v{vt}, -v{vm}, v{vm}, v{vt}
    v_max_f32 v{vt}, 0, v{vt}
    ''')
    bf16_round(a, vt, vt)
    a(f'v_add_f32 v{vt}, {f32(1e-5)}, v{vt}')
    bf16_round(a, vt, vt)
    a(f'v_sqrt_f32 v{vt}, v{vt}')
    bf16_round(a, vt, vt)
    a(f'v_rcp_f32 v{vrinv}, v{vt}')
    bf16_round(a, vm, vm)

kernels = []
DIAG = False
WS_DIAG = 0xF00000
ST0 = 80

import os
OPT = dict(kv.split('=') for kv in os.environ.get('OPT', '').split(',') if kv)

def stamp(a, i, cyc=False):
    if DIAG:
        a(f'{"s_memtime" if (DIAG == 2 or cyc) else "s_memrealtime"} s[{ST0+2*i}:{ST0+2*i+1}]')

def stamps_init(a):
    if DIAG:
        for i in range(16):
            a(f's_mov_b32 s{ST0+i}, 0')

def stamps_flush(a, kidx, sws, s_w, vtmp):
    if not DIAG:
        return
    a(f'''
    s_waitcnt lgkmcnt(0)
    s_lshl_b32 s96, s2, 9
    s_lshl_b32 s97, s{s_w}, 6
    s_add_u32 s96, s96, s97
    s_add_u32 s96, s96, {WS_DIAG + kidx*0x28000}
    s_mov_b64 exec, 1
    v_mov_b32 v{vtmp+4}, 0
    ''')
    for j in range(4):
        for k in range(4):
            a(f'v_mov_b32 v{vtmp+k}, s{ST0+4*j+k}')
        a(f'buffer_store_dwordx4 v[{vtmp}:{vtmp+3}], v{vtmp+4}, s[{sws}:{sws+3}], s96 offen offset:{16*j}')
        a('s_nop 1')

def begin(a, label):
    a.raw('.p2align 8')
    a.raw(f'.globl {label}')
    a.raw(f'.type {label},@function')
    a.label(label)

def k1(a):
    L = 'k1_qkv_kernel'
    begin(a, L)
    BUF = 32768
    EXA = 131072
    SX, SW, SWS = 12, 16, 20
    s_cb, s_tb, s_w, s_w1k, s_xb, s_wb, s_t0, s_t1 = 24, 25, 26, 27, 28, 29, 30, 31
    s_wmask = 32
    s_m = 34
    s_c, s_lds, s_xo, s_wo, s_wp, s_cp, s_a, s_b = 36, 37, 38, 39, 40, 41, 42, 43
    s_ub, s_uh, s_us, s_up = 44, 47, 50, 53
    s_tok = 56
    s_off = 66
    s_hs2, s_sc2, s_pt2, s_g, s_ct = 68, 69, 70, 71, 72
    s_eoff = 4
    v_l, v_t, v_h = 1, 2, 3
    vX, vW = 4, 5
    vXa, vXb, vWa = 6, 8, 10
    v_sq, v_ws, v_one = 12, 13, 14
    v_sq2, v_ws2 = 56, 57
    vt = 16
    XF = [24, 32]
    WF = [40, 48]
    ACC = 64
    ADDR = list(range(vXa, vXa+6))
    a(f"""
    s_cmp_ge_u32 s2, 256
    s_cbranch_scc1 {L}_end
    s_load_dwordx4 s[4:7], s[0:1], 0
    s_load_dwordx2 s[8:9], s[0:1], 80
    s_and_b32 s10, s2, 7
    s_lshr_b32 s11, s2, 3
    s_and_b32 s{s_cb}, s10, 3
    s_lshl_b32 s{s_cb}, s{s_cb}, 2
    s_and_b32 s{s_t0}, s11, 3
    s_add_u32 s{s_cb}, s{s_cb}, s{s_t0}
    s_lshr_b32 s{s_tb}, s10, 2
    s_lshl_b32 s{s_tb}, s{s_tb}, 3
    s_lshr_b32 s{s_t0}, s11, 2
    s_add_u32 s{s_tb}, s{s_tb}, s{s_t0}
    v_and_b32 v{v_l}, 63, v0
    v_lshrrev_b32 v{vt}, 6, v0
    v_and_b32 v{v_t}, 31, v0
    v_readfirstlane_b32 s{s_w}, v{vt}
    v_bfe_u32 v{v_h}, v0, 5, 1
    s_lshl_b32 s{s_w1k}, s{s_w}, 10
    s_mul_i32 s{s_xb}, s{s_tb}, {128*1152}
    s_mul_i32 s{s_wb}, s{s_cb}, 216
    s_and_b32 s{s_wp}, s{s_w}, 1
    s_bfe_u32 s{s_cp}, s{s_w}, 0x10001
    s_lshr_b32 s{s_g}, s{s_w}, 2
    s_xor_b32 s{s_ct}, s{s_wp}, s{s_g}
    s_lshl_b32 s{s_t0}, s{s_cp}, 1
    s_add_u32 s{s_ct}, s{s_ct}, s{s_t0}
    """)
    a(f"""
    v_lshrrev_b32 v{vt}, 3, v{v_l}
    s_lshl_b32 s{s_t0}, s{s_w}, 3
    v_add_u32 v{vt}, s{s_t0}, v{vt}
    v_mul_u32_u24 v{vX}, 1152, v{vt}
    s_lshl_b32 s{s_t0}, s{s_wp}, 2
    v_lshrrev_b32 v{vt}, 4, v{v_l}
    v_add_u32 v{vt+1}, s{s_t0}, v{vt}
    v_and_b32 v{vt+2}, 7, v{v_l}
    v_xor_b32 v{vt+2}, v{vt+2}, v{vt+1}
    v_lshl_add_u32 v{vX}, v{vt+2}, 4, v{vX}
    s_lshl_b32 s{s_t0}, s{s_w}, 2
    v_add_u32 v{vt+1}, s{s_t0}, v{vt}
    v_mul_u32_u24 v{vW}, 3456, v{vt+1}
    v_and_b32 v{vt+2}, 15, v{v_l}
    v_lshlrev_b32 v{vt+3}, 2, v{vt}
    v_xor_b32 v{vt+2}, v{vt+2}, v{vt+3}
    v_lshl_add_u32 v{vW}, v{vt+2}, 4, v{vW}
    v_cmp_gt_u32 s[{s_wmask}:{s_wmask+1}], 14, v{vt+2}
    s_waitcnt lgkmcnt(0)
    """)
    srd(a, SX, 4, 2048*1152)
    srd(a, SW, 6, 576*3456)
    srd(a, SWS, 8, WS_SIZE)
    stamps_init(a); stamp(a, 0)

    def dma(j):
        a(f"""
        s_mov_b64 exec, s[{s_wmask}:{s_wmask+1}]
        s_add_u32 m0, s{s_lds}, {16384 + j*8192}
        s_add_u32 s{s_t0}, s{s_wo}, {32*j*3456}
        buffer_load_dwordx4 v{vW}, s[{SW}:{SW+3}], s{s_t0} offen lds
        s_mov_b64 exec, -1
        s_add_u32 m0, s{s_lds}, {j*8192}
        s_add_u32 s{s_t0}, s{s_xo}, {j*64*1152}
        buffer_load_dwordx4 v{vX}, s[{SX}:{SX+3}], s{s_t0} offen lds
        """)

    a(f"""
    s_mov_b32 s{s_lds}, s{s_w1k}
    s_mov_b32 s{s_xo}, s{s_xb}
    s_mov_b32 s{s_wo}, s{s_wb}
    s_mov_b32 s{s_c}, 0
    {L}_pro:
    """)
    dma(0); dma(1)
    if not OPT.get('nopf1'):
        a(f"""
        s_cmp_lg_u32 s{s_c}, 0
        s_cbranch_scc1 {L}_nopf
        s_lshr_b32 s{s_t0}, s10, 2
        s_mul_i32 s{s_t0}, s{s_t0}, {1024*1152}
        s_mul_i32 s{s_t1}, s11, {576*64}
        s_add_u32 s{s_t0}, s{s_t0}, s{s_t1}
        v_lshlrev_b32 v{vt}, 6, v0
        buffer_load_dword v{vt+7}, v{vt}, s[{SX}:{SX+3}], s{s_t0} offen
        s_cmp_lg_u32 s{s_w}, 0
        s_cbranch_scc1 {L}_pfw
        s_add_u32 s{s_t0}, s{s_t0}, {512*64}
        buffer_load_dword v{vt+7}, v{vt}, s[{SX}:{SX+3}], s{s_t0} offen
        s_branch {L}_nopf
        {L}_pfw:
        v_subrev_u32 v{vt}, 64, v0
        v_min_u32 v{vt}, 287, v{vt}
        v_lshrrev_b32 v{vt+1}, 4, v{vt}
        v_and_b32 v{vt}, 15, v{vt}
        v_mul_u32_u24 v{vt+1}, 3456, v{vt+1}
        v_lshl_add_u32 v{vt}, v{vt}, 6, v{vt+1}
        s_and_b32 s{s_t0}, s10, 3
        s_mul_i32 s{s_t0}, s{s_t0}, 864
        s_and_b32 s{s_t0}, s{s_t0}, 0xffffffc0
        s_mul_i32 s{s_t1}, s11, {18*3456}
        s_add_u32 s{s_t0}, s{s_t0}, s{s_t1}
        buffer_load_dword v{vt+7}, v{vt}, s[{SW}:{SW+3}], s{s_t0} offen
        {L}_nopf:
        """)
    a(f"""
    s_add_u32 s{s_lds}, s{s_lds}, {BUF}
    s_add_u32 s{s_xo}, s{s_xo}, 128
    s_add_u32 s{s_wo}, s{s_wo}, {64*3456}
    s_add_u32 s{s_c}, s{s_c}, 1
    s_cmp_lt_u32 s{s_c}, 3
    s_cbranch_scc1 {L}_pro
    """)
    a(f"""
    v_and_b32 v{vt}, 3, v{v_l}
    v_lshlrev_b32 v{vt}, 2, v{vt}
    v_xor_b32 v{vt}, 14, v{vt}
    v_lshlrev_b32 v{vt}, 4, v{vt}
    v_lshl_add_u32 v{vt}, v{v_l}, 8, v{vt}
    s_and_b32 s{s_t0}, s{s_w}, 3
    s_lshl_b32 s{s_t0}, s{s_t0}, 15
    v_add_u32 v{vt+1}, s{s_t0}, v{vt}
    v_mov_b32 v{vt+2}, 0x3f80
    v_mov_b32 v{vt+3}, 0
    ds_write_b64 v{vt+1}, v[{vt+2}:{vt+3}] offset:16384
    v_mov_b32 v{v_one}, 0x3f803f80
    v_mov_b32 v{v_sq}, 0
    v_mov_b32 v{v_ws}, 0
    v_mov_b32 v{v_sq2}, 0
    v_mov_b32 v{v_ws2}, 0
    """)
    a(f"""
    s_lshl_b32 s{s_t0}, s{s_wp}, 13
    v_lshlrev_b32 v{vt}, 7, v{v_t}
    v_add_u32 v{vt}, s{s_t0}, v{vt}
    v_bfe_u32 v{vt+1}, v{v_t}, 1, 3
    v_xor_b32 v{vt+1}, v{vt+1}, v{v_h}
    v_lshl_add_u32 v{vt}, v{vt+1}, 4, v{vt}
    s_lshl_b32 s{s_t0}, s{s_cp}, 12
    v_add_u32 v{vt}, s{s_t0}, v{vt}
    s_lshl_b32 s{s_t0}, s{s_g}, 5
    v_xor_b32 v{vXa}, s{s_t0}, v{vt}
    v_xor_b32 v{vXa+1}, 64, v{vXa}
    v_xor_b32 v{vXb}, 0x1000, v{vXa}
    v_xor_b32 v{vXb+1}, 0x1000, v{vXa+1}
    """)
    v_r, v_c4, v_gp = vt+4, vt+5, vt+6
    a(f"""
    v_bfe_u32 v{v_r}, v{v_l}, 2, 2
    v_and_b32 v{v_c4}, 3, v{v_l}
    v_bfe_u32 v{v_gp}, v{v_l}, 4, 1
    v_lshrrev_b32 v{vt+1}, 1, v{v_c4}
    v_lshl_add_u32 v{vt+1}, v{v_gp}, 1, v{vt+1}
    v_mul_u32_u24 v{vt+2}, 72, v{vt+1}
    v_add_u32 v{vt+2}, 32, v{vt+2}
    v_min_u32 v{vt+2}, 224, v{vt+2}
    v_mul_u32_u24 v{vt+3}, 40, v{v_gp}
    v_lshl_add_u32 v{vt+3}, v{v_c4}, 3, v{vt+3}
    s_lshl_b32 s{s_a}, s{s_g}, 12
    s_add_u32 s{s_a}, s{s_a}, 16384
    """)
    for i in range(2):
        a(f"""
        s_xor_b32 s{s_t0}, s{s_ct}, {i}
        s_mul_i32 s{s_t1}, s{s_t0}, 72
        v_add_u32 v{vt}, s{s_t1}, v{vt+3}
        s_cmp_eq_u32 s{s_t0}, 3
        s_cselect_b64 s[{s_m}:{s_m+1}], -1, 0
        v_cndmask_b32 v{vt}, v{vt}, v{vt+2}, s[{s_m}:{s_m+1}]
        v_lshlrev_b32 v{vt+1}, 6, v{v_r}
        v_xor_b32 v{vt}, v{vt}, v{vt+1}
        v_lshl_add_u32 v{vt+1}, v{v_h}, 3, v{v_r}
        v_lshl_add_u32 v{vt}, v{vt+1}, 8, v{vt}
        v_add_u32 v{vWa+i}, s{s_a}, v{vt}
        """)
    for r in range(64):
        a(f'v_mov_b32 v{ACC+r}, 0')
    for g in range(3):
        a(f"""
        s_mul_i32 s{s_t0}, s{s_cb}, 3
        s_add_u32 s{s_t0}, s{s_t0}, {g}
        s_lshr_b32 s{s_up+g}, s{s_t0}, 4
        s_and_b32 s{s_t0}, s{s_t0}, 15
        s_cmp_eq_u32 s{s_up+g}, 0
        s_cselect_b32 s{s_us+g}, {f32(CQ)}, 1.0
        s_mov_b32 s{s_uh+g}, {HEADKV}
        s_cselect_b32 s{s_uh+g}, {HEADQ}, s{s_uh+g}
        s_cselect_b32 s{s_ub+g}, {WS_Q}, {WS_KV}
        s_lshl_b32 s{s_t0}, s{s_t0}, 1
        s_mul_i32 s{s_t0}, s{s_t0}, s{s_uh+g}
        s_add_u32 s{s_ub+g}, s{s_ub+g}, s{s_t0}
        """)
    for x in range(2):
        k = s_tok + 5*x
        a(f"""
        s_xor_b32 s{s_t0}, s{s_cp}, {x}
        s_lshl_b32 s{s_t1}, s{s_wp}, 1
        s_add_u32 s{s_t0}, s{s_t0}, s{s_t1}
        s_lshl_b32 s{s_t1}, s{s_tb}, 2
        s_add_u32 s{s_t0}, s{s_t0}, s{s_t1}
        s_lshl_b32 s{k}, s{s_t0}, 10
        s_lshl_b32 s{k+3}, s{s_t0}, 7
        s_add_u32 s{k+3}, s{k+3}, 65536
        s_lshr_b32 s{s_t1}, s{s_t0}, 3
        s_mul_i32 s{s_t1}, s{s_t1}, {CHUNK}
        s_and_b32 s{s_t0}, s{s_t0}, 7
        s_lshl_b32 s{k+1}, s{s_t0}, 10
        s_add_u32 s{k+1}, s{k+1}, s{s_t1}
        s_mul_i32 s{k+2}, s{s_t0}, 1280
        s_add_u32 s{k+2}, s{k+2}, s{s_t1}
        s_add_u32 s{k+2}, s{k+2}, 9216
        s_lshl_b32 s{k+4}, s{s_t0}, 7
        s_add_u32 s{k+4}, s{k+4}, s{s_t1}
        s_add_u32 s{k+4}, s{k+4}, 8192
        """)
    for g in range(3):
        for x in range(2):
            k = s_tok + 5*x
            d = s_eoff + 2*g + x
            a(f"""
            s_cmp_eq_u32 s{s_up+g}, 0
            s_cselect_b32 s{d}, s{k+3}, s{k+4}
            s_cmp_eq_u32 s{s_up+g}, 2
            s_cselect_b32 s{d}, s{k+2}, s{d}
            s_add_u32 s{d}, s{d}, s{s_ub+g}
            """)
    a(f"""
    s_cmp_eq_u32 s{s_ct}, 1
    s_cselect_b32 s{s_a}, s{s_ub+1}, s{s_ub}
    s_cselect_b32 s{s_hs2}, s{s_uh+1}, s{s_uh}
    s_cselect_b32 s{s_sc2}, s{s_us+1}, s{s_us}
    s_cselect_b32 s{s_pt2}, s{s_up+1}, s{s_up}
    s_cmp_eq_u32 s{s_ct}, 2
    s_cselect_b32 s{s_a}, s{s_ub+2}, s{s_a}
    s_cselect_b32 s{s_hs2}, s{s_uh+2}, s{s_hs2}
    s_cselect_b32 s{s_sc2}, s{s_us+2}, s{s_sc2}
    s_cselect_b32 s{s_pt2}, s{s_up+2}, s{s_pt2}
    """)
    for x in range(2):
        k = s_tok + 5*x
        d = s_off + x
        a(f"""
        s_cmp_eq_u32 s{s_pt2}, 0
        s_cselect_b32 s{d}, s{k}, s{k+1}
        s_cmp_eq_u32 s{s_pt2}, 2
        s_cselect_b32 s{d}, s{k+2}, s{d}
        s_add_u32 s{d}, s{d}, s{s_a}
        """)

    def rd_list(ls, fb):
        r = []
        r.append(f'ds_read_b128 {vr(XF[fb], 4)}, v{vXa+ls}')
        r.append(f'ds_read_b64_tr_b16 {vr(WF[fb], 2)}, v{vWa} offset:{ls*8192}')
        r.append(f'ds_read_b64_tr_b16 {vr(WF[fb]+2, 2)}, v{vWa} offset:{ls*8192 + 1024}')
        r.append(f'ds_read_b128 {vr(XF[fb]+4, 4)}, v{vXb+ls}')
        r.append(f'ds_read_b64_tr_b16 {vr(WF[fb]+4, 2)}, v{vWa+1} offset:{ls*8192}')
        r.append(f'ds_read_b64_tr_b16 {vr(WF[fb]+6, 2)}, v{vWa+1} offset:{ls*8192 + 1024}')
        return r

    def compute(fb, rds, tail):
        k = 0
        for i in range(2):
            for x in range(2):
                acc = ACC + (i*2 + x)*16
                if not OPT.get('x_nomfma'):
                    a(f'v_mfma_f32_32x32x16_bf16 {vr(acc,16)}, {vr(WF[fb]+4*i,4)}, {vr(XF[fb]+4*x,4)}, {vr(acc,16)}')
                if k < 3:
                    for rr in (rds[2*k], rds[2*k+1]):
                        if OPT.get('x_notr') and '_tr_' in rr: continue
                        if OPT.get('x_nob128') and 'b128' in rr: continue
                        a(rr)
                mode = OPT.get('k1stat', 'valu')
                if mode == 'dot':
                    a(f'v_dot2c_f32_bf16 v{v_sq}, v{XF[fb]+k}, v{XF[fb]+k}')
                    a(f'v_dot2c_f32_bf16 v{v_ws}, v{WF[fb]+k}, v{v_one}')
                elif mode == 'valu':
                    a(f"""
                    v_lshlrev_b32 v{vt}, 16, v{XF[fb]+k}
                    v_and_b32 v{vt+1}, 0xffff0000, v{XF[fb]+k}
                    v_lshlrev_b32 v{vt+2}, 16, v{WF[fb]+k}
                    v_and_b32 v{vt+3}, 0xffff0000, v{WF[fb]+k}
                    v_fmac_f32 v{v_sq}, v{vt}, v{vt}
                    v_fmac_f32 v{v_sq2}, v{vt+1}, v{vt+1}
                    v_add_f32 v{v_ws}, v{v_ws}, v{vt+2}
                    v_add_f32 v{v_ws2}, v{v_ws2}, v{vt+3}
                    """)
                if k == 3:
                    tail()
                k += 1

    def adv():
        for r in ADDR:
            a(f'v_add_u32 v{r}, {BUF}, v{r}')
            a(f'v_and_b32 v{r}, 0x1ffff, v{r}')

    stamp(a, 1)
    a('s_waitcnt vmcnt(%d) lgkmcnt(0)' % (8 if OPT.get('nopf1') else 10))
    a('s_barrier')
    stamp(a, 2)
    for r in rd_list(0, 0):
        a(r)
    a(f's_mov_b32 s{s_c}, 0')
    a.label(f'{L}_loop')
    a(f"""
    s_and_b32 s{s_lds}, s{s_lds}, 0x1ffff
    s_cmp_ge_u32 s{s_c}, 6
    s_cselect_b32 s{s_xo}, 0x7f000000, s{s_xo}
    s_waitcnt lgkmcnt(0)
    """)
    nd = OPT.get('x_nodma')
    compute(0, rd_list(1, 1), lambda: (None if nd else dma(0), adv()))
    a('s_waitcnt vmcnt(6) lgkmcnt(0)')
    a('s_barrier')
    compute(1, rd_list(0, 0), lambda: None if nd else dma(1))
    a(f"""
    s_add_u32 s{s_lds}, s{s_lds}, {BUF}
    s_add_u32 s{s_xo}, s{s_xo}, 128
    s_add_u32 s{s_wo}, s{s_wo}, {64*3456}
    s_add_u32 s{s_c}, s{s_c}, 1
    s_cmp_lt_u32 s{s_c}, 9
    s_cbranch_scc1 {L}_loop
    """)
    stamp(a, 3)
    v_lin = 4
    a(f"""
    v_add_f32 v{v_sq}, v{v_sq}, v{v_sq2}
    v_add_f32 v{v_ws}, v{v_ws}, v{v_ws2}
    v_mov_b32 v{vt}, v{v_sq}
    v_mov_b32 v{vt+1}, v{v_ws}
    v_permlane32_swap_b32 v{v_sq}, v{vt}
    v_permlane32_swap_b32 v{v_ws}, v{vt+1}
    v_add_f32 v{v_sq}, v{v_sq}, v{vt}
    v_add_f32 v{v_ws}, v{v_ws}, v{vt+1}
    s_lshl_b32 s{s_a}, s{s_wp}, 1
    s_add_u32 s{s_a}, s{s_a}, s{s_cp}
    s_lshl_b32 s{s_a}, s{s_a}, 7
    s_add_u32 s{s_a}, s{s_a}, {EXA}
    v_lshlrev_b32 v{vt}, 2, v{v_t}
    v_add_u32 v{vt+1}, s{s_a}, v{vt}
    s_lshl_b32 s{s_t0}, s{s_g}, 9
    v_add_u32 v{vt+5}, s{s_t0}, v{vt+1}
    ds_write_b32 v{vt+5}, v{v_sq}
    s_lshl_b32 s{s_b}, s{s_ct}, 7
    s_add_u32 s{s_b}, s{s_b}, {EXA}
    s_add_u32 s{s_t1}, s{s_b}, s{s_t0}
    v_add_u32 v{vt+2}, s{s_t1}, v{vt}
    ds_write_b32 v{vt+2}, v{v_ws} offset:2048
    v_xor_b32 v{vt+2}, 128, v{vt+1}
    v_xor_b32 v{vt+6}, 128, v{vt+5}
    v_lshlrev_b32 v{v_lin}, 4, v{v_l}
    s_cmp_eq_u32 s{s_cp}, 0
    s_cbranch_scc1 {L}_nosx
    s_cmp_eq_u32 s{s_ct}, 3
    s_cselect_b64 s[{s_m}:{s_m+1}], -1, 0
    v_cndmask_b32 v{vt+3}, v{ACC+2*16+12}, v{ACC+0*16+12}, s[{s_m}:{s_m+1}]
    v_cndmask_b32 v{vt+4}, v{ACC+3*16+12}, v{ACC+1*16+12}, s[{s_m}:{s_m+1}]
    ds_write_b32 v{vt+5}, v{vt+3} offset:1024
    ds_write_b32 v{vt+6}, v{vt+4} offset:1024
    {L}_nosx:
    s_lshl_b32 s{s_t0}, s{s_w}, 13
    s_xor_b32 s{s_t1}, s{s_t0}, {4<<13}
    v_add_u32 v{vt+5}, s{s_t0}, v{v_lin}
    v_add_u32 v{vt+6}, s{s_t1}, v{v_lin}
    s_waitcnt vmcnt(0) lgkmcnt(0)
    s_barrier
    """)
    for g in range(8):
        a(f'ds_write_b128 v{vt+5}, {vr(ACC+32+4*g,4)} offset:{1024*g}')
    vM = [24, 26]; vR = [28, 29]; vS = 48
    WS0 = 32
    a(f"""
    ds_read_b32 v{vS}, v{vt+1}
    ds_read_b32 v{vS+1}, v{vt+1} offset:1024
    ds_read_b32 v{vS+2}, v{vt+2}
    ds_read_b32 v{vS+3}, v{vt+2} offset:1024
    ds_read_b32 v{vS+4}, v{vt+1} offset:512
    ds_read_b32 v{vS+5}, v{vt+1} offset:1536
    ds_read_b32 v{vS+6}, v{vt+2} offset:512
    ds_read_b32 v{vS+7}, v{vt+2} offset:1536
    v_lshl_add_u32 v{vt+1}, v{v_h}, 4, s{s_b}
    """)
    WS1 = 128
    for g in range(4):
        a(f'ds_read_b128 {vr(WS0+4*g, 4)}, v{vt+1} offset:{2048+32*g}')
        a(f'ds_read_b128 {vr(WS1+4*g, 4)}, v{vt+1} offset:{2048+512+32*g}')
    v_vrec, v_e4, v_e40, v_off, v_sc = 5, 6, 7, 8, 30
    a(f"""
    v_mul_u32_u24 v{v_vrec}, 40, v{v_t}
    v_lshlrev_b32 v{v_e4}, 2, v{v_t}
    v_add_u32 v{v_e40}, 32, v{v_vrec}
    v_lshl_add_u32 v{v_vrec}, v{v_h}, 4, v{v_vrec}
    v_lshlrev_b32 v{vt}, 2, v0
    v_mov_b32 v{vt+2}, 0
    s_mul_i32 s{s_t0}, s2, 96
    s_add_u32 s{s_t0}, s{s_t0}, {WS_STAT}
    s_cmp_lg_u32 s{s_w}, 0
    s_cbranch_scc1 {L}_nz
    s_mov_b64 exec, 0xffffff
    buffer_store_dword v{vt+2}, v{vt}, s[{SWS}:{SWS+3}], s{s_t0} offen
    s_mov_b64 exec, -1
    {L}_nz:
    s_waitcnt lgkmcnt(8)
    s_barrier
    """)
    RC = ACC + 32
    for g in range(8):
        a(f'ds_read_b128 {vr(RC+4*g,4)}, v{vt+6} offset:{1024*g}')
    for k in range(4):
        a(f'v_add_f32 v{vS+k}, v{vS+k}, v{vS+4+k}')
    for x in range(2):
        ln_scalars(a, vS+2*x+1, vS+2*x, vM[x], vR[x], vt+3)
    a('s_waitcnt lgkmcnt(8)')
    for r in range(0, 16, 2):
        a(f'v_pk_add_f32 {vr(WS0+r,2)}, {vr(WS0+r,2)}, {vr(WS1+r,2)}')
    for x in range(2):
        acc = ACC + x*16
        for r in range(0, 16, 2):
            a(f'v_pk_fma_f32 {vr(acc+r,2)}, {vr(WS0+r,2)}, {vr(vM[x],2)}, {vr(acc+r,2)} op_sel_hi:[1,0,1] neg_lo:[0,1,0] neg_hi:[0,1,0]')
    a('s_waitcnt lgkmcnt(0)')
    for r in range(0, 32, 2):
        a(f'v_pk_add_f32 {vr(ACC+r,2)}, {vr(ACC+r,2)}, {vr(RC+r,2)}')
    stamp(a, 6)
    PK = 32
    a(f"""
    s_cmp_eq_u32 s{s_ct}, 3
    s_cbranch_scc1 {L}_ext
    s_cmp_eq_u32 s{s_pt2}, 2
    s_cselect_b64 s[{s_m}:{s_m+1}], -1, 0
    v_cndmask_b32 v{v_off}, v{v_lin}, v{v_vrec}, s[{s_m}:{s_m+1}]
    """)
    for x in range(2):
        acc = ACC + x*16
        a(f'v_mul_f32 v{v_sc}, s{s_sc2}, v{vR[x]}')
        a(f's_add_u32 s{s_a}, s{s_off+x}, s{s_hs2}')
        for r in range(0, 16, 2):
            a(f'v_pk_mul_f32 {vr(acc+r,2)}, {vr(acc+r,2)}, {vr(v_sc,2)} op_sel_hi:[1,0]')
        pk = PK + 8*x
        for k in range(8):
            a(f'v_cvt_pk_bf16_f32 v{pk+k}, v{acc+2*k}, v{acc+2*k+1}')
        a(f'buffer_store_dwordx4 {vr(pk,4)}, v{v_off}, s[{SWS}:{SWS+3}], s{s_off+x} offen')
        a(f'buffer_store_dwordx4 {vr(pk+4,4)}, v{v_off}, s[{SWS}:{SWS+3}], s{s_a} offen')
    a(f's_branch {L}_done')
    a.label(f'{L}_ext')
    a(f'v_cmp_eq_u32 vcc, 1, v{v_h}')
    for g in range(3):
        a(f"""
        s_cmp_eq_u32 s{s_up+g}, 2
        s_cselect_b64 s[{s_m}:{s_m+1}], -1, 0
        v_cndmask_b32 v{v_off}, v{v_e4}, v{v_e40}, s[{s_m}:{s_m+1}]
        v_mul_lo_u32 v{vt}, v{v_h}, s{s_uh+g}
        v_add_u32 v{v_off}, v{v_off}, v{vt}
        """)
        for x in range(2):
            acc = ACC + x*16
            pk = PK + 4*g + 2*x
            a(f"""
            v_mul_f32 v{v_sc}, s{s_us+g}, v{vR[x]}
            v_cndmask_b32 v{vt}, v{acc+4*g}, v{acc+4*g+2}, vcc
            v_cndmask_b32 v{vt+1}, v{acc+4*g+1}, v{acc+4*g+3}, vcc
            v_mul_f32 v{vt}, v{v_sc}, v{vt}
            v_mul_f32 v{vt+1}, v{v_sc}, v{vt+1}
            v_cvt_pk_bf16_f32 v{pk}, v{vt}, v{vt+1}
            v_mov_b32 v{pk+1}, 0x3f80
            """)
        pk = PK + 4*g
        a(f"""
        s_cbranch_scc1 {L}_e{g}v
        buffer_store_dword v{pk}, v{v_off}, s[{SWS}:{SWS+3}], s{s_eoff+2*g} offen
        buffer_store_dword v{pk+2}, v{v_off}, s[{SWS}:{SWS+3}], s{s_eoff+2*g+1} offen
        s_branch {L}_e{g}d
        {L}_e{g}v:
        buffer_store_dwordx2 {vr(pk,2)}, v{v_off}, s[{SWS}:{SWS+3}], s{s_eoff+2*g} offen
        buffer_store_dwordx2 {vr(pk+2,2)}, v{v_off}, s[{SWS}:{SWS+3}], s{s_eoff+2*g+1} offen
        {L}_e{g}d:
        """)
    a.label(f'{L}_done')
    stamp(a, 7)
    stamps_flush(a, 0, SWS, s_w, 16)
    a.label(f'{L}_end')
    a('s_endpgm')
    kernels.append((L, 256, 512, EXA + 4096, 144, 100))

def k2(a):
    L = 'k2_attn_kernel'
    begin(a, L)
    SWS = 12
    s_head, s_qb, s_w, s_t0, s_t1, s_kv, s_mode, s_c, s_qs, s_kg, s_n = 20, 21, 22, 23, 24, 25, 26, 27, 28, 29, 30
    s_m = 32
    FLAG = HEADKV
    v_l, v_t, v_h = 1, 2, 3
    vKa, vKe, vVa, vlin = 4, 5, 6, 7
    vt = 8
    QM = [16, 20]; QE = [24, 26]
    KM = [28, 32]; KE = [36, 38]
    VF = [40, 48]
    P = 56
    S = [64, 80]
    O = [96, 112]
    a(f'''
    s_cmp_ge_u32 s2, 256
    s_cbranch_scc1 {L}_end
    s_load_dwordx2 s[8:9], s[0:1], 80
    s_load_dwordx2 s[4:5], s[0:1], 0
    s_load_dwordx2 s[6:7], s[0:1], 16
    s_load_dwordx4 s[56:59], s[0:1], 40
    s_load_dwordx2 s[60:61], s[0:1], 56
    s_and_b32 s10, s2, 7
    s_lshr_b32 s11, s2, 3
    s_lshl_b32 s{s_head}, s10, 2
    s_lshr_b32 s{s_t0}, s11, 3
    s_add_u32 s{s_head}, s{s_head}, s{s_t0}
    s_and_b32 s{s_qb}, s11, 7
    v_and_b32 v{v_l}, 63, v0
    v_lshrrev_b32 v{vt}, 6, v0
    v_and_b32 v{v_t}, 31, v0
    v_readfirstlane_b32 s{s_w}, v{vt}
    v_bfe_u32 v{v_h}, v0, 5, 1
    v_lshlrev_b32 v{vlin}, 4, v{v_l}
    s_and_b32 s{s_qs}, s{s_w}, 3
    s_lshr_b32 s{s_kg}, s{s_w}, 2
    s_mul_i32 s{s_kv}, s{s_head}, {HEADKV}
    s_add_u32 s{s_kv}, s{s_kv}, {WS_KV}
    s_mov_b32 s{s_mode}, 0
    s_waitcnt lgkmcnt(0)
    ''')
    srd(a, SWS, 8, WS_SIZE)
    SPX, SPO, SPG, SPU, SPD = 36, 40, 44, 48, 52
    srd(a, SPX, 4, 2048*1152)
    srd(a, SPO, 6, 576*1152)
    srd(a, SPG, 56, 576*9216)
    srd(a, SPU, 58, 576*9216)
    srd(a, SPD, 60, 4608*1152)
    stamps_init(a); stamp(a, 0)
    a.label(f'{L}_start')
    a(f'''
    s_cmp_eq_u32 s{s_w}, 8
    s_cbranch_scc1 {L}_loader
    ''')
    a(f'''
    s_lshl_b32 s{s_t0}, s{s_qb}, 3
    s_lshl_b32 s{s_t1}, s{s_qs}, 1
    s_add_u32 s{s_t0}, s{s_t0}, s{s_t1}
    s_mul_i32 s{s_t1}, s{s_head}, {HEADQ}
    s_add_u32 s{s_t1}, s{s_t1}, {WS_Q}
    s_lshl_b32 s{s_c}, s{s_t0}, 10
    s_add_u32 s{s_c}, s{s_c}, s{s_t1}
    buffer_load_dwordx4 {vr(QM[0],4)}, v{vlin}, s[{SWS}:{SWS+3}], s{s_c} offen
    buffer_load_dwordx4 {vr(QM[1],4)}, v{vlin}, s[{SWS}:{SWS+3}], s{s_c} offen offset:1024
    s_lshl_b32 s{s_c}, s{s_t0}, 7
    s_add_u32 s{s_c}, s{s_c}, s{s_t1}
    s_add_u32 s{s_c}, s{s_c}, 65536
    v_lshlrev_b32 v{vt}, 2, v{v_t}
    buffer_load_dword v{QE[0]}, v{vt}, s[{SWS}:{SWS+3}], s{s_c} offen
    buffer_load_dword v{QE[1]}, v{vt}, s[{SWS}:{SWS+3}], s{s_c} offen offset:128
    s_lshl_b32 s{s_t0}, s{s_w}, 10
    s_add_u32 s{s_t1}, s{s_kv}, s{s_t0}
    ''')
    s_dl, s_dg = 62, 63
    a(f'''
    s_mov_b32 s{s_dl}, s{s_t0}
    s_mov_b32 s{s_dg}, s{s_t1}
    ''')

    def kvdma(js):
        for j in js:
            a(f'''
            s_add_u32 m0, s{s_dl}, {j*8192}
            s_add_u32 s{s_t1}, s{s_dg}, {j*8192}
            buffer_load_dwordx4 v{vlin}, s[{SWS}:{SWS+3}], s{s_t1} offen lds
            ''')
    kvdma(range(3))
    a(f'''
    v_mov_b32 v{vt}, {FLAG}
    v_mov_b32 v{vt+1}, 0
    ds_write_b32 v{vt}, v{vt+1}
    v_mov_b32 v{KE[0]+1}, 0x3f803f80
    v_mov_b32 v{KE[1]+1}, 0x3f803f80
    v_mov_b32 v{QE[0]+1}, 0
    v_mov_b32 v{QE[1]+1}, 0
    ''')
    a(f'''
    v_bfe_u32 v{vt}, v{v_l}, 2, 2
    v_lshl_add_u32 v{vt}, v{v_h}, 2, v{vt}
    s_lshl_b32 s{s_t0}, s{s_kg}, 7
    v_add_u32 v{vt}, s{s_t0}, v{vt}
    v_mul_u32_u24 v{vVa}, 40, v{vt}
    v_and_b32 v{vt}, 3, v{v_l}
    v_lshlrev_b32 v{vt}, 3, v{vt}
    v_and_b32 v{vt+1}, 16, v{v_l}
    v_cmp_ne_u32 vcc, 0, v{vt+1}
    v_cndmask_b32 v{vt}, v{vt}, 32, vcc
    v_add3_u32 v{vVa}, v{vVa}, v{vt}, 0
    v_add_u32 v{vVa}, 9216, v{vVa}
    ''')
    if OPT.get('vzero'):
        a(f'''
        v_and_b32 v{vt}, 18, v{v_l}
        v_cmp_eq_u32 vcc, 18, v{vt}
        v_add_u32 v{vt}, 0x100000, v{vVa}
        v_cndmask_b32 v{vVa}, v{vVa}, v{vt}, vcc
        ''')
    for r in range(16):
        a(f'v_mov_b32 v{O[0]+r}, 0')
        a(f'v_mov_b32 v{O[1]+r}, 0')
    for r in range(8):
        a(f'v_mov_b32 v{P+r}, 0')
    for r in range(4):
        a(f'v_mov_b32 v{VF[1]+4+r}, 0')
    stamp(a, 1)
    a(f'''
    s_waitcnt vmcnt(0) lgkmcnt(0)
    s_barrier
    v_cmp_eq_u32 vcc, 0, v{v_h}
    v_cndmask_b32 v{QE[0]}, 0, v{QE[0]}, vcc
    v_cndmask_b32 v{QE[1]}, 0, v{QE[1]}, vcc
    ''')
    stamp(a, 2)
    vmx = [vt+4, vt+5]
    a(f'''
    s_cmp_eq_u32 s{s_mode}, 0
    s_cselect_b32 s{s_n}, 1, 64
    s_mov_b32 s{s_c}, 0
    v_mov_b32 v{vmx[0]}, 0xff800000
    v_mov_b32 v{vmx[1]}, 0xff800000
    {L}_mx:
    s_lshr_b32 s{s_t0}, s{s_c}, 3
    s_mul_i32 s{s_t0}, s{s_t0}, {CHUNK}
    s_and_b32 s{s_t1}, s{s_c}, 7
    s_lshl_b32 s{s_t1}, s{s_t1}, 10
    s_add_u32 s{s_t1}, s{s_t1}, s{s_t0}
    v_add_u32 v{vt}, s{s_t1}, v{vlin}
    ds_read_b128 {vr(KM[0],4)}, v{vt}
    s_and_b32 s{s_t1}, s{s_c}, 7
    s_lshl_b32 s{s_t1}, s{s_t1}, 7
    s_add_u32 s{s_t1}, s{s_t1}, s{s_t0}
    v_lshl_add_u32 v{vt}, v{v_t}, 2, s{s_t1}
    ds_read_b32 v{KE[0]}, v{vt} offset:8192
    s_waitcnt lgkmcnt(0)
    ''')
    for q in range(2):
        a(f'v_mfma_f32_32x32x16_bf16 {vr(S[q],16)}, {vr(KM[0],4)}, {vr(QM[q],4)}, 0')
        a(f'v_mfma_f32_32x32x8_bf16 {vr(S[q],16)}, {vr(KE[0],2)}, {vr(QE[q],2)}, {vr(S[q],16)}')
    for q in range(2):
        for k in range(8):
            a(f'v_max3_f32 v{vmx[q]}, v{S[q]+2*k}, v{S[q]+2*k+1}, v{vmx[q]}')
    a(f'''
    s_add_u32 s{s_c}, s{s_c}, 1
    s_cmp_lt_u32 s{s_c}, s{s_n}
    s_cbranch_scc1 {L}_mx
    ''')
    a(f'v_cmp_eq_u32 vcc, 0, v{v_h}')
    for q in range(2):
        a(f'''
        v_mov_b32 v{vt}, v{vmx[q]}
        v_permlane32_swap_b32 v{vmx[q]}, v{vt}
        v_max_f32 v{vt}, v{vmx[q]}, v{vt}
        v_xor_b32 v{vt}, 0x80000000, v{vt}
        v_and_b32 v{vt+1}, 0xffff0000, v{vt}
        v_sub_f32 v{vt}, v{vt}, v{vt+1}
        v_and_b32 v{vt+2}, 0xffff0000, v{vt}
        v_sub_f32 v{vt}, v{vt}, v{vt+2}
        v_lshrrev_b32 v{vt+1}, 16, v{vt+1}
        v_or_b32 v{vt+1}, v{vt+1}, v{vt+2}
        v_lshrrev_b32 v{vt}, 16, v{vt}
        v_cndmask_b32 v{QE[q]+1}, v{vt}, v{vt+1}, vcc
        ''')
    a(f'''
    s_lshl_b32 s{s_t0}, s{s_kg}, 12
    v_add_u32 v{vKa}, s{s_t0}, v{vlin}
    s_lshl_b32 s{s_t0}, s{s_kg}, 9
    s_add_u32 s{s_t0}, s{s_t0}, 8192
    v_lshl_add_u32 v{vKe}, v{v_t}, 2, s{s_t0}
    ''')

    def koff(i):
        return (i // 4) * CHUNK + (i % 4) * 1024, (i // 4) * CHUNK + (i % 4) * 128

    def read_k(i, p):
        o1, o2 = koff(i)
        a(f'ds_read_b128 {vr(KM[p],4)}, v{vKa} offset:{o1}')
        a(f'ds_read_b32 v{KE[p]}, v{vKe} offset:{o2}')

    def read_v(i, p):
        base = (i // 4) * CHUNK + (i % 4) * 1280
        for m in range(2):
            for part in range(2):
                a(f'ds_read_b64_tr_b16 {vr(VF[p]+4*m+2*part,2)}, v{vVa} offset:{base + m*640 + part*320}')

    read_k(0, 0)
    read_k(1, 1)
    read_v(0, 0)
    a('s_waitcnt lgkmcnt(6)')
    a(f'v_mfma_f32_32x32x16_bf16 {vr(S[0],16)}, {vr(KM[0],4)}, {vr(QM[0],4)}, 0')
    a(f'v_mfma_f32_32x32x8_bf16 {vr(S[0],16)}, {vr(KE[0],2)}, {vr(QE[0],2)}, {vr(S[0],16)}')
    a(f's_mov_b32 s{s_c}, 0')
    stamp(a, 3)
    stamp(a, 4, True)
    a('s_nop 7')
    a('s_nop 3')
    a.label(f'{L}_loop')

    def gap(X, g):
        s = S[X]
        for e in range(4):
            a(f'v_exp_f32 v{s+4*g+e}, v{s+4*g+e}')
        a(f'v_cvt_pk_bf16_f32 v{P+2*g}, v{s+4*g}, v{s+4*g+1}')
        a(f'v_cvt_pk_bf16_f32 v{P+2*g+1}, v{s+4*g+2}, v{s+4*g+3}')

    for i in range(4):
        p = i % 2
        if i == 2:
            a(f'''
            s_cmp_gt_u32 s{s_c}, 3
            s_cbranch_scc1 {L}_nb
            s_barrier
            ''')
            a.label(f'{L}_nb')
        a(f'v_mfma_f32_32x32x16_bf16 {vr(S[1],16)}, {vr(KM[p],4)}, {vr(QM[1],4)}, 0')
        gap(0, 0)
        a(f'v_mfma_f32_32x32x8_bf16 {vr(S[1],16)}, {vr(KE[p],2)}, {vr(QE[1],2)}, {vr(S[1],16)}')
        read_k(i+2, p)
        gap(0, 1)
        a(f'v_mfma_f32_32x32x16_bf16 {vr(O[1],16)}, {vr(VF[1-p]+4,4)}, {vr(P+4,4)}, {vr(O[1],16)}')
        read_v(i+1, 1-p)
        gap(0, 2)
        a('s_waitcnt lgkmcnt(6)')
        a(f'v_mfma_f32_32x32x16_bf16 {vr(O[0],16)}, {vr(VF[p],4)}, {vr(P,4)}, {vr(O[0],16)}')
        gap(0, 3)
        a(f'v_mfma_f32_32x32x16_bf16 {vr(S[0],16)}, {vr(KM[1-p],4)}, {vr(QM[0],4)}, 0')
        gap(1, 0)
        a(f'v_mfma_f32_32x32x8_bf16 {vr(S[0],16)}, {vr(KE[1-p],2)}, {vr(QE[0],2)}, {vr(S[0],16)}')
        gap(1, 1)
        a(f'v_mfma_f32_32x32x16_bf16 {vr(O[0],16)}, {vr(VF[p]+4,4)}, {vr(P+4,4)}, {vr(O[0],16)}')
        gap(1, 2)
        a(f'v_mfma_f32_32x32x16_bf16 {vr(O[1],16)}, {vr(VF[p],4)}, {vr(P,4)}, {vr(O[1],16)}')
        gap(1, 3)
    a(f'''
    v_add_u32 v{vKa}, {CHUNK}, v{vKa}
    v_add_u32 v{vKe}, {CHUNK}, v{vKe}
    v_add_u32 v{vVa}, {CHUNK}, v{vVa}
    s_add_u32 s{s_c}, s{s_c}, 1
    s_cmp_lt_u32 s{s_c}, 8
    s_cbranch_scc1 {L}_loop
    v_mfma_f32_32x32x16_bf16 {vr(O[1],16)}, {vr(VF[1]+4,4)}, {vr(P+4,4)}, {vr(O[1],16)}
    ''')
    a('''
    s_waitcnt lgkmcnt(0)
    s_barrier
    ''')
    stamp(a, 5, True)
    stamp(a, 6)
    a(f'''
    s_cmp_eq_u32 s{s_kg}, 1
    s_cselect_b64 s[{s_m}:{s_m+1}], -1, 0
    s_lshl_b32 s{s_t0}, s{s_qs}, 1
    s_add_u32 s{s_t0}, s{s_t0}, s{s_kg}
    s_xor_b32 s{s_t1}, s{s_t0}, 1
    s_mul_i32 s{s_t0}, s{s_t0}, 3072
    s_mul_i32 s{s_t1}, s{s_t1}, 3072
    v_add_u32 v{vt}, s{s_t1}, v{vlin}
    v_add_u32 v{vt+1}, s{s_t0}, v{vlin}
    ''')
    SND, KEEP = S[0], S[1]
    for r in range(12):
        a(f'v_cndmask_b32 v{SND+r}, v{O[1]+r}, v{O[0]+r}, s[{s_m}:{s_m+1}]')
        a(f'v_cndmask_b32 v{KEEP+r}, v{O[0]+r}, v{O[1]+r}, s[{s_m}:{s_m+1}]')
    for g in range(3):
        a(f'ds_write_b128 v{vt}, {vr(SND+4*g,4)} offset:{1024*g}')
    a('s_waitcnt lgkmcnt(0)')
    a('s_barrier')
    for g in range(3):
        a(f'ds_read_b128 {vr(SND+4*g,4)}, v{vt+1} offset:{1024*g}')
    a('s_waitcnt lgkmcnt(0)')
    for r in range(11):
        a(f'v_add_f32 v{KEEP+r}, v{KEEP+r}, v{SND+r}')
    a(f'''
    v_cmp_ngt_f32 vcc, {f32(2.0**60)}, v{KEEP+10}
    v_cmp_nlt_f32 s[{s_m}:{s_m+1}], {f32(2.0**-90)}, v{KEEP+10}
    ''' .replace(f'v_cmp_nlt_f32 s[{s_m}:{s_m+1}], {f32(2.0**-90)}, v{KEEP+10}', f'v_mov_b32 v{vt+2}, {f32(2.0**-90)}\n v_cmp_nlt_f32 s[{s_m}:{s_m+1}], v{vt+2}, v{KEEP+10}'))
    a(f'''
    v_rcp_f32 v{vt+3}, v{KEEP+10}
    s_or_b64 vcc, vcc, s[{s_m}:{s_m+1}]
    s_cbranch_vccz {L}_ok
    v_mov_b32 v{vt}, {FLAG}
    v_mov_b32 v{vt+1}, 1
    ds_write_b32 v{vt}, v{vt+1}
    {L}_ok:
    ''')
    for r in range(10):
        a(f'v_mul_f32 v{KEEP+r}, v{vt+3}, v{KEEP+r}')
    for k in range(5):
        a(f'v_cvt_pk_bf16_f32 v{P+k}, v{KEEP+2*k}, v{KEEP+2*k+1}')
    a(f'''
    s_lshl_b32 s{s_t0}, s{s_qb}, 3
    s_lshl_b32 s{s_t1}, s{s_qs}, 1
    s_add_u32 s{s_t0}, s{s_t0}, s{s_t1}
    s_add_u32 s{s_t0}, s{s_t0}, s{s_kg}
    s_mul_i32 s{s_t0}, s{s_t0}, {36*1024}
    s_add_u32 s{s_t0}, s{s_t0}, {WS_O}
    s_lshl_b32 s{s_t1}, s{s_head}, 10
    s_add_u32 s{s_t1}, s{s_t1}, s{s_t0}
    buffer_store_dwordx4 {vr(P,4)}, v{vlin}, s[{SWS}:{SWS+3}], s{s_t1} offen
    s_lshr_b32 s{s_t1}, s{s_head}, 3
    s_add_u32 s{s_t1}, s{s_t1}, 32
    s_lshl_b32 s{s_t1}, s{s_t1}, 10
    s_add_u32 s{s_t0}, s{s_t0}, s{s_t1}
    s_bfe_u32 s{s_t1}, s{s_head}, 0x10002
    s_lshl_b32 s{s_t1}, s{s_t1}, 9
    s_add_u32 s{s_t0}, s{s_t0}, s{s_t1}
    s_and_b32 s{s_t1}, s{s_head}, 3
    s_lshl_b32 s{s_t1}, s{s_t1}, 2
    s_add_u32 s{s_t0}, s{s_t0}, s{s_t1}
    v_lshlrev_b32 v{vt}, 4, v{v_t}
    buffer_store_dword v{P+4}, v{vt}, s[{SWS}:{SWS+3}], s{s_t0} offen
    ''')
    stamp(a, 7)
    stamps_flush(a, 1, SWS, s_w, 40)
    a(f'''
    s_mov_b64 exec, -1
    {L}_tail:
    s_cmp_eq_u32 s{s_mode}, 1
    s_cbranch_scc1 {L}_end
    s_waitcnt lgkmcnt(0)
    s_barrier
    v_mov_b32 v{vt}, {FLAG}
    ds_read_b32 v{vt+1}, v{vt}
    s_waitcnt lgkmcnt(0)
    v_readfirstlane_b32 s{s_t0}, v{vt+1}
    s_cmp_eq_u32 s{s_t0}, 0
    s_cbranch_scc1 {L}_end
    s_mov_b32 s{s_mode}, 1
    s_waitcnt vmcnt(0)
    s_barrier
    s_branch {L}_start
    {L}_loader:
    s_mov_b32 s{s_c}, {24*1024}
    ''')

    def ldr(upto, tag):
        a(f'''
        {L}_ld{tag}:
        s_mov_b32 m0, s{s_c}
        s_add_u32 s{s_t1}, s{s_kv}, s{s_c}
        buffer_load_dwordx4 v{vlin}, s[{SWS}:{SWS+3}], s{s_t1} offen lds
        s_add_u32 s{s_c}, s{s_c}, 1024
        s_cmp_lt_u32 s{s_c}, {upto*1024}
        s_cbranch_scc1 {L}_ld{tag}
        ''')
    a(f'''
    s_cmp_eq_u32 s{s_mode}, 0
    s_cbranch_scc1 {L}_lfast
    ''')
    ldr(152, 'x')
    a(f'''
    s_waitcnt vmcnt(0)
    s_barrier
    s_barrier
    s_barrier
    s_barrier
    s_barrier
    s_branch {L}_lend
    {L}_lfast:
    ''')
    ldr(38, 'a')
    a('s_barrier')
    ldr(57, 'b')
    a('s_waitcnt vmcnt(19)')
    a('s_barrier')
    ldr(95, 'c')
    a('s_waitcnt vmcnt(38)')
    a('s_barrier')
    ldr(133, 'd')
    a('s_waitcnt vmcnt(57)')
    a('s_barrier')
    ldr(152, 'e')
    a('s_waitcnt vmcnt(0)')
    a('s_barrier')
    if not OPT.get('nopf2'):
        a(f'''
        v_mov_b32 v{vt+3}, v{v_l}
        s_mov_b32 s{s_c}, 0
        {L}_pfl:
        ''')
        a(f'''
        v_min_u32 v{vt}, 323, v{vt+3}
        v_lshlrev_b32 v{vt+1}, 6, v{vt}
        s_mul_i32 s{s_t0}, s11, {324*64}
        buffer_load_dword v{vt+7}, v{vt+1}, s[{SPO}:{SPO+3}], s{s_t0} offen
        s_mul_i32 s{s_t1}, s10, 663552
        s_add_u32 s{s_t0}, s{s_t0}, s{s_t1}
        buffer_load_dword v{vt+7}, v{vt+1}, s[{SPD}:{SPD+3}], s{s_t0} offen
        v_mul_u32_u24 v{vt+1}, 3641, v{vt}
        v_lshrrev_b32 v{vt+1}, 16, v{vt+1}
        v_mul_u32_u24 v{vt+2}, 18, v{vt+1}
        v_sub_u32 v{vt+2}, v{vt}, v{vt+2}
        v_mul_u32_u24 v{vt+1}, 9216, v{vt+1}
        v_lshl_add_u32 v{vt+1}, v{vt+2}, 6, v{vt+1}
        s_mul_i32 s{s_t0}, s11, {18*9216}
        s_mul_i32 s{s_t1}, s10, 1152
        s_add_u32 s{s_t0}, s{s_t0}, s{s_t1}
        buffer_load_dword v{vt+7}, v{vt+1}, s[{SPG}:{SPG+3}], s{s_t0} offen
        buffer_load_dword v{vt+7}, v{vt+1}, s[{SPU}:{SPU+3}], s{s_t0} offen
        v_min_u32 v{vt}, 143, v{vt+3}
        v_lshlrev_b32 v{vt+1}, 6, v{vt}
        s_mul_i32 s{s_t0}, s11, {144*64}
        s_mul_i32 s{s_t1}, s10, 294912
        s_add_u32 s{s_t0}, s{s_t0}, s{s_t1}
        buffer_load_dword v{vt+7}, v{vt+1}, s[{SPX}:{SPX+3}], s{s_t0} offen
        s_getpc_b64 s[64:65]
        {L}_pc:
        s_add_u32 s64, s64, k3_oproj_kernel-{L}_pc
        s_addc_u32 s65, s65, 0
        v_min_u32 v{vt}, (code_end_marker-k3_oproj_kernel)/64, v{vt+3}
        v_lshlrev_b32 v{vt+1}, 6, v{vt}
        global_load_dword v{vt+7}, v{vt+1}, s[64:65]
        v_add_u32 v{vt+3}, 64, v{vt+3}
        s_add_u32 s{s_c}, s{s_c}, 1
        s_cmp_lt_u32 s{s_c}, 6
        s_cbranch_scc1 {L}_pfl
        ''')
    a(f'''
    {L}_lend:
    s_barrier
    s_barrier
    s_branch {L}_tail
    {L}_end:
    s_endpgm
    ''')
    kernels.append((L, 256, 576, HEADKV + 64, 128, 100))

def k3(a):
    L = 'k3_oproj_kernel'
    begin(a, L)
    SX, SWO, SWR, SWS = 12, 16, 20, 24
    s_tb, s_cb, s_w, s_tt, s_kh, s_t0, s_t1, s_g, s_rb, s_gt = 28, 29, 30, 31, 32, 33, 34, 35, 36, 37
    s_m = 38
    v_l, v_t, v_h, vlin = 1, 2, 3, 4
    vt = 5
    vDm = 16
    vDe = 19
    vWa = 22
    vdo = 23
    XR = 24
    WR = 36
    WF = [48, 60]
    ACC = 72
    OF = 120
    EX = 110592
    a(f'''
    s_cmp_ge_u32 s2, 192
    s_cbranch_scc1 {L}_end
    s_load_dwordx2 s[4:5], s[0:1], 0
    s_load_dwordx2 s[6:7], s[0:1], 16
    s_load_dwordx2 s[8:9], s[0:1], 32
    s_load_dwordx2 s[10:11], s[0:1], 80
    s_and_b32 s{s_t0}, s2, 7
    s_lshr_b32 s{s_t1}, s2, 3
    s_mul_i32 s{s_g}, s{s_t1}, 43
    s_lshr_b32 s{s_g}, s{s_g}, 8
    s_mul_i32 s{s_cb}, s{s_g}, 6
    s_sub_u32 s{s_cb}, s{s_t1}, s{s_cb}
    s_lshl_b32 s{s_tb}, s{s_t0}, 2
    s_add_u32 s{s_tb}, s{s_tb}, s{s_g}
    v_and_b32 v{v_l}, 63, v0
    v_lshrrev_b32 v{vt}, 6, v0
    v_and_b32 v{v_t}, 31, v0
    v_readfirstlane_b32 s{s_w}, v{vt}
    v_bfe_u32 v{v_h}, v0, 5, 1
    v_lshlrev_b32 v{vlin}, 4, v{v_l}
    s_and_b32 s{s_tt}, s{s_w}, 1
    s_lshr_b32 s{s_kh}, s{s_w}, 1
    s_lshl_b32 s{s_gt}, s{s_tb}, 1
    s_add_u32 s{s_gt}, s{s_gt}, s{s_tt}
    ''')
    for i3 in range(3):
        a(f'''
        v_add_u32 v{vt}, {64*i3}, v{v_l}
        v_mul_u32_u24 v{vt+1}, 1366, v{vt}
        v_lshrrev_b32 v{vt+1}, 14, v{vt+1}
        v_mul_u32_u24 v{vt+2}, 12, v{vt+1}
        v_sub_u32 v{vt+2}, v{vt}, v{vt+2}
        v_lshlrev_b32 v{vt+2}, 4, v{vt+2}
        ''')
        a(f'''
        v_mul_u32_u24 v{vt+3}, 1152, v{vt+1}
        v_add_u32 v{vDm+i3}, v{vt+3}, v{vt+2}
        ''')
        a(f'''
        v_lshrrev_b32 v{vt+3}, 1, v{vt+1}
        v_mul_u32_u24 v{vt+4}, 18, v{vt+3}
        v_and_b32 v{vt+5}, 1, v{vt+1}
        v_add_u32 v{vt+4}, v{vt+4}, v{vt+5}
        v_and_b32 v{vt+3}, 1, v{vt+3}
        v_xor_b32 v{vt+3}, 1, v{vt+3}
        v_lshl_add_u32 v{vt+4}, v{vt+3}, 4, v{vt+4}
        v_mul_u32_u24 v{vt+4}, 1152, v{vt+4}
        v_add_u32 v{vDe+i3}, v{vt+4}, v{vt+2}
        ''')
    a('s_waitcnt lgkmcnt(0)')
    srd(a, SX, 4, 2048*1152)
    srd(a, SWO, 6, 576*1152)
    srd(a, SWR, 8, 1152)
    srd(a, SWS, 10, WS_SIZE)
    stamps_init(a); stamp(a, 0)
    vm = []

    def stage(st):
        for k in range(3):
            a(f'''
            s_mul_i32 s{s_g}, s{s_tt}, 3
            s_mul_i32 s{s_t0}, s{s_kh}, 18
            s_add_u32 s{s_g}, s{s_g}, s{s_t0}
            s_add_u32 s{s_g}, s{s_g}, {6*st + k}
            s_and_b32 s{s_t0}, s{s_g}, 1
            s_lshl_b32 s{s_t0}, s{s_t0}, 1
            s_mul_i32 s{s_rb}, s{s_g}, 18
            s_add_u32 s{s_rb}, s{s_rb}, s{s_t0}
            ''')
            if st == 2:
                a(f'''
                s_sub_u32 s{s_t0}, s{s_g}, 32
                s_mul_i32 s{s_t0}, s{s_t0}, 144
                s_cmp_ge_u32 s{s_g}, 32
                s_cselect_b32 s{s_rb}, s{s_t0}, s{s_rb}
                s_cselect_b64 s[{s_m}:{s_m+1}], -1, 0
                ''')
            a(f'''
            s_mul_i32 s{s_rb}, s{s_rb}, 1152
            s_mul_i32 s{s_t0}, s{s_cb}, 192
            s_add_u32 s{s_rb}, s{s_rb}, s{s_t0}
            s_mul_i32 s{s_g}, s{s_g}, 3072
            ''')
            for i3 in range(3):
                src = vDm + i3
                if st == 2:
                    a(f'v_cndmask_b32 v{vdo}, v{vDm+i3}, v{vDe+i3}, s[{s_m}:{s_m+1}]')
                    src = vdo
                a(f'''
                s_add_u32 m0, s{s_g}, {i3*1024}
                s_nop 0
                buffer_load_dwordx4 v{src}, s[{SWO}:{SWO+3}], s{s_rb} offen lds
                ''')
                vm.append(f'W{st}')

    def oloads(i0):
        a(f'''
        s_mul_i32 s{s_t0}, s{s_gt}, 36
        s_mul_i32 s{s_t1}, s{s_kh}, 18
        s_add_u32 s{s_t0}, s{s_t0}, s{s_t1}
        s_add_u32 s{s_t0}, s{s_t0}, {i0}
        s_lshl_b32 s{s_t0}, s{s_t0}, 10
        s_add_u32 s{s_t0}, s{s_t0}, {WS_O}
        s_add_u32 s{s_t1}, s{s_t0}, 3072
        ''')
        for i in range(6):
            sreg = s_t0 if i < 3 else s_t1
            a(f'buffer_load_dwordx4 {vr(OF+4*(i0+i),4)}, v{vlin}, s[{SWS}:{SWS+3}], s{sreg} offen offset:{(i%3)*1024}')
            vm.append(f'O{i0+i}')

    for st in range(3):
        stage(st)
        oloads(6*st)
    a(f'''
    v_mul_u32_u24 v{vt}, 1152, v{v_t}
    v_lshl_add_u32 v{vt}, v{v_h}, 3, v{vt}
    v_lshlrev_b32 v{vt+1}, 3, v{v_h}
    s_mul_i32 s{s_t0}, s{s_cb}, 192
    s_mul_i32 s{s_t1}, s{s_kh}, 96
    s_add_u32 s{s_t0}, s{s_t0}, s{s_t1}
    s_mul_i32 s{s_t1}, s{s_gt}, {32*1152}
    s_add_u32 s{s_t1}, s{s_t1}, s{s_t0}
    ''')
    for j in range(6):
        a(f'buffer_load_dwordx2 {vr(XR+2*j,2)}, v{vt}, s[{SX}:{SX+3}], s{s_t1} offen offset:{16*j}')
        vm.append('X')
    for j in range(6):
        a(f'buffer_load_dwordx2 {vr(WR+2*j,2)}, v{vt+1}, s[{SWR}:{SWR+3}], s{s_t0} offen offset:{16*j}')
        vm.append('X')
    v_hoff = 15
    a(f'v_mov_b32 v{v_hoff}, v{vt}')
    s_hoff = 40
    a(f's_add_u32 s{s_hoff}, s{s_t1}, {WS_H}')

    def wait_for(tag):
        idx = max(i for i, t in enumerate(vm) if t == tag)
        return len(vm) - 1 - idx

    a(f'''
    v_bfe_u32 v{vt}, v{v_l}, 2, 2
    v_lshl_add_u32 v{vt}, v{v_h}, 3, v{vt}
    v_mul_u32_u24 v{vWa}, 192, v{vt}
    v_bfe_u32 v{vt}, v{v_l}, 4, 1
    v_lshl_add_u32 v{vWa}, v{vt}, 5, v{vWa}
    v_and_b32 v{vt}, 3, v{v_l}
    v_lshl_add_u32 v{vWa}, v{vt}, 3, v{vWa}
    s_mul_i32 s{s_t0}, s{s_kh}, {18*3072}
    v_add_u32 v{vWa}, s{s_t0}, v{vWa}
    ''')

    def reads(i, fb):
        for ct in range(3):
            for j in range(2):
                a(f'ds_read_b64_tr_b16 {vr(WF[fb]+4*ct+2*j,2)}, v{vWa} offset:{i*3072 + j*768 + ct*64}')

    stamp(a, 1)
    a(f's_waitcnt vmcnt({wait_for("W0")})')
    a('s_barrier')
    stamp(a, 2)
    reads(0, 0)
    for i in range(18):
        fb = i % 2
        if i < 17:
            if (i + 1) % 6 == 0:
                a(f's_waitcnt vmcnt({wait_for("W%d" % ((i+1)//6))})')
                a('s_barrier')
                stamp(a, 2 + (i+1)//6)
            reads(i+1, 1-fb)
            a(f's_waitcnt vmcnt({wait_for("O%d" % i)}) lgkmcnt(6)')
        else:
            a(f's_waitcnt vmcnt({wait_for("O%d" % i)}) lgkmcnt(0)')
        for ct in range(3):
            acc = ACC + 16*ct
            cc = '0' if i == 0 else vr(acc, 16)
            a(f'v_mfma_f32_32x32x16_bf16 {vr(acc,16)}, {vr(WF[fb]+4*ct,4)}, {vr(OF+4*i,4)}, {cc}')
    stamp(a, 5)
    SND, KEEP = OF, OF + 24
    a(f'''
    s_cmp_eq_u32 s{s_kh}, 1
    s_cselect_b64 s[{s_m}:{s_m+1}], -1, 0
    s_mul_i32 s{s_t0}, s{s_w}, 6144
    s_xor_b32 s{s_t1}, s{s_w}, 2
    s_mul_i32 s{s_t1}, s{s_t1}, 6144
    v_add_u32 v{vt}, s{s_t0}, v{vlin}
    v_add_u32 v{vt+1}, s{s_t1}, v{vlin}
    v_add_u32 v{vt}, {EX}, v{vt}
    v_add_u32 v{vt+1}, {EX}, v{vt+1}
    ''')
    for r in range(24):
        a(f'v_cndmask_b32 v{SND+r}, v{ACC+24+r}, v{ACC+r}, s[{s_m}:{s_m+1}]')
    for g in range(6):
        a(f'ds_write_b128 v{vt}, {vr(SND+4*g,4)} offset:{1024*g}')
    for r in range(24):
        a(f'v_cndmask_b32 v{KEEP+r}, v{ACC+r}, v{ACC+24+r}, s[{s_m}:{s_m+1}]')
    a('s_waitcnt lgkmcnt(0)')
    a('s_barrier')
    RCV = ACC
    for g in range(6):
        a(f'ds_read_b128 {vr(RCV+4*g,4)}, v{vt+1} offset:{1024*g}')
    v1, v2, v3 = vt+2, vt+3, vt+4
    a(f'''
    v_mov_b32 v{v1}, 0
    v_mov_b32 v{v2}, 0
    v_mov_b32 v{v3}, 0
    s_waitcnt vmcnt(0) lgkmcnt(0)
    ''')
    stamp(a, 6)
    HP = ACC + 24
    for g in range(6):
        for e in range(4):
            r = 4*g + e
            xr = XR + 2*g + e//2
            a(f'v_add_f32 v{KEEP+r}, v{KEEP+r}, v{RCV+r}')
        for k in range(2):
            a(f'v_cvt_pk_bf16_f32 v{vt+5}, v{KEEP+4*g+2*k}, v{KEEP+4*g+2*k+1}')
            xr = XR + 2*g + k
            a(f'''
            v_lshlrev_b32 v{KEEP+4*g+2*k}, 16, v{vt+5}
            v_and_b32 v{KEEP+4*g+2*k+1}, 0xffff0000, v{vt+5}
            v_lshlrev_b32 v{vt+6}, 16, v{xr}
            v_and_b32 v{vt+7}, 0xffff0000, v{xr}
            v_add_f32 v{KEEP+4*g+2*k}, v{KEEP+4*g+2*k}, v{vt+6}
            v_add_f32 v{KEEP+4*g+2*k+1}, v{KEEP+4*g+2*k+1}, v{vt+7}
            v_cvt_pk_bf16_f32 v{HP+2*g+k}, v{KEEP+4*g+2*k}, v{KEEP+4*g+2*k+1}
            v_lshlrev_b32 v{vt+6}, 16, v{HP+2*g+k}
            v_and_b32 v{vt+7}, 0xffff0000, v{HP+2*g+k}
            v_add_f32 v{v1}, v{v1}, v{vt+6}
            v_add_f32 v{v1}, v{v1}, v{vt+7}
            v_fmac_f32 v{v2}, v{vt+6}, v{vt+6}
            v_fmac_f32 v{v2}, v{vt+7}, v{vt+7}
            v_lshlrev_b32 v{vt+8}, 16, v{WR+2*g+k}
            v_and_b32 v{vt+9}, 0xffff0000, v{WR+2*g+k}
            v_fmac_f32 v{v3}, v{vt+6}, v{vt+8}
            v_fmac_f32 v{v3}, v{vt+7}, v{vt+9}
            ''')
        a(f'buffer_store_dwordx2 {vr(HP+2*g,2)}, v{v_hoff}, s[{SWS}:{SWS+3}], s{s_hoff} offen offset:{16*g}')
    a(f'''
    v_mov_b32 v{vt+5}, v{v3}
    v_permlane32_swap_b32 v{v1}, v{v2}
    v_permlane32_swap_b32 v{v3}, v{vt+5}
    v_add_f32 v{v1}, v{v1}, v{v2}
    v_add_f32 v{v3}, v{v3}, v{vt+5}
    v_lshlrev_b32 v{vt+6}, 13, v{v_h}
    v_lshl_add_u32 v{vt+6}, v{v_t}, 2, v{vt+6}
    s_lshl_b32 s{s_t0}, s{s_gt}, 7
    s_add_u32 s{s_t0}, s{s_t0}, {WS_STAT}
    s_add_u32 s{s_t1}, s{s_t0}, 16384
    buffer_atomic_add_f32 v{v1}, v{vt+6}, s[{SWS}:{SWS+3}], s{s_t0} offen
    s_mov_b64 exec, 0xffffffff
    buffer_atomic_add_f32 v{v3}, v{vt+6}, s[{SWS}:{SWS+3}], s{s_t1} offen
    ''')
    stamp(a, 7)
    stamps_flush(a, 2, SWS, s_w, 48)
    a(f'''
    {L}_end:
    s_endpgm
    ''')
    kernels.append((L, 192, 256, EX + 24576, 192, 100))

NFF = 144
NOUT = 64
def dpp_reduce(a, op, reg):
    for sh in (1, 2, 4, 8):
        a(f'{op}_dpp v{reg}, v{reg}, v{reg} row_shr:{sh} row_mask:0xf bank_mask:0xf bound_ctrl:0')
    a(f'{op}_dpp v{reg}, v{reg}, v{reg} row_bcast:15 row_mask:0xa bank_mask:0xf')
    a(f'{op}_dpp v{reg}, v{reg}, v{reg} row_bcast:31 row_mask:0xc bank_mask:0xf')

def k4(a):
    L = 'k4_ffn_kernel'
    begin(a, L)
    SG, SU, SD, SWS, SO, SWR = 16, 20, 24, 28, 32, 36
    s_w, s_t0, s_t1, s_fb, s_idx, s_c, s_swr, s_go, s_do, s_w1k = 40, 41, 42, 43, 44, 45, 46, 47, 48, 49
    v_l, v_t, v_h, vlin, vgu = 1, 2, 3, 4, 5
    vt = 6
    a(f"""
    s_cmp_ge_u32 s2, {NFF+NOUT}
    s_cbranch_scc1 {L}_end
    s_load_dwordx8 s[4:11], s[0:1], 32
    s_load_dwordx2 s[12:13], s[0:1], 64
    s_load_dwordx2 s[14:15], s[0:1], 80
    v_and_b32 v{v_l}, 63, v0
    v_lshrrev_b32 v{vt}, 6, v0
    v_and_b32 v{v_t}, 31, v0
    v_readfirstlane_b32 s{s_w}, v{vt}
    v_bfe_u32 v{v_h}, v0, 5, 1
    v_lshlrev_b32 v{vlin}, 4, v{v_l}
    s_and_b32 s{s_t0}, s2, 7
    s_mul_i32 s{s_fb}, s{s_t0}, 18
    s_lshr_b32 s{s_t0}, s2, 3
    s_add_u32 s{s_fb}, s{s_fb}, s{s_t0}
    v_lshrrev_b32 v{vt}, 2, v{v_l}
    s_lshl_b32 s{s_t0}, s{s_w}, 4
    v_add_u32 v{vt}, s{s_t0}, v{vt}
    v_mul_u32_u24 v{vt}, 9216, v{vt}
    v_and_b32 v{vt+1}, 3, v{v_l}
    v_lshl_add_u32 v{vgu}, v{vt+1}, 4, v{vt}
    s_lshl_b32 s{s_go}, s{s_fb}, 6
    s_lshl_b32 s{s_w1k}, s{s_w}, 10
    s_mul_i32 s{s_do}, s{s_fb}, 36864
    s_add_u32 s{s_do}, s{s_do}, s{s_w1k}
    v_lshlrev_b32 v{vt}, 4, v0
    v_lshlrev_b32 v{vt+1}, 2, v{v_l}
    s_waitcnt lgkmcnt(0)
    """)
    srd(a, SWS, 14, WS_SIZE)
    srd(a, SWR, 4, 1152)
    srd(a, SG, 6, 576*9216)
    srd(a, SU, 8, 576*9216)
    srd(a, SD, 10, 4608*1152)
    srd(a, SO, 12, 2048*1152)
    stamps_init(a); stamp(a, 0)
    a(f"""
    s_cmp_ge_u32 s2, {NFF}
    s_cbranch_scc1 {L}_out
    """)
    LG, LU, LD, LX, LR = 0, 40960, 81920, 122880, 124928
    ST = 24
    WRR = 36
    a(f"""
    s_mov_b32 s{s_t0}, {WS_STAT}
    s_mov_b32 s{s_t1}, {WS_STAT+8192}
    s_mov_b32 s{s_c}, {WS_STAT+16384}
    buffer_load_dwordx4 {vr(ST,4)}, v{vt}, s[{SWS}:{SWS+3}], s{s_t0} offen
    buffer_load_dwordx4 {vr(ST+4,4)}, v{vt}, s[{SWS}:{SWS+3}], s{s_t1} offen
    buffer_load_dwordx4 {vr(ST+8,4)}, v{vt}, s[{SWS}:{SWS+3}], s{s_c} offen
    """)
    for j in range(5):
        a(f'buffer_load_dword v{WRR+j}, v{vt+1}, s[{SWR}:{SWR+3}], 0 offen offset:{256*j}')

    def wdma(j, which):
        S_, LB, so, step, vo = {'g': (SG, LG, s_go, 128*9216, vgu), 'u': (SU, LU, s_go, 128*9216, vgu), 'd': (SD, LD, s_do, 8192, vlin)}[which]
        a(f"""
        s_add_u32 m0, s{s_w1k}, {LB + j*8192}
        s_add_u32 s{s_t0}, s{so}, {j*step}
        buffer_load_dwordx4 v{vo}, s[{S_}:{S_+3}], s{s_t0} offen lds
        """)
    for j in range(4):
        wdma(j, 'g'); wdma(j, 'u')
    stamp(a, 1)
    a('s_waitcnt vmcnt(8)')
    stamp(a, 2)
    v_swr, v_key = vt+2, vt+4
    a(f"""
    v_mov_b32 v{v_swr}, 0
    v_mov_b32 v{vt+3}, 0x3f803f80
    """)
    for j in range(5):
        a(f'v_dot2c_f32_bf16 v{v_swr}, v{WRR+j}, v{vt+3}')
    dpp_reduce(a, 'v_add_f32', v_swr)
    a(f"""
    v_lshlrev_b32 v{vt+10}, 2, v0
    v_sub_u32 v{vt+10}, 2047, v{vt+10}
    v_mov_b32 v{v_key}, 0
    s_mov_b32 s{s_c}, 0xfffff800
    v_readlane_b32 s{s_swr}, v{v_swr}, 63
    """)
    for e in range(4):
        a(f"""
        v_mul_f32 v{vt+5}, {f32(1.0/576)}, v{ST+e}
        v_mul_f32 v{vt+6}, {f32(1.0/576)}, v{ST+4+e}
        v_fma_f32 v{vt+6}, -v{vt+5}, v{vt+5}, v{vt+6}
        v_max_f32 v{vt+6}, 0, v{vt+6}
        v_add_f32 v{vt+6}, {f32(1e-5)}, v{vt+6}
        v_rsq_f32 v{vt+6}, v{vt+6}
        v_fma_f32 v{vt+5}, -v{vt+5}, s{s_swr}, v{ST+8+e}
        v_mul_f32 v{vt+5}, v{vt+5}, v{vt+6}
        v_ashrrev_i32 v{vt+6}, 31, v{vt+5}
        v_or_b32 v{vt+6}, 0x80000000, v{vt+6}
        v_xor_b32 v{vt+5}, v{vt+5}, v{vt+6}
        v_subrev_u32 v{vt+6}, {e}, v{vt+10}
        v_and_or_b32 v{vt+5}, v{vt+5}, s{s_c}, v{vt+6}
        v_max_u32 v{v_key}, v{v_key}, v{vt+5}
        """)
    dpp_reduce(a, 'v_max_u32', v_key)
    a(f"""
    s_lshl_b32 s{s_t0}, s{s_w}, 2
    s_add_u32 s{s_t0}, s{s_t0}, {LR}
    v_mov_b32 v{vt+9}, s{s_t0}
    s_mov_b32 exec_lo, 0
    s_mov_b32 exec_hi, 0x80000000
    ds_write_b32 v{vt+9}, v{v_key}
    s_mov_b64 exec, -1
    v_mov_b32 v{vt+9}, {LR}
    s_waitcnt lgkmcnt(0)
    s_barrier
    ds_read_b128 {vr(ST,4)}, v{vt+9}
    ds_read_b128 {vr(ST+4,4)}, v{vt+9} offset:16
    v_min_u32 v{vt}, 143, v0
    v_lshlrev_b32 v{vt}, 3, v{vt}
    v_mov_b32 v{vt+1}, 0
    s_waitcnt lgkmcnt(0)
    v_max3_u32 v{ST}, v{ST}, v{ST+1}, v{ST+2}
    v_max3_u32 v{ST+3}, v{ST+3}, v{ST+4}, v{ST+5}
    v_max3_u32 v{ST}, v{ST}, v{ST+6}, v{ST+7}
    v_max_u32 v{ST}, v{ST}, v{ST+3}
    v_readfirstlane_b32 s{s_idx}, v{ST}
    s_and_b32 s{s_idx}, s{s_idx}, 0x7ff
    s_sub_u32 s{s_idx}, 2047, s{s_idx}
    """)
    stamp(a, 3)
    HR = 24
    a(f"""
    s_mul_i32 s{s_t0}, s{s_idx}, 1152
    s_add_u32 s{s_t0}, s{s_t0}, {WS_H}
    s_lshl_b32 s{s_t1}, s{s_idx}, 2
    s_add_u32 s{s_t1}, s{s_t1}, {WS_STAT}
    s_add_u32 s{s_c}, s{s_t1}, 8192
    buffer_load_dwordx2 v[{HR}:{HR+1}], v{vt}, s[{SWS}:{SWS+3}], s{s_t0} offen
    buffer_load_dword v{HR+2}, v{vt+1}, s[{SWS}:{SWS+3}], s{s_t1} offen
    buffer_load_dword v{HR+3}, v{vt+1}, s[{SWS}:{SWS+3}], s{s_c} offen
    s_add_u32 s{s_c}, s{s_c}, 8192
    buffer_load_dword v{HR+4}, v{vt+1}, s[{SWS}:{SWS+3}], s{s_c} offen
    """)
    wdma(4, 'g'); wdma(4, 'u')
    for j in range(5):
        wdma(j, 'd')
    a('s_waitcnt vmcnt(7)')
    stamp(a, 4)
    vm_, vri, vsb = 30, 31, 32
    ln_scalars(a, HR+2, HR+3, vm_, vri, vsb)
    for k in range(2):
        a(f"""
        v_lshlrev_b32 v{vt+5}, 16, v{HR+k}
        v_and_b32 v{vt+6}, 0xffff0000, v{HR+k}
        v_sub_f32 v{vt+5}, v{vt+5}, v{vm_}
        v_sub_f32 v{vt+6}, v{vt+6}, v{vm_}
        v_cvt_pk_bf16_f32 v{vt+7}, v{vt+5}, v{vt+6}
        v_lshlrev_b32 v{vt+5}, 16, v{vt+7}
        v_and_b32 v{vt+6}, 0xffff0000, v{vt+7}
        v_mul_f32 v{vt+5}, v{vt+5}, v{vri}
        v_mul_f32 v{vt+6}, v{vt+6}, v{vri}
        v_cvt_pk_bf16_f32 v{34+k}, v{vt+5}, v{vt+6}
        """)
    a(f"""
    v_add_u32 v{vt}, {LX}, v{vt}
    ds_write_b64 v{vt}, v[34:35]
    s_or_b32 s{s_t0}, s2, s{s_w}
    s_cmp_lg_u32 s{s_t0}, 0
    s_cbranch_scc1 {L}_nosel
    v_mov_b32 v36, s{s_idx}
    v_mov_b32 v37, v{vm_}
    v_mov_b32 v38, v{vri}
    v_fma_f32 v39, -v{vm_}, s{s_swr}, v{HR+4}
    v_mul_f32 v39, v39, v{vri}
    s_mov_b32 s{s_t0}, {WS_SEL}
    s_mov_b64 exec, 1
    buffer_store_dwordx4 v[36:39], v{vt+1}, s[{SWS}:{SWS+3}], s{s_t0} offen
    s_mov_b64 exec, -1
    {L}_nosel:
    """)
    vA, vB = vt, vt+1
    XFR = 40
    BFR = 76
    AC = 112
    a(f"""
    s_lshr_b32 s{s_t0}, s{s_w}, 1
    s_mul_i32 s{s_t1}, s{s_t0}, {9*32}
    s_add_u32 s{s_t1}, s{s_t1}, {LX}
    v_lshl_add_u32 v{vA}, v{v_h}, 4, s{s_t1}
    s_mul_i32 s{s_t0}, s{s_t0}, {9*1024}
    s_and_b32 s{s_t1}, s{s_w}, 1
    s_mul_i32 s{s_t1}, s{s_t1}, {LU}
    s_add_u32 s{s_t0}, s{s_t0}, s{s_t1}
    v_bfe_u32 v{vt+2}, v{v_l}, 2, 2
    v_lshl_add_u32 v{vt+2}, v{v_h}, 3, v{vt+2}
    v_lshlrev_b32 v{vB}, 6, v{vt+2}
    v_bfe_u32 v{vt+3}, v{v_l}, 4, 1
    v_lshl_add_u32 v{vB}, v{vt+3}, 5, v{vB}
    v_and_b32 v{vt+4}, 3, v{v_l}
    v_lshl_add_u32 v{vB}, v{vt+4}, 3, v{vB}
    v_add_u32 v{vB}, s{s_t0}, v{vB}
    s_waitcnt vmcnt(0) lgkmcnt(0)
    s_barrier
    """)
    for i in range(9):
        a(f'ds_read_b128 {vr(XFR+4*i,4)}, v{vA} offset:{32*i}')
        a(f'ds_read_b64_tr_b16 {vr(BFR+4*i,2)}, v{vB} offset:{1024*i}')
        a(f'ds_read_b64_tr_b16 {vr(BFR+4*i+2,2)}, v{vB} offset:{1024*i+256}')
        if i >= 3:
            k = i - 3
            a('s_waitcnt lgkmcnt(9)')
            a(f'v_mfma_f32_32x32x16_bf16 {vr(AC,16)}, {vr(XFR+4*k,4)}, {vr(BFR+4*k,4)}, {"0" if k == 0 else vr(AC,16)}')
    DB = 128
    DA = 152
    a(f"""
    v_mul_u32_u24 v{vB}, 1152, v{vt+2}
    v_lshl_add_u32 v{vB}, v{vt+3}, 5, v{vB}
    v_lshl_add_u32 v{vB}, v{vt+4}, 3, v{vB}
    s_lshl_b32 s{s_t0}, s{s_w}, 6
    s_add_u32 s{s_t0}, s{s_t0}, {LD}
    v_add_u32 v{vB}, s{s_t0}, v{vB}
    """)
    for k in range(6, 9):
        a(f's_waitcnt lgkmcnt({3*(8-k)})')
        a(f'v_mfma_f32_32x32x16_bf16 {vr(AC,16)}, {vr(XFR+4*k,4)}, {vr(BFR+4*k,4)}, {vr(AC,16)}')
    for j in range(3):
        for s_ in range(2):
            for jj in range(2):
                a(f'ds_read_b64_tr_b16 {vr(DB+8*j+4*s_+2*jj,2)}, v{vB} offset:{(16*s_+4*jj)*1152 + j*512}')
    stamp(a, 5)
    a(f"""
    s_lshl_b32 s{s_t0}, s{s_w}, 7
    s_add_u32 s{s_t0}, s{s_t0}, {LR+64}
    v_lshl_add_u32 v{vt+5}, v{v_t}, 2, s{s_t0}
    ds_write_b32 v{vt+5}, v{AC}
    v_lshlrev_b32 v{vt+5}, 2, v{v_t}
    v_add_u32 v{vt+5}, {LR+64}, v{vt+5}
    s_waitcnt lgkmcnt(0)
    s_barrier
    """)
    for j in range(8):
        a(f'ds_read_b32 v{24+j}, v{vt+5} offset:{128*j}')
    a(f"""
    s_mul_i32 s{s_t1}, s{s_fb}, 2304
    s_add_u32 s{s_t1}, s{s_t1}, {WS_Y}
    s_lshl_b32 s{s_t0}, s{s_w}, 7
    s_add_u32 s{s_t1}, s{s_t1}, s{s_t0}
    s_lshl_b32 s{s_t0}, s{s_w}, 6
    s_add_u32 s{s_t0}, s{s_t0}, {LR+1536}
    v_lshlrev_b32 v{vt+5}, 1, v{v_t}
    v_add_u32 v{vt+5}, s{s_t0}, v{vt+5}
    v_lshl_add_u32 v{vA}, v{v_h}, 4, s{s_t0}
    s_waitcnt lgkmcnt(0)
    v_add_f32 v24, v24, v26
    v_add_f32 v25, v25, v27
    v_add_f32 v28, v28, v30
    v_add_f32 v29, v29, v31
    v_add_f32 v24, v24, v28
    v_add_f32 v25, v25, v29
    """)
    bf16_round(a, 24, 24)
    bf16_round(a, 25, 25)
    a(f"""
    v_mul_f32 v26, {f32(-math.log2(math.e))}, v24
    v_exp_f32 v26, v26
    v_add_f32 v26, 1.0, v26
    v_rcp_f32 v26, v26
    v_mul_f32 v26, v24, v26
    """)
    bf16_round(a, 26, 26)
    a(f"""
    v_mul_f32 v26, v26, v25
    v_cvt_pk_bf16_f32 v26, v26, v26
    ds_write_b16 v{vt+5}, v26
    v_lshlrev_b32 v{vt+5}, 2, v{v_t}
    s_waitcnt lgkmcnt(0)
    ds_read_b128 {vr(XFR,4)}, v{vA}
    ds_read_b128 {vr(XFR+4,4)}, v{vA} offset:32
    s_waitcnt lgkmcnt(0)
    """)
    for j in range(3):
        a(f'v_mfma_f32_32x32x16_bf16 {vr(DA+16*j,16)}, {vr(XFR,4)}, {vr(DB+8*j,4)}, 0')
        a(f'v_mfma_f32_32x32x16_bf16 {vr(DA+16*j,16)}, {vr(XFR+4,4)}, {vr(DB+8*j+4,4)}, {vr(DA+16*j,16)}')
    a('s_mov_b64 exec, 0xffffffff')
    for j in range(2):
        a(f'buffer_store_dword v{DA+16*j}, v{vt+5}, s[{SWS}:{SWS+3}], s{s_t1} offen offset:{1024*j}')
    a(f"""
    s_cmp_gt_u32 s{s_w}, 1
    s_cbranch_scc1 {L}_fin
    buffer_store_dword v{DA+32}, v{vt+5}, s[{SWS}:{SWS+3}], s{s_t1} offen offset:2048
    {L}_fin:
    """)
    stamp(a, 7)
    stamps_flush(a, 3, SWS, s_w, 24)
    a('s_endpgm')
    a.label(f'{L}_out')
    HB = 32
    SB = 52
    a(f"""
    s_sub_u32 s{s_t0}, s2, {NFF}
    s_mul_i32 s{s_t1}, s{s_t0}, {32*1152}
    s_add_u32 s{s_c}, s{s_t1}, {WS_H}
    s_lshl_b32 s{s_t0}, s{s_t0}, 7
    s_add_u32 s{s_t0}, s{s_t0}, {WS_STAT}
    s_add_u32 s{s_fb}, s{s_t0}, 8192
    """)
    for j in range(5):
        a(f"""
        v_add_u32 v{vt}, {512*j}, v0
        v_min_u32 v{vt}, 2303, v{vt}
        v_lshlrev_b32 v{vt+10+j}, 4, v{vt}
        v_mul_u32_u24 v{vt+1}, 3641, v{vt}
        v_lshrrev_b32 v{vt+1}, 18, v{vt+1}
        v_lshlrev_b32 v{vt+1}, 2, v{vt+1}
        buffer_load_dwordx4 {vr(HB+4*j,4)}, v{vt+10+j}, s[{SWS}:{SWS+3}], s{s_c} offen
        buffer_load_dword v{SB+2*j}, v{vt+1}, s[{SWS}:{SWS+3}], s{s_t0} offen
        buffer_load_dword v{SB+2*j+1}, v{vt+1}, s[{SWS}:{SWS+3}], s{s_fb} offen
        """)
    OB = 64
    for j in range(5):
        a(f's_waitcnt vmcnt({3*(4-j) + j})')
        ln_scalars(a, SB+2*j, SB+2*j+1, vt, vt+1, vt+2)
        for k in range(4):
            hh = HB+4*j+k
            a(f"""
            v_lshlrev_b32 v{vt+3}, 16, v{hh}
            v_and_b32 v{vt+4}, 0xffff0000, v{hh}
            v_sub_f32 v{vt+5}, v{vt+3}, v{vt}
            v_sub_f32 v{vt+6}, v{vt+4}, v{vt}
            v_cvt_pk_bf16_f32 v{vt+7}, v{vt+5}, v{vt+6}
            v_lshlrev_b32 v{vt+5}, 16, v{vt+7}
            v_and_b32 v{vt+6}, 0xffff0000, v{vt+7}
            v_mul_f32 v{vt+5}, v{vt+5}, v{vt+1}
            v_mul_f32 v{vt+6}, v{vt+6}, v{vt+1}
            v_cvt_pk_bf16_f32 v{vt+7}, v{vt+5}, v{vt+6}
            v_lshlrev_b32 v{vt+5}, 16, v{vt+7}
            v_and_b32 v{vt+6}, 0xffff0000, v{vt+7}
            v_add_f32 v{vt+5}, v{vt+5}, v{vt+3}
            v_add_f32 v{vt+6}, v{vt+6}, v{vt+4}
            v_cvt_pk_bf16_f32 v{OB+4*j+k}, v{vt+5}, v{vt+6}
            """)
        a(f'buffer_store_dwordx4 {vr(OB+4*j,4)}, v{vt+10+j}, s[{SO}:{SO+3}], s{s_t1} offen')
    stamp(a, 7)
    stamps_flush(a, 3, SWS, s_w, 100)
    a(f"""
    {L}_end:
    s_endpgm
    """)
    kernels.append((L, NFF+NOUT, 512, LR + 2048, 200, 100))

def k5(a):
    L = 'k5_final_kernel'
    begin(a, L)
    SWS, SO = 12, 16
    s_t0, s_t1, s_idx = 20, 21, 22
    a(f'''
    s_cmp_ge_u32 s2, 18
    s_cbranch_scc1 {L}_end
    s_load_dwordx2 s[4:5], s[0:1], 64
    s_load_dwordx2 s[6:7], s[0:1], 80
    v_and_b32 v1, 31, v0
    v_lshrrev_b32 v2, 5, v0
    v_mul_u32_u24 v3, {18*2304}, v2
    v_lshl_add_u32 v3, v1, 2, v3
    v_mov_b32 v4, 0
    s_waitcnt lgkmcnt(0)
    ''')
    srd(a, SO, 4, 2048*1152)
    srd(a, SWS, 6, WS_SIZE)
    if DIAG and OPT.get('report'):
        a(f'''
        s_cmp_lg_u32 s2, 0
        s_cbranch_scc1 {L}_norep
        s_load_dwordx2 s[28:29], s[0:1], 72
        s_memrealtime s[30:31]
        s_waitcnt lgkmcnt(0)
        s_sub_u32 s32, s28, 0
        s_subb_u32 s33, s29, 0
        s_mov_b32 s34, 64
        s_mov_b32 s35, 0x00020000
        v_lshrrev_b32 v40, 2, v0
        v_mul_u32_u24 v40, {0x28000}, v40
        v_and_b32 v41, 3, v0
        v_mov_b32 v42, 0
        v_cmp_eq_u32 vcc, 1, v41
        v_cndmask_b32 v42, v42, 16, vcc
        v_cmp_eq_u32 vcc, 2, v41
        v_cndmask_b32 v42, v42, 24, vcc
        v_cmp_eq_u32 vcc, 3, v41
        v_cndmask_b32 v42, v42, 56, vcc
        v_add_u32 v40, v40, v42
        s_mov_b32 s36, {WS_DIAG + 5*512}
        buffer_load_dword v43, v40, s[{SWS}:{SWS+3}], s36 offen
        v_lshlrev_b32 v41, 2, v0
        s_waitcnt vmcnt(0)
        v_cmp_eq_u32 vcc, 14, v0
        v_mov_b32 v44, s30
        v_cndmask_b32 v43, v43, v44, vcc
        buffer_store_dword v43, v41, s[32:35], 0 offen
        {L}_norep:
        ''')
    a(f'''
    s_mov_b32 s{s_t1}, {WS_SEL}
    buffer_load_dwordx4 v[8:11], v4, s[{SWS}:{SWS+3}], s{s_t1} offen
    s_lshl_b32 s{s_t0}, s2, 7
    s_add_u32 s{s_t0}, s{s_t0}, {WS_Y}
    ''')
    for j in range(18):
        a(f'buffer_load_dword v{16+j}, v3, s[{SWS}:{SWS+3}], s{s_t0} offen')
        a(f's_add_u32 s{s_t0}, s{s_t0}, 2304')
    a(f'''
    s_waitcnt vmcnt(18)
    v_min_u32 v8, 2047, v8
    v_mul_u32_u24 v5, 1152, v8
    v_lshl_add_u32 v5, v1, 1, v5
    s_lshl_b32 s{s_t1}, s2, 6
    s_add_u32 s{s_t0}, s{s_t1}, {WS_H}
    buffer_load_ushort v12, v5, s[{SWS}:{SWS+3}], s{s_t0} offen
    s_waitcnt vmcnt(1)
    ''')
    for j in range(1, 18):
        a(f'v_add_f32 v16, v16, v{16+j}')
    a(f'''
    v_lshlrev_b32 v6, 2, v0
    ds_write_b32 v6, v16
    s_waitcnt lgkmcnt(0)
    s_barrier
    v_lshlrev_b32 v6, 2, v1
    ''')
    for j in range(8):
        a(f'ds_read_b32 v{16+j}, v6 offset:{128*j}')
    a('s_waitcnt vmcnt(0) lgkmcnt(0)')
    for j in range(1, 8):
        a(f'v_add_f32 v16, v16, v{16+j}')
    bf16_round(a, 16, 16)
    bf16_round(a, 11, 11)
    a(f'''
    v_mul_f32 v13, {f32(-math.log2(math.e))}, v11
    v_exp_f32 v13, v13
    v_add_f32 v13, 1.0, v13
    v_rcp_f32 v13, v13
    ''')
    bf16_round(a, 13, 13)
    a('v_mul_f32 v16, v16, v13')
    bf16_round(a, 16, 16)
    a(f'''
    v_lshlrev_b32 v12, 16, v12
    v_sub_f32 v14, v12, v9
    ''')
    bf16_round(a, 14, 14)
    a('v_mul_f32 v14, v14, v10')
    bf16_round(a, 14, 14)
    a('v_add_f32 v14, v14, v16')
    bf16_round(a, 14, 14)
    a(f'''
    v_add_f32 v14, v14, v12
    v_cvt_pk_bf16_f32 v14, v14, v14
    v_cmp_gt_u32 vcc, 32, v0
    s_and_saveexec_b64 s[24:25], vcc
    s_cbranch_execz {L}_end
    buffer_store_short v14, v5, s[{SO}:{SO+3}], s{s_t1} offen
    {L}_end:
    s_endpgm
    ''')
    kernels.append((L, 18, 256, 1024, 64, 64))


def build(extra_empty=0):
    a = Asm()
    a.raw('.amdgcn_target "amdgcn-amd-amdhsa--gfx950"')
    a.raw('.text')
    k1(a); k2(a); k3(a); k4(a); k5(a)
    nk = len(kernels)
    a.raw('code_end_marker:')
    a('s_endpgm')
    if extra_empty:
        begin(a, 'empty_kernel')
        a('s_endpgm')
        kernels.append(('empty_kernel', 256, 256, 0, 8, 16))
    body = a.render()
    hdr = ''
    for (lab, grid, block, lds, vg, sg) in kernels[:nk]:
        hdr += f'; @launch kernel={lab} grid=({grid},1,1) block=({block},1,1) lds={lds}\n'
    for i in range(extra_empty):
        hdr += f'; @launch kernel=empty_kernel grid=(256,1,1) block=(256,1,1) lds=0\n'
    desc = '.section .rodata,"a"\n'
    for (lab, grid, block, lds, vg, sg) in kernels:
        desc += f'''.p2align 6
.amdhsa_kernel {lab}
  .amdhsa_next_free_vgpr {vg}
  .amdhsa_next_free_sgpr {sg}
  .amdhsa_accum_offset {(vg+3)//4*4}
  .amdhsa_group_segment_fixed_size 0
  .amdhsa_kernarg_size 88
  .amdhsa_user_sgpr_count 2
  .amdhsa_user_sgpr_kernarg_segment_ptr 1
  .amdhsa_system_sgpr_workgroup_id_x 1
  .amdhsa_float_denorm_mode_32 3
.end_amdhsa_kernel
'''
    return hdr + body + desc

if __name__ == '__main__':
    if len(sys.argv) > 3 and sys.argv[3] == 'diag':
        DIAG = True
    if len(sys.argv) > 3 and sys.argv[3] == 'diagc':
        DIAG = 2
    out = sys.argv[1] if len(sys.argv) > 1 else f'cdna_kernels/{NAME}.s'
    open(out, 'w').write(build(int(sys.argv[2]) if len(sys.argv) > 2 else 0))
    print('wrote', out)
```

```python
import sys, struct, math
from asmlib import Asm

NAME = 'sequential_preLN__mha_block__moe_arch_mod__prompt'

CHUNK = 19456
HEADKV = 8 * CHUNK
WS_KV = 0
WS_Q = 0x500000
HEADQ = 73728
WS_O = 0x800000
WS_H = 0xB00000
WS_STAT = 0xE00000
WS_SEL = 0xE08000
WS_Y = 0xE10000
WS_SIZE = 0x1100000

def f32(x):
    return '0x%08x' % struct.unpack('<I', struct.pack('<f', x))[0]

CQ = (18 ** -0.5) * math.log2(math.e)

def srd(a, d, lo, nbytes):
    a(f'''
    s_mov_b32 s{d}, s{lo}
    s_mov_b32 s{d+1}, s{lo+1}
    s_mov_b32 s{d+2}, {nbytes}
    s_mov_b32 s{d+3}, 0x00020000
    ''')

def vr(b, n):
    return f'v[{b}:{b+n-1}]' if n > 1 else f'v{b}'

def bf16_round(a, dst, src):
    a(f'v_cvt_pk_bf16_f32 v{dst}, v{src}, v{src}')
    a(f'v_lshlrev_b32 v{dst}, 16, v{dst}')

def ln_scalars(a, vsum, vsq, vm, vrinv, vt):
    a(f'''
    v_mul_f32 v{vm}, {f32(1.0/576)}, v{vsum}
    v_mul_f32 v{vt}, {f32(1.0/576)}, v{vsq}
    v_fma_f32 v{vt}, -v{vm}, v{vm}, v{vt}
    v_max_f32 v{vt}, 0, v{vt}
    ''')
    bf16_round(a, vt, vt)
    a(f'v_add_f32 v{vt}, {f32(1e-5)}, v{vt}')
    bf16_round(a, vt, vt)
    a(f'v_sqrt_f32 v{vt}, v{vt}')
    bf16_round(a, vt, vt)
    a(f'v_rcp_f32 v{vrinv}, v{vt}')
    bf16_round(a, vm, vm)

kernels = []
DIAG = False
WS_DIAG = 0xF00000
ST0 = 80

import os
OPT = dict(kv.split('=') for kv in os.environ.get('OPT', '').split(',') if kv)

def stamp(a, i, cyc=False):
    if DIAG:
        a(f'{"s_memtime" if (DIAG == 2 or cyc) else "s_memrealtime"} s[{ST0+2*i}:{ST0+2*i+1}]')

def stamps_init(a):
    if DIAG:
        for i in range(16):
            a(f's_mov_b32 s{ST0+i}, 0')

def stamps_flush(a, kidx, sws, s_w, vtmp):
    if not DIAG:
        return
    a(f'''
    s_waitcnt lgkmcnt(0)
    s_lshl_b32 s96, s2, 9
    s_lshl_b32 s97, s{s_w}, 6
    s_add_u32 s96, s96, s97
    s_add_u32 s96, s96, {WS_DIAG + kidx*0x28000}
    s_mov_b64 exec, 1
    v_mov_b32 v{vtmp+4}, 0
    ''')
    for j in range(4):
        for k in range(4):
            a(f'v_mov_b32 v{vtmp+k}, s{ST0+4*j+k}')
        a(f'buffer_store_dwordx4 v[{vtmp}:{vtmp+3}], v{vtmp+4}, s[{sws}:{sws+3}], s96 offen offset:{16*j}')
        a('s_nop 1')

def begin(a, label):
    a.raw('.p2align 8')
    a.raw(f'.globl {label}')
    a.raw(f'.type {label},@function')
    a.label(label)

def k1(a):
    L = 'k1_qkv_kernel'
    begin(a, L)
    BUF = 32768
    EXA = 131072
    SX, SW, SWS = 12, 16, 20
    s_cb, s_tb, s_w, s_w1k, s_xb, s_wb, s_t0, s_t1 = 24, 25, 26, 27, 28, 29, 30, 31
    s_wmask = 32
    s_m = 34
    s_c, s_lds, s_xo, s_wo, s_wp, s_cp, s_a, s_b = 36, 37, 38, 39, 40, 41, 42, 43
    s_ub, s_uh, s_us, s_up = 44, 47, 50, 53
    s_tok = 56
    s_off = 66
    s_hs2, s_sc2, s_pt2, s_g, s_ct = 68, 69, 70, 71, 72
    s_eoff = 4
    v_l, v_t, v_h = 1, 2, 3
    vX, vW = 4, 5
    vXa, vXb, vWa = 6, 8, 10
    v_sq, v_ws, v_one = 12, 13, 14
    v_sq2, v_ws2 = 56, 57
    vt = 16
    XF = [24, 32]
    WF = [40, 48]
    ACC = 64
    ADDR = list(range(vXa, vXa+6))
    a(f"""
    s_cmp_ge_u32 s2, 256
    s_cbranch_scc1 {L}_end
    s_load_dwordx4 s[4:7], s[0:1], 0
    s_load_dwordx2 s[8:9], s[0:1], 80
    s_and_b32 s10, s2, 7
    s_lshr_b32 s11, s2, 3
    s_and_b32 s{s_cb}, s10, 3
    s_lshl_b32 s{s_cb}, s{s_cb}, 2
    s_and_b32 s{s_t0}, s11, 3
    s_add_u32 s{s_cb}, s{s_cb}, s{s_t0}
    s_lshr_b32 s{s_tb}, s10, 2
    s_lshl_b32 s{s_tb}, s{s_tb}, 3
    s_lshr_b32 s{s_t0}, s11, 2
    s_add_u32 s{s_tb}, s{s_tb}, s{s_t0}
    v_and_b32 v{v_l}, 63, v0
    v_lshrrev_b32 v{vt}, 6, v0
    v_and_b32 v{v_t}, 31, v0
    v_readfirstlane_b32 s{s_w}, v{vt}
    v_bfe_u32 v{v_h}, v0, 5, 1
    s_lshl_b32 s{s_w1k}, s{s_w}, 10
    s_mul_i32 s{s_xb}, s{s_tb}, {128*1152}
    s_mul_i32 s{s_wb}, s{s_cb}, 216
    s_and_b32 s{s_wp}, s{s_w}, 1
    s_bfe_u32 s{s_cp}, s{s_w}, 0x10001
    s_lshr_b32 s{s_g}, s{s_w}, 2
    s_xor_b32 s{s_ct}, s{s_wp}, s{s_g}
    s_lshl_b32 s{s_t0}, s{s_cp}, 1
    s_add_u32 s{s_ct}, s{s_ct}, s{s_t0}
    """)
    a(f"""
    v_lshrrev_b32 v{vt}, 3, v{v_l}
    s_lshl_b32 s{s_t0}, s{s_w}, 3
    v_add_u32 v{vt}, s{s_t0}, v{vt}
    v_mul_u32_u24 v{vX}, 1152, v{vt}
    s_lshl_b32 s{s_t0}, s{s_wp}, 2
    v_lshrrev_b32 v{vt}, 4, v{v_l}
    v_add_u32 v{vt+1}, s{s_t0}, v{vt}
    v_and_b32 v{vt+2}, 7, v{v_l}
    v_xor_b32 v{vt+2}, v{vt+2}, v{vt+1}
    v_lshl_add_u32 v{vX}, v{vt+2}, 4, v{vX}
    s_lshl_b32 s{s_t0}, s{s_w}, 2
    v_add_u32 v{vt+1}, s{s_t0}, v{vt}
    v_mul_u32_u24 v{vW}, 3456, v{vt+1}
    v_and_b32 v{vt+2}, 15, v{v_l}
    v_lshlrev_b32 v{vt+3}, 2, v{vt}
    v_xor_b32 v{vt+2}, v{vt+2}, v{vt+3}
    v_lshl_add_u32 v{vW}, v{vt+2}, 4, v{vW}
    v_cmp_gt_u32 s[{s_wmask}:{s_wmask+1}], 14, v{vt+2}
    s_waitcnt lgkmcnt(0)
    """)
    srd(a, SX, 4, 2048*1152)
    srd(a, SW, 6, 576*3456)
    srd(a, SWS, 8, WS_SIZE)
    stamps_init(a); stamp(a, 0)

    def dma(j):
        a(f"""
        s_mov_b64 exec, s[{s_wmask}:{s_wmask+1}]
        s_add_u32 m0, s{s_lds}, {16384 + j*8192}
        s_add_u32 s{s_t0}, s{s_wo}, {32*j*3456}
        buffer_load_dwordx4 v{vW}, s[{SW}:{SW+3}], s{s_t0} offen lds
        s_mov_b64 exec, -1
        s_add_u32 m0, s{s_lds}, {j*8192}
        s_add_u32 s{s_t0}, s{s_xo}, {j*64*1152}
        buffer_load_dwordx4 v{vX}, s[{SX}:{SX+3}], s{s_t0} offen lds
        """)

    a(f"""
    s_mov_b32 s{s_lds}, s{s_w1k}
    s_mov_b32 s{s_xo}, s{s_xb}
    s_mov_b32 s{s_wo}, s{s_wb}
    s_mov_b32 s{s_c}, 0
    {L}_pro:
    """)
    dma(0); dma(1)
    if not OPT.get('nopf1'):
        a(f"""
        s_cmp_lg_u32 s{s_c}, 0
        s_cbranch_scc1 {L}_nopf
        s_lshr_b32 s{s_t0}, s10, 2
        s_mul_i32 s{s_t0}, s{s_t0}, {1024*1152}
        s_mul_i32 s{s_t1}, s11, {576*64}
        s_add_u32 s{s_t0}, s{s_t0}, s{s_t1}
        v_lshlrev_b32 v{vt}, 6, v0
        buffer_load_dword v{vt+7}, v{vt}, s[{SX}:{SX+3}], s{s_t0} offen
        s_cmp_lg_u32 s{s_w}, 0
        s_cbranch_scc1 {L}_pfw
        s_add_u32 s{s_t0}, s{s_t0}, {512*64}
        buffer_load_dword v{vt+7}, v{vt}, s[{SX}:{SX+3}], s{s_t0} offen
        s_branch {L}_nopf
        {L}_pfw:
        v_subrev_u32 v{vt}, 64, v0
        v_min_u32 v{vt}, 287, v{vt}
        v_lshrrev_b32 v{vt+1}, 4, v{vt}
        v_and_b32 v{vt}, 15, v{vt}
        v_mul_u32_u24 v{vt+1}, 3456, v{vt+1}
        v_lshl_add_u32 v{vt}, v{vt}, 6, v{vt+1}
        s_and_b32 s{s_t0}, s10, 3
        s_mul_i32 s{s_t0}, s{s_t0}, 864
        s_and_b32 s{s_t0}, s{s_t0}, 0xffffffc0
        s_mul_i32 s{s_t1}, s11, {18*3456}
        s_add_u32 s{s_t0}, s{s_t0}, s{s_t1}
        buffer_load_dword v{vt+7}, v{vt}, s[{SW}:{SW+3}], s{s_t0} offen
        {L}_nopf:
        """)
    a(f"""
    s_add_u32 s{s_lds}, s{s_lds}, {BUF}
    s_add_u32 s{s_xo}, s{s_xo}, 128
    s_add_u32 s{s_wo}, s{s_wo}, {64*3456}
    s_add_u32 s{s_c}, s{s_c}, 1
    s_cmp_lt_u32 s{s_c}, 3
    s_cbranch_scc1 {L}_pro
    """)
    a(f"""
    v_and_b32 v{vt}, 3, v{v_l}
    v_lshlrev_b32 v{vt}, 2, v{vt}
    v_xor_b32 v{vt}, 14, v{vt}
    v_lshlrev_b32 v{vt}, 4, v{vt}
    v_lshl_add_u32 v{vt}, v{v_l}, 8, v{vt}
    s_and_b32 s{s_t0}, s{s_w}, 3
    s_lshl_b32 s{s_t0}, s{s_t0}, 15
    v_add_u32 v{vt+1}, s{s_t0}, v{vt}
    v_mov_b32 v{vt+2}, 0x3f80
    v_mov_b32 v{vt+3}, 0
    ds_write_b64 v{vt+1}, v[{vt+2}:{vt+3}] offset:16384
    v_mov_b32 v{v_one}, 0x3f803f80
    v_mov_b32 v{v_sq}, 0
    v_mov_b32 v{v_ws}, 0
    v_mov_b32 v{v_sq2}, 0
    v_mov_b32 v{v_ws2}, 0
    """)
    a(f"""
    s_lshl_b32 s{s_t0}, s{s_wp}, 13
    v_lshlrev_b32 v{vt}, 7, v{v_t}
    v_add_u32 v{vt}, s{s_t0}, v{vt}
    v_bfe_u32 v{vt+1}, v{v_t}, 1, 3
    v_xor_b32 v{vt+1}, v{vt+1}, v{v_h}
    v_lshl_add_u32 v{vt}, v{vt+1}, 4, v{vt}
    s_lshl_b32 s{s_t0}, s{s_cp}, 12
    v_add_u32 v{vt}, s{s_t0}, v{vt}
    s_lshl_b32 s{s_t0}, s{s_g}, 5
    v_xor_b32 v{vXa}, s{s_t0}, v{vt}
    v_xor_b32 v{vXa+1}, 64, v{vXa}
    v_xor_b32 v{vXb}, 0x1000, v{vXa}
    v_xor_b32 v{vXb+1}, 0x1000, v{vXa+1}
    """)
    v_r, v_c4, v_gp = vt+4, vt+5, vt+6
    a(f"""
    v_bfe_u32 v{v_r}, v{v_l}, 2, 2
    v_and_b32 v{v_c4}, 3, v{v_l}
    v_bfe_u32 v{v_gp}, v{v_l}, 4, 1
    v_lshrrev_b32 v{vt+1}, 1, v{v_c4}
    v_lshl_add_u32 v{vt+1}, v{v_gp}, 1, v{vt+1}
    v_mul_u32_u24 v{vt+2}, 72, v{vt+1}
    v_add_u32 v{vt+2}, 32, v{vt+2}
    v_min_u32 v{vt+2}, 224, v{vt+2}
    v_mul_u32_u24 v{vt+3}, 40, v{v_gp}
    v_lshl_add_u32 v{vt+3}, v{v_c4}, 3, v{vt+3}
    s_lshl_b32 s{s_a}, s{s_g}, 12
    s_add_u32 s{s_a}, s{s_a}, 16384
    """)
    for i in range(2):
        a(f"""
        s_xor_b32 s{s_t0}, s{s_ct}, {i}
        s_mul_i32 s{s_t1}, s{s_t0}, 72
        v_add_u32 v{vt}, s{s_t1}, v{vt+3}
        s_cmp_eq_u32 s{s_t0}, 3
        s_cselect_b64 s[{s_m}:{s_m+1}], -1, 0
        v_cndmask_b32 v{vt}, v{vt}, v{vt+2}, s[{s_m}:{s_m+1}]
        v_lshlrev_b32 v{vt+1}, 6, v{v_r}
        v_xor_b32 v{vt}, v{vt}, v{vt+1}
        v_lshl_add_u32 v{vt+1}, v{v_h}, 3, v{v_r}
        v_lshl_add_u32 v{vt}, v{vt+1}, 8, v{vt}
        v_add_u32 v{vWa+i}, s{s_a}, v{vt}
        """)
    for r in range(64):
        a(f'v_mov_b32 v{ACC+r}, 0')
    for g in range(3):
        a(f"""
        s_mul_i32 s{s_t0}, s{s_cb}, 3
        s_add_u32 s{s_t0}, s{s_t0}, {g}
        s_lshr_b32 s{s_up+g}, s{s_t0}, 4
        s_and_b32 s{s_t0}, s{s_t0}, 15
        s_cmp_eq_u32 s{s_up+g}, 0
        s_cselect_b32 s{s_us+g}, {f32(CQ)}, 1.0
        s_mov_b32 s{s_uh+g}, {HEADKV}
        s_cselect_b32 s{s_uh+g}, {HEADQ}, s{s_uh+g}
        s_cselect_b32 s{s_ub+g}, {WS_Q}, {WS_KV}
        s_lshl_b32 s{s_t0}, s{s_t0}, 1
        s_mul_i32 s{s_t0}, s{s_t0}, s{s_uh+g}
        s_add_u32 s{s_ub+g}, s{s_ub+g}, s{s_t0}
        """)
    for x in range(2):
        k = s_tok + 5*x
        a(f"""
        s_xor_b32 s{s_t0}, s{s_cp}, {x}
        s_lshl_b32 s{s_t1}, s{s_wp}, 1
        s_add_u32 s{s_t0}, s{s_t0}, s{s_t1}
        s_lshl_b32 s{s_t1}, s{s_tb}, 2
        s_add_u32 s{s_t0}, s{s_t0}, s{s_t1}
        s_lshl_b32 s{k}, s{s_t0}, 10
        s_lshl_b32 s{k+3}, s{s_t0}, 7
        s_add_u32 s{k+3}, s{k+3}, 65536
        s_lshr_b32 s{s_t1}, s{s_t0}, 3
        s_mul_i32 s{s_t1}, s{s_t1}, {CHUNK}
        s_and_b32 s{s_t0}, s{s_t0}, 7
        s_lshl_b32 s{k+1}, s{s_t0}, 10
        s_add_u32 s{k+1}, s{k+1}, s{s_t1}
        s_mul_i32 s{k+2}, s{s_t0}, 1280
        s_add_u32 s{k+2}, s{k+2}, s{s_t1}
        s_add_u32 s{k+2}, s{k+2}, 9216
        s_lshl_b32 s{k+4}, s{s_t0}, 7
        s_add_u32 s{k+4}, s{k+4}, s{s_t1}
        s_add_u32 s{k+4}, s{k+4}, 8192
        """)
    for g in range(3):
        for x in range(2):
            k = s_tok + 5*x
            d = s_eoff + 2*g + x
            a(f"""
            s_cmp_eq_u32 s{s_up+g}, 0
            s_cselect_b32 s{d}, s{k+3}, s{k+4}
            s_cmp_eq_u32 s{s_up+g}, 2
            s_cselect_b32 s{d}, s{k+2}, s{d}
            s_add_u32 s{d}, s{d}, s{s_ub+g}
            """)
    a(f"""
    s_cmp_eq_u32 s{s_ct}, 1
    s_cselect_b32 s{s_a}, s{s_ub+1}, s{s_ub}
    s_cselect_b32 s{s_hs2}, s{s_uh+1}, s{s_uh}
    s_cselect_b32 s{s_sc2}, s{s_us+1}, s{s_us}
    s_cselect_b32 s{s_pt2}, s{s_up+1}, s{s_up}
    s_cmp_eq_u32 s{s_ct}, 2
    s_cselect_b32 s{s_a}, s{s_ub+2}, s{s_a}
    s_cselect_b32 s{s_hs2}, s{s_uh+2}, s{s_hs2}
    s_cselect_b32 s{s_sc2}, s{s_us+2}, s{s_sc2}
    s_cselect_b32 s{s_pt2}, s{s_up+2}, s{s_pt2}
    """)
    for x in range(2):
        k = s_tok + 5*x
        d = s_off + x
        a(f"""
        s_cmp_eq_u32 s{s_pt2}, 0
        s_cselect_b32 s{d}, s{k}, s{k+1}
        s_cmp_eq_u32 s{s_pt2}, 2
        s_cselect_b32 s{d}, s{k+2}, s{d}
        s_add_u32 s{d}, s{d}, s{s_a}
        """)

    def rd_list(ls, fb):
        r = []
        r.append(f'ds_read_b128 {vr(XF[fb], 4)}, v{vXa+ls}')
        r.append(f'ds_read_b64_tr_b16 {vr(WF[fb], 2)}, v{vWa} offset:{ls*8192}')
        r.append(f'ds_read_b64_tr_b16 {vr(WF[fb]+2, 2)}, v{vWa} offset:{ls*8192 + 1024}')
        r.append(f'ds_read_b128 {vr(XF[fb]+4, 4)}, v{vXb+ls}')
        r.append(f'ds_read_b64_tr_b16 {vr(WF[fb]+4, 2)}, v{vWa+1} offset:{ls*8192}')
        r.append(f'ds_read_b64_tr_b16 {vr(WF[fb]+6, 2)}, v{vWa+1} offset:{ls*8192 + 1024}')
        return r

    def compute(fb, rds, tail):
        k = 0
        for i in range(2):
            for x in range(2):
                acc = ACC + (i*2 + x)*16
                if not OPT.get('x_nomfma'):
                    a(f'v_mfma_f32_32x32x16_bf16 {vr(acc,16)}, {vr(WF[fb]+4*i,4)}, {vr(XF[fb]+4*x,4)}, {vr(acc,16)}')
                if k < 3:
                    for rr in (rds[2*k], rds[2*k+1]):
                        if OPT.get('x_notr') and '_tr_' in rr: continue
                        if OPT.get('x_nob128') and 'b128' in rr: continue
                        a(rr)
                mode = OPT.get('k1stat', 'valu')
                if mode == 'dot':
                    a(f'v_dot2c_f32_bf16 v{v_sq}, v{XF[fb]+k}, v{XF[fb]+k}')
                    a(f'v_dot2c_f32_bf16 v{v_ws}, v{WF[fb]+k}, v{v_one}')
                elif mode == 'valu':
                    a(f"""
                    v_lshlrev_b32 v{vt}, 16, v{XF[fb]+k}
                    v_and_b32 v{vt+1}, 0xffff0000, v{XF[fb]+k}
                    v_lshlrev_b32 v{vt+2}, 16, v{WF[fb]+k}
                    v_and_b32 v{vt+3}, 0xffff0000, v{WF[fb]+k}
                    v_fmac_f32 v{v_sq}, v{vt}, v{vt}
                    v_fmac_f32 v{v_sq2}, v{vt+1}, v{vt+1}
                    v_add_f32 v{v_ws}, v{v_ws}, v{vt+2}
                    v_add_f32 v{v_ws2}, v{v_ws2}, v{vt+3}
                    """)
                if k == 3:
                    tail()
                k += 1

    def adv():
        for r in ADDR:
            a(f'v_add_u32 v{r}, {BUF}, v{r}')
            a(f'v_and_b32 v{r}, 0x1ffff, v{r}')

    stamp(a, 1)
    a('s_waitcnt vmcnt(%d) lgkmcnt(0)' % (8 if OPT.get('nopf1') else 10))
    a('s_barrier')
    stamp(a, 2)
    for r in rd_list(0, 0):
        a(r)
    a(f's_mov_b32 s{s_c}, 0')
    a.label(f'{L}_loop')
    a(f"""
    s_and_b32 s{s_lds}, s{s_lds}, 0x1ffff
    s_cmp_ge_u32 s{s_c}, 6
    s_cselect_b32 s{s_xo}, 0x7f000000, s{s_xo}
    s_waitcnt lgkmcnt(0)
    """)
    nd = OPT.get('x_nodma')
    compute(0, rd_list(1, 1), lambda: (None if nd else dma(0), adv()))
    a('s_waitcnt vmcnt(6) lgkmcnt(0)')
    a('s_barrier')
    compute(1, rd_list(0, 0), lambda: None if nd else dma(1))
    a(f"""
    s_add_u32 s{s_lds}, s{s_lds}, {BUF}
    s_add_u32 s{s_xo}, s{s_xo}, 128
    s_add_u32 s{s_wo}, s{s_wo}, {64*3456}
    s_add_u32 s{s_c}, s{s_c}, 1
    s_cmp_lt_u32 s{s_c}, 9
    s_cbranch_scc1 {L}_loop
    """)
    stamp(a, 3)
    v_lin = 4
    a(f"""
    v_add_f32 v{v_sq}, v{v_sq}, v{v_sq2}
    v_add_f32 v{v_ws}, v{v_ws}, v{v_ws2}
    v_mov_b32 v{vt}, v{v_sq}
    v_mov_b32 v{vt+1}, v{v_ws}
    v_permlane32_swap_b32 v{v_sq}, v{vt}
    v_permlane32_swap_b32 v{v_ws}, v{vt+1}
    v_add_f32 v{v_sq}, v{v_sq}, v{vt}
    v_add_f32 v{v_ws}, v{v_ws}, v{vt+1}
    s_lshl_b32 s{s_a}, s{s_wp}, 1
    s_add_u32 s{s_a}, s{s_a}, s{s_cp}
    s_lshl_b32 s{s_a}, s{s_a}, 7
    s_add_u32 s{s_a}, s{s_a}, {EXA}
    v_lshlrev_b32 v{vt}, 2, v{v_t}
    v_add_u32 v{vt+1}, s{s_a}, v{vt}
    s_lshl_b32 s{s_t0}, s{s_g}, 9
    v_add_u32 v{vt+5}, s{s_t0}, v{vt+1}
    ds_write_b32 v{vt+5}, v{v_sq}
    s_lshl_b32 s{s_b}, s{s_ct}, 7
    s_add_u32 s{s_b}, s{s_b}, {EXA}
    s_add_u32 s{s_t1}, s{s_b}, s{s_t0}
    v_add_u32 v{vt+2}, s{s_t1}, v{vt}
    ds_write_b32 v{vt+2}, v{v_ws} offset:2048
    v_xor_b32 v{vt+2}, 128, v{vt+1}
    v_xor_b32 v{vt+6}, 128, v{vt+5}
    v_lshlrev_b32 v{v_lin}, 4, v{v_l}
    s_cmp_eq_u32 s{s_cp}, 0
    s_cbranch_scc1 {L}_nosx
    s_cmp_eq_u32 s{s_ct}, 3
    s_cselect_b64 s[{s_m}:{s_m+1}], -1, 0
    v_cndmask_b32 v{vt+3}, v{ACC+2*16+12}, v{ACC+0*16+12}, s[{s_m}:{s_m+1}]
    v_cndmask_b32 v{vt+4}, v{ACC+3*16+12}, v{ACC+1*16+12}, s[{s_m}:{s_m+1}]
    ds_write_b32 v{vt+5}, v{vt+3} offset:1024
    ds_write_b32 v{vt+6}, v{vt+4} offset:1024
    {L}_nosx:
    s_lshl_b32 s{s_t0}, s{s_w}, 13
    s_xor_b32 s{s_t1}, s{s_t0}, {4<<13}
    v_add_u32 v{vt+5}, s{s_t0}, v{v_lin}
    v_add_u32 v{vt+6}, s{s_t1}, v{v_lin}
    s_waitcnt vmcnt(0) lgkmcnt(0)
    s_barrier
    """)
    for g in range(8):
        a(f'ds_write_b128 v{vt+5}, {vr(ACC+32+4*g,4)} offset:{1024*g}')
    vM = [24, 26]; vR = [28, 29]; vS = 48
    WS0 = 32
    a(f"""
    ds_read_b32 v{vS}, v{vt+1}
    ds_read_b32 v{vS+1}, v{vt+1} offset:1024
    ds_read_b32 v{vS+2}, v{vt+2}
    ds_read_b32 v{vS+3}, v{vt+2} offset:1024
    ds_read_b32 v{vS+4}, v{vt+1} offset:512
    ds_read_b32 v{vS+5}, v{vt+1} offset:1536
    ds_read_b32 v{vS+6}, v{vt+2} offset:512
    ds_read_b32 v{vS+7}, v{vt+2} offset:1536
    v_lshl_add_u32 v{vt+1}, v{v_h}, 4, s{s_b}
    """)
    WS1 = 128
    for g in range(4):
        a(f'ds_read_b128 {vr(WS0+4*g, 4)}, v{vt+1} offset:{2048+32*g}')
        a(f'ds_read_b128 {vr(WS1+4*g, 4)}, v{vt+1} offset:{2048+512+32*g}')
    v_vrec, v_e4, v_e40, v_off, v_sc = 5, 6, 7, 8, 30
    a(f"""
    v_mul_u32_u24 v{v_vrec}, 40, v{v_t}
    v_lshlrev_b32 v{v_e4}, 2, v{v_t}
    v_add_u32 v{v_e40}, 32, v{v_vrec}
    v_lshl_add_u32 v{v_vrec}, v{v_h}, 4, v{v_vrec}
    v_lshlrev_b32 v{vt}, 2, v0
    v_mov_b32 v{vt+2}, 0
    s_mul_i32 s{s_t0}, s2, 96
    s_add_u32 s{s_t0}, s{s_t0}, {WS_STAT}
    s_cmp_lg_u32 s{s_w}, 0
    s_cbranch_scc1 {L}_nz
    s_mov_b64 exec, 0xffffff
    buffer_store_dword v{vt+2}, v{vt}, s[{SWS}:{SWS+3}], s{s_t0} offen
    s_mov_b64 exec, -1
    {L}_nz:
    s_waitcnt lgkmcnt(8)
    s_barrier
    """)
    RC = ACC + 32
    for g in range(8):
        a(f'ds_read_b128 {vr(RC+4*g,4)}, v{vt+6} offset:{1024*g}')
    for k in range(4):
        a(f'v_add_f32 v{vS+k}, v{vS+k}, v{vS+4+k}')
    for x in range(2):
        ln_scalars(a, vS+2*x+1, vS+2*x, vM[x], vR[x], vt+3)
    a('s_waitcnt lgkmcnt(8)')
    for r in range(0, 16, 2):
        a(f'v_pk_add_f32 {vr(WS0+r,2)}, {vr(WS0+r,2)}, {vr(WS1+r,2)}')
    for x in range(2):
        acc = ACC + x*16
        for r in range(0, 16, 2):
            a(f'v_pk_fma_f32 {vr(acc+r,2)}, {vr(WS0+r,2)}, {vr(vM[x],2)}, {vr(acc+r,2)} op_sel_hi:[1,0,1] neg_lo:[0,1,0] neg_hi:[0,1,0]')
    a('s_waitcnt lgkmcnt(0)')
    for r in range(0, 32, 2):
        a(f'v_pk_add_f32 {vr(ACC+r,2)}, {vr(ACC+r,2)}, {vr(RC+r,2)}')
    stamp(a, 6)
    PK = 32
    a(f"""
    s_cmp_eq_u32 s{s_ct}, 3
    s_cbranch_scc1 {L}_ext
    s_cmp_eq_u32 s{s_pt2}, 2
    s_cselect_b64 s[{s_m}:{s_m+1}], -1, 0
    v_cndmask_b32 v{v_off}, v{v_lin}, v{v_vrec}, s[{s_m}:{s_m+1}]
    """)
    for x in range(2):
        acc = ACC + x*16
        a(f'v_mul_f32 v{v_sc}, s{s_sc2}, v{vR[x]}')
        a(f's_add_u32 s{s_a}, s{s_off+x}, s{s_hs2}')
        for r in range(0, 16, 2):
            a(f'v_pk_mul_f32 {vr(acc+r,2)}, {vr(acc+r,2)}, {vr(v_sc,2)} op_sel_hi:[1,0]')
        pk = PK + 8*x
        for k in range(8):
            a(f'v_cvt_pk_bf16_f32 v{pk+k}, v{acc+2*k}, v{acc+2*k+1}')
        a(f'buffer_store_dwordx4 {vr(pk,4)}, v{v_off}, s[{SWS}:{SWS+3}], s{s_off+x} offen')
        a(f'buffer_store_dwordx4 {vr(pk+4,4)}, v{v_off}, s[{SWS}:{SWS+3}], s{s_a} offen')
    a(f's_branch {L}_done')
    a.label(f'{L}_ext')
    a(f'v_cmp_eq_u32 vcc, 1, v{v_h}')
    for g in range(3):
        a(f"""
        s_cmp_eq_u32 s{s_up+g}, 2
        s_cselect_b64 s[{s_m}:{s_m+1}], -1, 0
        v_cndmask_b32 v{v_off}, v{v_e4}, v{v_e40}, s[{s_m}:{s_m+1}]
        v_mul_lo_u32 v{vt}, v{v_h}, s{s_uh+g}
        v_add_u32 v{v_off}, v{v_off}, v{vt}
        """)
        for x in range(2):
            acc = ACC + x*16
            pk = PK + 4*g + 2*x
            a(f"""
            v_mul_f32 v{v_sc}, s{s_us+g}, v{vR[x]}
            v_cndmask_b32 v{vt}, v{acc+4*g}, v{acc+4*g+2}, vcc
            v_cndmask_b32 v{vt+1}, v{acc+4*g+1}, v{acc+4*g+3}, vcc
            v_mul_f32 v{vt}, v{v_sc}, v{vt}
            v_mul_f32 v{vt+1}, v{v_sc}, v{vt+1}
            v_cvt_pk_bf16_f32 v{pk}, v{vt}, v{vt+1}
            v_mov_b32 v{pk+1}, 0x3f80
            """)
        pk = PK + 4*g
        a(f"""
        s_cbranch_scc1 {L}_e{g}v
        buffer_store_dword v{pk}, v{v_off}, s[{SWS}:{SWS+3}], s{s_eoff+2*g} offen
        buffer_store_dword v{pk+2}, v{v_off}, s[{SWS}:{SWS+3}], s{s_eoff+2*g+1} offen
        s_branch {L}_e{g}d
        {L}_e{g}v:
        buffer_store_dwordx2 {vr(pk,2)}, v{v_off}, s[{SWS}:{SWS+3}], s{s_eoff+2*g} offen
        buffer_store_dwordx2 {vr(pk+2,2)}, v{v_off}, s[{SWS}:{SWS+3}], s{s_eoff+2*g+1} offen
        {L}_e{g}d:
        """)
    a.label(f'{L}_done')
    stamp(a, 7)
    stamps_flush(a, 0, SWS, s_w, 16)
    a.label(f'{L}_end')
    a('s_endpgm')
    kernels.append((L, 256, 512, EXA + 4096, 144, 100))

def k2(a):
    L = 'k2_attn_kernel'
    begin(a, L)
    SWS = 12
    s_head, s_qb, s_w, s_t0, s_t1, s_kv, s_mode, s_c, s_qs, s_kg, s_n = 20, 21, 22, 23, 24, 25, 26, 27, 28, 29, 30
    s_m = 32
    FLAG = HEADKV
    v_l, v_t, v_h = 1, 2, 3
    vKa, vKe, vVa, vlin = 4, 5, 6, 7
    vt = 8
    QM = [16, 20]; QE = [24, 26]
    KM = [28, 32]; KE = [36, 38]
    VF = [40, 48]
    P = 56
    S = [64, 80]
    O = [96, 112]
    a(f'''
    s_cmp_ge_u32 s2, 256
    s_cbranch_scc1 {L}_end
    s_load_dwordx2 s[8:9], s[0:1], 80
    s_load_dwordx2 s[4:5], s[0:1], 0
    s_load_dwordx2 s[6:7], s[0:1], 16
    s_load_dwordx4 s[56:59], s[0:1], 40
    s_load_dwordx2 s[60:61], s[0:1], 56
    s_and_b32 s10, s2, 7
    s_lshr_b32 s11, s2, 3
    s_lshl_b32 s{s_head}, s10, 2
    s_lshr_b32 s{s_t0}, s11, 3
    s_add_u32 s{s_head}, s{s_head}, s{s_t0}
    s_and_b32 s{s_qb}, s11, 7
    v_and_b32 v{v_l}, 63, v0
    v_lshrrev_b32 v{vt}, 6, v0
    v_and_b32 v{v_t}, 31, v0
    v_readfirstlane_b32 s{s_w}, v{vt}
    v_bfe_u32 v{v_h}, v0, 5, 1
    v_lshlrev_b32 v{vlin}, 4, v{v_l}
    s_and_b32 s{s_qs}, s{s_w}, 3
    s_lshr_b32 s{s_kg}, s{s_w}, 2
    s_mul_i32 s{s_kv}, s{s_head}, {HEADKV}
    s_add_u32 s{s_kv}, s{s_kv}, {WS_KV}
    s_mov_b32 s{s_mode}, 0
    s_waitcnt lgkmcnt(0)
    ''')
    srd(a, SWS, 8, WS_SIZE)
    SPX, SPO, SPG, SPU, SPD = 36, 40, 44, 48, 52
    srd(a, SPX, 4, 2048*1152)
    srd(a, SPO, 6, 576*1152)
    srd(a, SPG, 56, 576*9216)
    srd(a, SPU, 58, 576*9216)
    srd(a, SPD, 60, 4608*1152)
    stamps_init(a); stamp(a, 0)
    a.label(f'{L}_start')
    a(f'''
    s_cmp_eq_u32 s{s_w}, 8
    s_cbranch_scc1 {L}_loader
    ''')
    a(f'''
    s_lshl_b32 s{s_t0}, s{s_qb}, 3
    s_lshl_b32 s{s_t1}, s{s_qs}, 1
    s_add_u32 s{s_t0}, s{s_t0}, s{s_t1}
    s_mul_i32 s{s_t1}, s{s_head}, {HEADQ}
    s_add_u32 s{s_t1}, s{s_t1}, {WS_Q}
    s_lshl_b32 s{s_c}, s{s_t0}, 10
    s_add_u32 s{s_c}, s{s_c}, s{s_t1}
    buffer_load_dwordx4 {vr(QM[0],4)}, v{vlin}, s[{SWS}:{SWS+3}], s{s_c} offen
    buffer_load_dwordx4 {vr(QM[1],4)}, v{vlin}, s[{SWS}:{SWS+3}], s{s_c} offen offset:1024
    s_lshl_b32 s{s_c}, s{s_t0}, 7
    s_add_u32 s{s_c}, s{s_c}, s{s_t1}
    s_add_u32 s{s_c}, s{s_c}, 65536
    v_lshlrev_b32 v{vt}, 2, v{v_t}
    buffer_load_dword v{QE[0]}, v{vt}, s[{SWS}:{SWS+3}], s{s_c} offen
    buffer_load_dword v{QE[1]}, v{vt}, s[{SWS}:{SWS+3}], s{s_c} offen offset:128
    s_lshl_b32 s{s_t0}, s{s_w}, 10
    s_add_u32 s{s_t1}, s{s_kv}, s{s_t0}
    ''')
    s_dl, s_dg = 62, 63
    a(f'''
    s_mov_b32 s{s_dl}, s{s_t0}
    s_mov_b32 s{s_dg}, s{s_t1}
    ''')

    def kvdma(js):
        for j in js:
            a(f'''
            s_add_u32 m0, s{s_dl}, {j*8192}
            s_add_u32 s{s_t1}, s{s_dg}, {j*8192}
            buffer_load_dwordx4 v{vlin}, s[{SWS}:{SWS+3}], s{s_t1} offen lds
            ''')
    kvdma(range(3))
    a(f'''
    v_mov_b32 v{vt}, {FLAG}
    v_mov_b32 v{vt+1}, 0
    ds_write_b32 v{vt}, v{vt+1}
    v_mov_b32 v{KE[0]+1}, 0x3f803f80
    v_mov_b32 v{KE[1]+1}, 0x3f803f80
    v_mov_b32 v{QE[0]+1}, 0
    v_mov_b32 v{QE[1]+1}, 0
    ''')
    a(f'''
    v_bfe_u32 v{vt}, v{v_l}, 2, 2
    v_lshl_add_u32 v{vt}, v{v_h}, 2, v{vt}
    s_lshl_b32 s{s_t0}, s{s_kg}, 7
    v_add_u32 v{vt}, s{s_t0}, v{vt}
    v_mul_u32_u24 v{vVa}, 40, v{vt}
    v_and_b32 v{vt}, 3, v{v_l}
    v_lshlrev_b32 v{vt}, 3, v{vt}
    v_and_b32 v{vt+1}, 16, v{v_l}
    v_cmp_ne_u32 vcc, 0, v{vt+1}
    v_cndmask_b32 v{vt}, v{vt}, 32, vcc
    v_add3_u32 v{vVa}, v{vVa}, v{vt}, 0
    v_add_u32 v{vVa}, 9216, v{vVa}
    ''')
    if OPT.get('vzero'):
        a(f'''
        v_and_b32 v{vt}, 18, v{v_l}
        v_cmp_eq_u32 vcc, 18, v{vt}
        v_add_u32 v{vt}, 0x100000, v{vVa}
        v_cndmask_b32 v{vVa}, v{vVa}, v{vt}, vcc
        ''')
    for r in range(16):
        a(f'v_mov_b32 v{O[0]+r}, 0')
        a(f'v_mov_b32 v{O[1]+r}, 0')
    for r in range(8):
        a(f'v_mov_b32 v{P+r}, 0')
    for r in range(4):
        a(f'v_mov_b32 v{VF[1]+4+r}, 0')
    stamp(a, 1)
    a(f'''
    s_waitcnt vmcnt(0) lgkmcnt(0)
    s_barrier
    v_cmp_eq_u32 vcc, 0, v{v_h}
    v_cndmask_b32 v{QE[0]}, 0, v{QE[0]}, vcc
    v_cndmask_b32 v{QE[1]}, 0, v{QE[1]}, vcc
    ''')
    stamp(a, 2)
    vmx = [vt+4, vt+5]
    a(f'''
    s_cmp_eq_u32 s{s_mode}, 0
    s_cselect_b32 s{s_n}, 1, 64
    s_mov_b32 s{s_c}, 0
    v_mov_b32 v{vmx[0]}, 0xff800000
    v_mov_b32 v{vmx[1]}, 0xff800000
    {L}_mx:
    s_lshr_b32 s{s_t0}, s{s_c}, 3
    s_mul_i32 s{s_t0}, s{s_t0}, {CHUNK}
    s_and_b32 s{s_t1}, s{s_c}, 7
    s_lshl_b32 s{s_t1}, s{s_t1}, 10
    s_add_u32 s{s_t1}, s{s_t1}, s{s_t0}
    v_add_u32 v{vt}, s{s_t1}, v{vlin}
    ds_read_b128 {vr(KM[0],4)}, v{vt}
    s_and_b32 s{s_t1}, s{s_c}, 7
    s_lshl_b32 s{s_t1}, s{s_t1}, 7
    s_add_u32 s{s_t1}, s{s_t1}, s{s_t0}
    v_lshl_add_u32 v{vt}, v{v_t}, 2, s{s_t1}
    ds_read_b32 v{KE[0]}, v{vt} offset:8192
    s_waitcnt lgkmcnt(0)
    ''')
    for q in range(2):
        a(f'v_mfma_f32_32x32x16_bf16 {vr(S[q],16)}, {vr(KM[0],4)}, {vr(QM[q],4)}, 0')
        a(f'v_mfma_f32_32x32x8_bf16 {vr(S[q],16)}, {vr(KE[0],2)}, {vr(QE[q],2)}, {vr(S[q],16)}')
    for q in range(2):
        for k in range(8):
            a(f'v_max3_f32 v{vmx[q]}, v{S[q]+2*k}, v{S[q]+2*k+1}, v{vmx[q]}')
    a(f'''
    s_add_u32 s{s_c}, s{s_c}, 1
    s_cmp_lt_u32 s{s_c}, s{s_n}
    s_cbranch_scc1 {L}_mx
    ''')
    a(f'v_cmp_eq_u32 vcc, 0, v{v_h}')
    for q in range(2):
        a(f'''
        v_mov_b32 v{vt}, v{vmx[q]}
        v_permlane32_swap_b32 v{vmx[q]}, v{vt}
        v_max_f32 v{vt}, v{vmx[q]}, v{vt}
        v_xor_b32 v{vt}, 0x80000000, v{vt}
        v_and_b32 v{vt+1}, 0xffff0000, v{vt}
        v_sub_f32 v{vt}, v{vt}, v{vt+1}
        v_and_b32 v{vt+2}, 0xffff0000, v{vt}
        v_sub_f32 v{vt}, v{vt}, v{vt+2}
        v_lshrrev_b32 v{vt+1}, 16, v{vt+1}
        v_or_b32 v{vt+1}, v{vt+1}, v{vt+2}
        v_lshrrev_b32 v{vt}, 16, v{vt}
        v_cndmask_b32 v{QE[q]+1}, v{vt}, v{vt+1}, vcc
        ''')
    a(f'''
    s_lshl_b32 s{s_t0}, s{s_kg}, 12
    v_add_u32 v{vKa}, s{s_t0}, v{vlin}
    s_lshl_b32 s{s_t0}, s{s_kg}, 9
    s_add_u32 s{s_t0}, s{s_t0}, 8192
    v_lshl_add_u32 v{vKe}, v{v_t}, 2, s{s_t0}
    ''')

    def koff(i):
        return (i // 4) * CHUNK + (i % 4) * 1024, (i // 4) * CHUNK + (i % 4) * 128

    def read_k(i, p):
        o1, o2 = koff(i)
        a(f'ds_read_b128 {vr(KM[p],4)}, v{vKa} offset:{o1}')
        a(f'ds_read_b32 v{KE[p]}, v{vKe} offset:{o2}')

    def read_v(i, p):
        base = (i // 4) * CHUNK + (i % 4) * 1280
        for m in range(2):
            for part in range(2):
                a(f'ds_read_b64_tr_b16 {vr(VF[p]+4*m+2*part,2)}, v{vVa} offset:{base + m*640 + part*320}')

    read_k(0, 0)
    read_k(1, 1)
    read_v(0, 0)
    a('s_waitcnt lgkmcnt(6)')
    a(f'v_mfma_f32_32x32x16_bf16 {vr(S[0],16)}, {vr(KM[0],4)}, {vr(QM[0],4)}, 0')
    a(f'v_mfma_f32_32x32x8_bf16 {vr(S[0],16)}, {vr(KE[0],2)}, {vr(QE[0],2)}, {vr(S[0],16)}')
    a(f's_mov_b32 s{s_c}, 0')
    stamp(a, 3)
    stamp(a, 4, True)
    a('s_nop 7')
    a('s_nop 3')
    a.label(f'{L}_loop')

    def gap(X, g):
        s = S[X]
        for e in range(4):
            a(f'v_exp_f32 v{s+4*g+e}, v{s+4*g+e}')
        a(f'v_cvt_pk_bf16_f32 v{P+2*g}, v{s+4*g}, v{s+4*g+1}')
        a(f'v_cvt_pk_bf16_f32 v{P+2*g+1}, v{s+4*g+2}, v{s+4*g+3}')

    for i in range(4):
        p = i % 2
        if i == 2:
            a(f'''
            s_cmp_gt_u32 s{s_c}, 3
            s_cbranch_scc1 {L}_nb
            s_barrier
            ''')
            a.label(f'{L}_nb')
        a(f'v_mfma_f32_32x32x16_bf16 {vr(S[1],16)}, {vr(KM[p],4)}, {vr(QM[1],4)}, 0')
        gap(0, 0)
        a(f'v_mfma_f32_32x32x8_bf16 {vr(S[1],16)}, {vr(KE[p],2)}, {vr(QE[1],2)}, {vr(S[1],16)}')
        read_k(i+2, p)
        gap(0, 1)
        a(f'v_mfma_f32_32x32x16_bf16 {vr(O[1],16)}, {vr(VF[1-p]+4,4)}, {vr(P+4,4)}, {vr(O[1],16)}')
        read_v(i+1, 1-p)
        gap(0, 2)
        a('s_waitcnt lgkmcnt(6)')
        a(f'v_mfma_f32_32x32x16_bf16 {vr(O[0],16)}, {vr(VF[p],4)}, {vr(P,4)}, {vr(O[0],16)}')
        gap(0, 3)
        a(f'v_mfma_f32_32x32x16_bf16 {vr(S[0],16)}, {vr(KM[1-p],4)}, {vr(QM[0],4)}, 0')
        gap(1, 0)
        a(f'v_mfma_f32_32x32x8_bf16 {vr(S[0],16)}, {vr(KE[1-p],2)}, {vr(QE[0],2)}, {vr(S[0],16)}')
        gap(1, 1)
        a(f'v_mfma_f32_32x32x16_bf16 {vr(O[0],16)}, {vr(VF[p]+4,4)}, {vr(P+4,4)}, {vr(O[0],16)}')
        gap(1, 2)
        a(f'v_mfma_f32_32x32x16_bf16 {vr(O[1],16)}, {vr(VF[p],4)}, {vr(P,4)}, {vr(O[1],16)}')
        gap(1, 3)
    a(f'''
    v_add_u32 v{vKa}, {CHUNK}, v{vKa}
    v_add_u32 v{vKe}, {CHUNK}, v{vKe}
    v_add_u32 v{vVa}, {CHUNK}, v{vVa}
    s_add_u32 s{s_c}, s{s_c}, 1
    s_cmp_lt_u32 s{s_c}, 8
    s_cbranch_scc1 {L}_loop
    v_mfma_f32_32x32x16_bf16 {vr(O[1],16)}, {vr(VF[1]+4,4)}, {vr(P+4,4)}, {vr(O[1],16)}
    ''')
    a('''
    s_waitcnt lgkmcnt(0)
    s_barrier
    ''')
    stamp(a, 5, True)
    stamp(a, 6)
    a(f'''
    s_cmp_eq_u32 s{s_kg}, 1
    s_cselect_b64 s[{s_m}:{s_m+1}], -1, 0
    s_lshl_b32 s{s_t0}, s{s_qs}, 1
    s_add_u32 s{s_t0}, s{s_t0}, s{s_kg}
    s_xor_b32 s{s_t1}, s{s_t0}, 1
    s_mul_i32 s{s_t0}, s{s_t0}, 3072
    s_mul_i32 s{s_t1}, s{s_t1}, 3072
    v_add_u32 v{vt}, s{s_t1}, v{vlin}
    v_add_u32 v{vt+1}, s{s_t0}, v{vlin}
    ''')
    SND, KEEP = S[0], S[1]
    for r in range(12):
        a(f'v_cndmask_b32 v{SND+r}, v{O[1]+r}, v{O[0]+r}, s[{s_m}:{s_m+1}]')
        a(f'v_cndmask_b32 v{KEEP+r}, v{O[0]+r}, v{O[1]+r}, s[{s_m}:{s_m+1}]')
    for g in range(3):
        a(f'ds_write_b128 v{vt}, {vr(SND+4*g,4)} offset:{1024*g}')
    a('s_waitcnt lgkmcnt(0)')
    a('s_barrier')
    for g in range(3):
        a(f'ds_read_b128 {vr(SND+4*g,4)}, v{vt+1} offset:{1024*g}')
    a('s_waitcnt lgkmcnt(0)')
    for r in range(11):
        a(f'v_add_f32 v{KEEP+r}, v{KEEP+r}, v{SND+r}')
    a(f'''
    v_cmp_ngt_f32 vcc, {f32(2.0**60)}, v{KEEP+10}
    v_cmp_nlt_f32 s[{s_m}:{s_m+1}], {f32(2.0**-90)}, v{KEEP+10}
    ''' .replace(f'v_cmp_nlt_f32 s[{s_m}:{s_m+1}], {f32(2.0**-90)}, v{KEEP+10}', f'v_mov_b32 v{vt+2}, {f32(2.0**-90)}\n v_cmp_nlt_f32 s[{s_m}:{s_m+1}], v{vt+2}, v{KEEP+10}'))
    a(f'''
    v_rcp_f32 v{vt+3}, v{KEEP+10}
    s_or_b64 vcc, vcc, s[{s_m}:{s_m+1}]
    s_cbranch_vccz {L}_ok
    v_mov_b32 v{vt}, {FLAG}
    v_mov_b32 v{vt+1}, 1
    ds_write_b32 v{vt}, v{vt+1}
    {L}_ok:
    ''')
    for r in range(10):
        a(f'v_mul_f32 v{KEEP+r}, v{vt+3}, v{KEEP+r}')
    for k in range(5):
        a(f'v_cvt_pk_bf16_f32 v{P+k}, v{KEEP+2*k}, v{KEEP+2*k+1}')
    a(f'''
    s_lshl_b32 s{s_t0}, s{s_qb}, 3
    s_lshl_b32 s{s_t1}, s{s_qs}, 1
    s_add_u32 s{s_t0}, s{s_t0}, s{s_t1}
    s_add_u32 s{s_t0}, s{s_t0}, s{s_kg}
    s_mul_i32 s{s_t0}, s{s_t0}, {36*1024}
    s_add_u32 s{s_t0}, s{s_t0}, {WS_O}
    s_lshl_b32 s{s_t1}, s{s_head}, 10
    s_add_u32 s{s_t1}, s{s_t1}, s{s_t0}
    buffer_store_dwordx4 {vr(P,4)}, v{vlin}, s[{SWS}:{SWS+3}], s{s_t1} offen
    s_lshr_b32 s{s_t1}, s{s_head}, 3
    s_add_u32 s{s_t1}, s{s_t1}, 32
    s_lshl_b32 s{s_t1}, s{s_t1}, 10
    s_add_u32 s{s_t0}, s{s_t0}, s{s_t1}
    s_bfe_u32 s{s_t1}, s{s_head}, 0x10002
    s_lshl_b32 s{s_t1}, s{s_t1}, 9
    s_add_u32 s{s_t0}, s{s_t0}, s{s_t1}
    s_and_b32 s{s_t1}, s{s_head}, 3
    s_lshl_b32 s{s_t1}, s{s_t1}, 2
    s_add_u32 s{s_t0}, s{s_t0}, s{s_t1}
    v_lshlrev_b32 v{vt}, 4, v{v_t}
    buffer_store_dword v{P+4}, v{vt}, s[{SWS}:{SWS+3}], s{s_t0} offen
    ''')
    stamp(a, 7)
    stamps_flush(a, 1, SWS, s_w, 40)
    a(f'''
    s_mov_b64 exec, -1
    {L}_tail:
    s_cmp_eq_u32 s{s_mode}, 1
    s_cbranch_scc1 {L}_end
    s_waitcnt lgkmcnt(0)
    s_barrier
    v_mov_b32 v{vt}, {FLAG}
    ds_read_b32 v{vt+1}, v{vt}
    s_waitcnt lgkmcnt(0)
    v_readfirstlane_b32 s{s_t0}, v{vt+1}
    s_cmp_eq_u32 s{s_t0}, 0
    s_cbranch_scc1 {L}_end
    s_mov_b32 s{s_mode}, 1
    s_waitcnt vmcnt(0)
    s_barrier
    s_branch {L}_start
    {L}_loader:
    s_mov_b32 s{s_c}, {24*1024}
    ''')

    def ldr(upto, tag):
        a(f'''
        {L}_ld{tag}:
        s_mov_b32 m0, s{s_c}
        s_add_u32 s{s_t1}, s{s_kv}, s{s_c}
        buffer_load_dwordx4 v{vlin}, s[{SWS}:{SWS+3}], s{s_t1} offen lds
        s_add_u32 s{s_c}, s{s_c}, 1024
        s_cmp_lt_u32 s{s_c}, {upto*1024}
        s_cbranch_scc1 {L}_ld{tag}
        ''')
    a(f'''
    s_cmp_eq_u32 s{s_mode}, 0
    s_cbranch_scc1 {L}_lfast
    ''')
    ldr(152, 'x')
    a(f'''
    s_waitcnt vmcnt(0)
    s_barrier
    s_barrier
    s_barrier
    s_barrier
    s_barrier
    s_branch {L}_lend
    {L}_lfast:
    ''')
    ldr(38, 'a')
    a('s_barrier')
    ldr(57, 'b')
    a('s_waitcnt vmcnt(19)')
    a('s_barrier')
    ldr(95, 'c')
    a('s_waitcnt vmcnt(38)')
    a('s_barrier')
    ldr(133, 'd')
    a('s_waitcnt vmcnt(57)')
    a('s_barrier')
    ldr(152, 'e')
    a('s_waitcnt vmcnt(0)')
    a('s_barrier')
    if not OPT.get('nopf2'):
        a(f'''
        v_mov_b32 v{vt+3}, v{v_l}
        s_mov_b32 s{s_c}, 0
        {L}_pfl:
        ''')
        a(f'''
        v_min_u32 v{vt}, 323, v{vt+3}
        v_lshlrev_b32 v{vt+1}, 6, v{vt}
        s_mul_i32 s{s_t0}, s11, {324*64}
        buffer_load_dword v{vt+7}, v{vt+1}, s[{SPO}:{SPO+3}], s{s_t0} offen
        s_mul_i32 s{s_t1}, s10, 663552
        s_add_u32 s{s_t0}, s{s_t0}, s{s_t1}
        buffer_load_dword v{vt+7}, v{vt+1}, s[{SPD}:{SPD+3}], s{s_t0} offen
        v_mul_u32_u24 v{vt+1}, 3641, v{vt}
        v_lshrrev_b32 v{vt+1}, 16, v{vt+1}
        v_mul_u32_u24 v{vt+2}, 18, v{vt+1}
        v_sub_u32 v{vt+2}, v{vt}, v{vt+2}
        v_mul_u32_u24 v{vt+1}, 9216, v{vt+1}
        v_lshl_add_u32 v{vt+1}, v{vt+2}, 6, v{vt+1}
        s_mul_i32 s{s_t0}, s11, {18*9216}
        s_mul_i32 s{s_t1}, s10, 1152
        s_add_u32 s{s_t0}, s{s_t0}, s{s_t1}
        buffer_load_dword v{vt+7}, v{vt+1}, s[{SPG}:{SPG+3}], s{s_t0} offen
        buffer_load_dword v{vt+7}, v{vt+1}, s[{SPU}:{SPU+3}], s{s_t0} offen
        v_min_u32 v{vt}, 143, v{vt+3}
        v_lshlrev_b32 v{vt+1}, 6, v{vt}
        s_mul_i32 s{s_t0}, s11, {144*64}
        s_mul_i32 s{s_t1}, s10, 294912
        s_add_u32 s{s_t0}, s{s_t0}, s{s_t1}
        buffer_load_dword v{vt+7}, v{vt+1}, s[{SPX}:{SPX+3}], s{s_t0} offen
        s_getpc_b64 s[64:65]
        {L}_pc:
        s_add_u32 s64, s64, k3_oproj_kernel-{L}_pc
        s_addc_u32 s65, s65, 0
        v_min_u32 v{vt}, (code_end_marker-k3_oproj_kernel)/64, v{vt+3}
        v_lshlrev_b32 v{vt+1}, 6, v{vt}
        global_load_dword v{vt+7}, v{vt+1}, s[64:65]
        v_add_u32 v{vt+3}, 64, v{vt+3}
        s_add_u32 s{s_c}, s{s_c}, 1
        s_cmp_lt_u32 s{s_c}, 6
        s_cbranch_scc1 {L}_pfl
        ''')
    a(f'''
    {L}_lend:
    s_barrier
    s_barrier
    s_branch {L}_tail
    {L}_end:
    s_endpgm
    ''')
    kernels.append((L, 256, 576, HEADKV + 64, 128, 100))

def k3(a):
    L = 'k3_oproj_kernel'
    begin(a, L)
    SX, SWO, SWR, SWS = 12, 16, 20, 24
    s_tb, s_cb, s_w, s_tt, s_kh, s_t0, s_t1, s_g, s_rb, s_gt = 28, 29, 30, 31, 32, 33, 34, 35, 36, 37
    s_m = 38
    v_l, v_t, v_h, vlin = 1, 2, 3, 4
    vt = 5
    vDm = 16
    vDe = 19
    vWa = 22
    vdo = 23
    XR = 24
    WR = 36
    WF = [48, 60]
    ACC = 72
    OF = 120
    EX = 110592
    a(f'''
    s_cmp_ge_u32 s2, 192
    s_cbranch_scc1 {L}_end
    s_load_dwordx2 s[4:5], s[0:1], 0
    s_load_dwordx2 s[6:7], s[0:1], 16
    s_load_dwordx2 s[8:9], s[0:1], 32
    s_load_dwordx2 s[10:11], s[0:1], 80
    s_and_b32 s{s_t0}, s2, 7
    s_lshr_b32 s{s_t1}, s2, 3
    s_mul_i32 s{s_g}, s{s_t1}, 43
    s_lshr_b32 s{s_g}, s{s_g}, 8
    s_mul_i32 s{s_cb}, s{s_g}, 6
    s_sub_u32 s{s_cb}, s{s_t1}, s{s_cb}
    s_lshl_b32 s{s_tb}, s{s_t0}, 2
    s_add_u32 s{s_tb}, s{s_tb}, s{s_g}
    v_and_b32 v{v_l}, 63, v0
    v_lshrrev_b32 v{vt}, 6, v0
    v_and_b32 v{v_t}, 31, v0
    v_readfirstlane_b32 s{s_w}, v{vt}
    v_bfe_u32 v{v_h}, v0, 5, 1
    v_lshlrev_b32 v{vlin}, 4, v{v_l}
    s_and_b32 s{s_tt}, s{s_w}, 1
    s_lshr_b32 s{s_kh}, s{s_w}, 1
    s_lshl_b32 s{s_gt}, s{s_tb}, 1
    s_add_u32 s{s_gt}, s{s_gt}, s{s_tt}
    ''')
    for i3 in range(3):
        a(f'''
        v_add_u32 v{vt}, {64*i3}, v{v_l}
        v_mul_u32_u24 v{vt+1}, 1366, v{vt}
        v_lshrrev_b32 v{vt+1}, 14, v{vt+1}
        v_mul_u32_u24 v{vt+2}, 12, v{vt+1}
        v_sub_u32 v{vt+2}, v{vt}, v{vt+2}
        v_lshlrev_b32 v{vt+2}, 4, v{vt+2}
        ''')
        a(f'''
        v_mul_u32_u24 v{vt+3}, 1152, v{vt+1}
        v_add_u32 v{vDm+i3}, v{vt+3}, v{vt+2}
        ''')
        a(f'''
        v_lshrrev_b32 v{vt+3}, 1, v{vt+1}
        v_mul_u32_u24 v{vt+4}, 18, v{vt+3}
        v_and_b32 v{vt+5}, 1, v{vt+1}
        v_add_u32 v{vt+4}, v{vt+4}, v{vt+5}
        v_and_b32 v{vt+3}, 1, v{vt+3}
        v_xor_b32 v{vt+3}, 1, v{vt+3}
        v_lshl_add_u32 v{vt+4}, v{vt+3}, 4, v{vt+4}
        v_mul_u32_u24 v{vt+4}, 1152, v{vt+4}
        v_add_u32 v{vDe+i3}, v{vt+4}, v{vt+2}
        ''')
    a('s_waitcnt lgkmcnt(0)')
    srd(a, SX, 4, 2048*1152)
    srd(a, SWO, 6, 576*1152)
    srd(a, SWR, 8, 1152)
    srd(a, SWS, 10, WS_SIZE)
    stamps_init(a); stamp(a, 0)
    vm = []

    def stage(st):
        for k in range(3):
            a(f'''
            s_mul_i32 s{s_g}, s{s_tt}, 3
            s_mul_i32 s{s_t0}, s{s_kh}, 18
            s_add_u32 s{s_g}, s{s_g}, s{s_t0}
            s_add_u32 s{s_g}, s{s_g}, {6*st + k}
            s_and_b32 s{s_t0}, s{s_g}, 1
            s_lshl_b32 s{s_t0}, s{s_t0}, 1
            s_mul_i32 s{s_rb}, s{s_g}, 18
            s_add_u32 s{s_rb}, s{s_rb}, s{s_t0}
            ''')
            if st == 2:
                a(f'''
                s_sub_u32 s{s_t0}, s{s_g}, 32
                s_mul_i32 s{s_t0}, s{s_t0}, 144
                s_cmp_ge_u32 s{s_g}, 32
                s_cselect_b32 s{s_rb}, s{s_t0}, s{s_rb}
                s_cselect_b64 s[{s_m}:{s_m+1}], -1, 0
                ''')
            a(f'''
            s_mul_i32 s{s_rb}, s{s_rb}, 1152
            s_mul_i32 s{s_t0}, s{s_cb}, 192
            s_add_u32 s{s_rb}, s{s_rb}, s{s_t0}
            s_mul_i32 s{s_g}, s{s_g}, 3072
            ''')
            for i3 in range(3):
                src = vDm + i3
                if st == 2:
                    a(f'v_cndmask_b32 v{vdo}, v{vDm+i3}, v{vDe+i3}, s[{s_m}:{s_m+1}]')
                    src = vdo
                a(f'''
                s_add_u32 m0, s{s_g}, {i3*1024}
                s_nop 0
                buffer_load_dwordx4 v{src}, s[{SWO}:{SWO+3}], s{s_rb} offen lds
                ''')
                vm.append(f'W{st}')

    def oloads(i0):
        a(f'''
        s_mul_i32 s{s_t0}, s{s_gt}, 36
        s_mul_i32 s{s_t1}, s{s_kh}, 18
        s_add_u32 s{s_t0}, s{s_t0}, s{s_t1}
        s_add_u32 s{s_t0}, s{s_t0}, {i0}
        s_lshl_b32 s{s_t0}, s{s_t0}, 10
        s_add_u32 s{s_t0}, s{s_t0}, {WS_O}
        s_add_u32 s{s_t1}, s{s_t0}, 3072
        ''')
        for i in range(6):
            sreg = s_t0 if i < 3 else s_t1
            a(f'buffer_load_dwordx4 {vr(OF+4*(i0+i),4)}, v{vlin}, s[{SWS}:{SWS+3}], s{sreg} offen offset:{(i%3)*1024}')
            vm.append(f'O{i0+i}')

    for st in range(3):
        stage(st)
        oloads(6*st)
    a(f'''
    v_mul_u32_u24 v{vt}, 1152, v{v_t}
    v_lshl_add_u32 v{vt}, v{v_h}, 3, v{vt}
    v_lshlrev_b32 v{vt+1}, 3, v{v_h}
    s_mul_i32 s{s_t0}, s{s_cb}, 192
    s_mul_i32 s{s_t1}, s{s_kh}, 96
    s_add_u32 s{s_t0}, s{s_t0}, s{s_t1}
    s_mul_i32 s{s_t1}, s{s_gt}, {32*1152}
    s_add_u32 s{s_t1}, s{s_t1}, s{s_t0}
    ''')
    for j in range(6):
        a(f'buffer_load_dwordx2 {vr(XR+2*j,2)}, v{vt}, s[{SX}:{SX+3}], s{s_t1} offen offset:{16*j}')
        vm.append('X')
    for j in range(6):
        a(f'buffer_load_dwordx2 {vr(WR+2*j,2)}, v{vt+1}, s[{SWR}:{SWR+3}], s{s_t0} offen offset:{16*j}')
        vm.append('X')
    v_hoff = 15
    a(f'v_mov_b32 v{v_hoff}, v{vt}')
    s_hoff = 40
    a(f's_add_u32 s{s_hoff}, s{s_t1}, {WS_H}')

    def wait_for(tag):
        idx = max(i for i, t in enumerate(vm) if t == tag)
        return len(vm) - 1 - idx

    a(f'''
    v_bfe_u32 v{vt}, v{v_l}, 2, 2
    v_lshl_add_u32 v{vt}, v{v_h}, 3, v{vt}
    v_mul_u32_u24 v{vWa}, 192, v{vt}
    v_bfe_u32 v{vt}, v{v_l}, 4, 1
    v_lshl_add_u32 v{vWa}, v{vt}, 5, v{vWa}
    v_and_b32 v{vt}, 3, v{v_l}
    v_lshl_add_u32 v{vWa}, v{vt}, 3, v{vWa}
    s_mul_i32 s{s_t0}, s{s_kh}, {18*3072}
    v_add_u32 v{vWa}, s{s_t0}, v{vWa}
    ''')

    def reads(i, fb):
        for ct in range(3):
            for j in range(2):
                a(f'ds_read_b64_tr_b16 {vr(WF[fb]+4*ct+2*j,2)}, v{vWa} offset:{i*3072 + j*768 + ct*64}')

    stamp(a, 1)
    a(f's_waitcnt vmcnt({wait_for("W0")})')
    a('s_barrier')
    stamp(a, 2)
    reads(0, 0)
    for i in range(18):
        fb = i % 2
        if i < 17:
            if (i + 1) % 6 == 0:
                a(f's_waitcnt vmcnt({wait_for("W%d" % ((i+1)//6))})')
                a('s_barrier')
                stamp(a, 2 + (i+1)//6)
            reads(i+1, 1-fb)
            a(f's_waitcnt vmcnt({wait_for("O%d" % i)}) lgkmcnt(6)')
        else:
            a(f's_waitcnt vmcnt({wait_for("O%d" % i)}) lgkmcnt(0)')
        for ct in range(3):
            acc = ACC + 16*ct
            cc = '0' if i == 0 else vr(acc, 16)
            a(f'v_mfma_f32_32x32x16_bf16 {vr(acc,16)}, {vr(WF[fb]+4*ct,4)}, {vr(OF+4*i,4)}, {cc}')
    stamp(a, 5)
    SND, KEEP = OF, OF + 24
    a(f'''
    s_cmp_eq_u32 s{s_kh}, 1
    s_cselect_b64 s[{s_m}:{s_m+1}], -1, 0
    s_mul_i32 s{s_t0}, s{s_w}, 6144
    s_xor_b32 s{s_t1}, s{s_w}, 2
    s_mul_i32 s{s_t1}, s{s_t1}, 6144
    v_add_u32 v{vt}, s{s_t0}, v{vlin}
    v_add_u32 v{vt+1}, s{s_t1}, v{vlin}
    v_add_u32 v{vt}, {EX}, v{vt}
    v_add_u32 v{vt+1}, {EX}, v{vt+1}
    ''')
    for r in range(24):
        a(f'v_cndmask_b32 v{SND+r}, v{ACC+24+r}, v{ACC+r}, s[{s_m}:{s_m+1}]')
    for g in range(6):
        a(f'ds_write_b128 v{vt}, {vr(SND+4*g,4)} offset:{1024*g}')
    for r in range(24):
        a(f'v_cndmask_b32 v{KEEP+r}, v{ACC+r}, v{ACC+24+r}, s[{s_m}:{s_m+1}]')
    a('s_waitcnt lgkmcnt(0)')
    a('s_barrier')
    RCV = ACC
    for g in range(6):
        a(f'ds_read_b128 {vr(RCV+4*g,4)}, v{vt+1} offset:{1024*g}')
    v1, v2, v3 = vt+2, vt+3, vt+4
    a(f'''
    v_mov_b32 v{v1}, 0
    v_mov_b32 v{v2}, 0
    v_mov_b32 v{v3}, 0
    s_waitcnt vmcnt(0) lgkmcnt(0)
    ''')
    stamp(a, 6)
    HP = ACC + 24
    for g in range(6):
        for e in range(4):
            r = 4*g + e
            xr = XR + 2*g + e//2
            a(f'v_add_f32 v{KEEP+r}, v{KEEP+r}, v{RCV+r}')
        for k in range(2):
            a(f'v_cvt_pk_bf16_f32 v{vt+5}, v{KEEP+4*g+2*k}, v{KEEP+4*g+2*k+1}')
            xr = XR + 2*g + k
            a(f'''
            v_lshlrev_b32 v{KEEP+4*g+2*k}, 16, v{vt+5}
            v_and_b32 v{KEEP+4*g+2*k+1}, 0xffff0000, v{vt+5}
            v_lshlrev_b32 v{vt+6}, 16, v{xr}
            v_and_b32 v{vt+7}, 0xffff0000, v{xr}
            v_add_f32 v{KEEP+4*g+2*k}, v{KEEP+4*g+2*k}, v{vt+6}
            v_add_f32 v{KEEP+4*g+2*k+1}, v{KEEP+4*g+2*k+1}, v{vt+7}
            v_cvt_pk_bf16_f32 v{HP+2*g+k}, v{KEEP+4*g+2*k}, v{KEEP+4*g+2*k+1}
            v_lshlrev_b32 v{vt+6}, 16, v{HP+2*g+k}
            v_and_b32 v{vt+7}, 0xffff0000, v{HP+2*g+k}
            v_add_f32 v{v1}, v{v1}, v{vt+6}
            v_add_f32 v{v1}, v{v1}, v{vt+7}
            v_fmac_f32 v{v2}, v{vt+6}, v{vt+6}
            v_fmac_f32 v{v2}, v{vt+7}, v{vt+7}
            v_lshlrev_b32 v{vt+8}, 16, v{WR+2*g+k}
            v_and_b32 v{vt+9}, 0xffff0000, v{WR+2*g+k}
            v_fmac_f32 v{v3}, v{vt+6}, v{vt+8}
            v_fmac_f32 v{v3}, v{vt+7}, v{vt+9}
            ''')
        a(f'buffer_store_dwordx2 {vr(HP+2*g,2)}, v{v_hoff}, s[{SWS}:{SWS+3}], s{s_hoff} offen offset:{16*g}')
    a(f'''
    v_mov_b32 v{vt+5}, v{v3}
    v_permlane32_swap_b32 v{v1}, v{v2}
    v_permlane32_swap_b32 v{v3}, v{vt+5}
    v_add_f32 v{v1}, v{v1}, v{v2}
    v_add_f32 v{v3}, v{v3}, v{vt+5}
    v_lshlrev_b32 v{vt+6}, 13, v{v_h}
    v_lshl_add_u32 v{vt+6}, v{v_t}, 2, v{vt+6}
    s_lshl_b32 s{s_t0}, s{s_gt}, 7
    s_add_u32 s{s_t0}, s{s_t0}, {WS_STAT}
    s_add_u32 s{s_t1}, s{s_t0}, 16384
    buffer_atomic_add_f32 v{v1}, v{vt+6}, s[{SWS}:{SWS+3}], s{s_t0} offen
    s_mov_b64 exec, 0xffffffff
    buffer_atomic_add_f32 v{v3}, v{vt+6}, s[{SWS}:{SWS+3}], s{s_t1} offen
    ''')
    stamp(a, 7)
    stamps_flush(a, 2, SWS, s_w, 48)
    a(f'''
    {L}_end:
    s_endpgm
    ''')
    kernels.append((L, 192, 256, EX + 24576, 192, 100))

NFF = 144
NOUT = 64
def dpp_reduce(a, op, reg):
    for sh in (1, 2, 4, 8):
        a(f'{op}_dpp v{reg}, v{reg}, v{reg} row_shr:{sh} row_mask:0xf bank_mask:0xf bound_ctrl:0')
    a(f'{op}_dpp v{reg}, v{reg}, v{reg} row_bcast:15 row_mask:0xa bank_mask:0xf')
    a(f'{op}_dpp v{reg}, v{reg}, v{reg} row_bcast:31 row_mask:0xc bank_mask:0xf')

def k4(a):
    L = 'k4_ffn_kernel'
    begin(a, L)
    SG, SU, SD, SWS, SO, SWR = 16, 20, 24, 28, 32, 36
    s_w, s_t0, s_t1, s_fb, s_idx, s_c, s_swr, s_go, s_do, s_w1k = 40, 41, 42, 43, 44, 45, 46, 47, 48, 49
    v_l, v_t, v_h, vlin, vgu = 1, 2, 3, 4, 5
    vt = 6
    a(f"""
    s_cmp_ge_u32 s2, {NFF+NOUT}
    s_cbranch_scc1 {L}_end
    s_load_dwordx8 s[4:11], s[0:1], 32
    s_load_dwordx2 s[12:13], s[0:1], 64
    s_load_dwordx2 s[14:15], s[0:1], 80
    v_and_b32 v{v_l}, 63, v0
    v_lshrrev_b32 v{vt}, 6, v0
    v_and_b32 v{v_t}, 31, v0
    v_readfirstlane_b32 s{s_w}, v{vt}
    v_bfe_u32 v{v_h}, v0, 5, 1
    v_lshlrev_b32 v{vlin}, 4, v{v_l}
    s_and_b32 s{s_t0}, s2, 7
    s_mul_i32 s{s_fb}, s{s_t0}, 18
    s_lshr_b32 s{s_t0}, s2, 3
    s_add_u32 s{s_fb}, s{s_fb}, s{s_t0}
    v_lshrrev_b32 v{vt}, 2, v{v_l}
    s_lshl_b32 s{s_t0}, s{s_w}, 4
    v_add_u32 v{vt}, s{s_t0}, v{vt}
    v_mul_u32_u24 v{vt}, 9216, v{vt}
    v_and_b32 v{vt+1}, 3, v{v_l}
    v_lshl_add_u32 v{vgu}, v{vt+1}, 4, v{vt}
    s_lshl_b32 s{s_go}, s{s_fb}, 6
    s_lshl_b32 s{s_w1k}, s{s_w}, 10
    s_mul_i32 s{s_do}, s{s_fb}, 36864
    s_add_u32 s{s_do}, s{s_do}, s{s_w1k}
    v_lshlrev_b32 v{vt}, 4, v0
    v_lshlrev_b32 v{vt+1}, 2, v{v_l}
    s_waitcnt lgkmcnt(0)
    """)
    srd(a, SWS, 14, WS_SIZE)
    srd(a, SWR, 4, 1152)
    srd(a, SG, 6, 576*9216)
    srd(a, SU, 8, 576*9216)
    srd(a, SD, 10, 4608*1152)
    srd(a, SO, 12, 2048*1152)
    stamps_init(a); stamp(a, 0)
    a(f"""
    s_cmp_ge_u32 s2, {NFF}
    s_cbranch_scc1 {L}_out
    """)
    LG, LU, LD, LX, LR = 0, 40960, 81920, 122880, 124928
    ST = 24
    WRR = 36
    a(f"""
    s_mov_b32 s{s_t0}, {WS_STAT}
    s_mov_b32 s{s_t1}, {WS_STAT+8192}
    s_mov_b32 s{s_c}, {WS_STAT+16384}
    buffer_load_dwordx4 {vr(ST,4)}, v{vt}, s[{SWS}:{SWS+3}], s{s_t0} offen
    buffer_load_dwordx4 {vr(ST+4,4)}, v{vt}, s[{SWS}:{SWS+3}], s{s_t1} offen
    buffer_load_dwordx4 {vr(ST+8,4)}, v{vt}, s[{SWS}:{SWS+3}], s{s_c} offen
    """)
    for j in range(5):
        a(f'buffer_load_dword v{WRR+j}, v{vt+1}, s[{SWR}:{SWR+3}], 0 offen offset:{256*j}')

    def wdma(j, which):
        S_, LB, so, step, vo = {'g': (SG, LG, s_go, 128*9216, vgu), 'u': (SU, LU, s_go, 128*9216, vgu), 'd': (SD, LD, s_do, 8192, vlin)}[which]
        a(f"""
        s_add_u32 m0, s{s_w1k}, {LB + j*8192}
        s_add_u32 s{s_t0}, s{so}, {j*step}
        buffer_load_dwordx4 v{vo}, s[{S_}:{S_+3}], s{s_t0} offen lds
        """)
    for j in range(4):
        wdma(j, 'g'); wdma(j, 'u')
    stamp(a, 1)
    a('s_waitcnt vmcnt(8)')
    stamp(a, 2)
    v_swr, v_key = vt+2, vt+4
    a(f"""
    v_mov_b32 v{v_swr}, 0
    v_mov_b32 v{vt+3}, 0x3f803f80
    """)
    for j in range(5):
        a(f'v_dot2c_f32_bf16 v{v_swr}, v{WRR+j}, v{vt+3}')
    dpp_reduce(a, 'v_add_f32', v_swr)
    a(f"""
    v_lshlrev_b32 v{vt+10}, 2, v0
    v_sub_u32 v{vt+10}, 2047, v{vt+10}
    v_mov_b32 v{v_key}, 0
    s_mov_b32 s{s_c}, 0xfffff800
    v_readlane_b32 s{s_swr}, v{v_swr}, 63
    """)
    for e in range(4):
        a(f"""
        v_mul_f32 v{vt+5}, {f32(1.0/576)}, v{ST+e}
        v_mul_f32 v{vt+6}, {f32(1.0/576)}, v{ST+4+e}
        v_fma_f32 v{vt+6}, -v{vt+5}, v{vt+5}, v{vt+6}
        v_max_f32 v{vt+6}, 0, v{vt+6}
        v_add_f32 v{vt+6}, {f32(1e-5)}, v{vt+6}
        v_rsq_f32 v{vt+6}, v{vt+6}
        v_fma_f32 v{vt+5}, -v{vt+5}, s{s_swr}, v{ST+8+e}
        v_mul_f32 v{vt+5}, v{vt+5}, v{vt+6}
        v_ashrrev_i32 v{vt+6}, 31, v{vt+5}
        v_or_b32 v{vt+6}, 0x80000000, v{vt+6}
        v_xor_b32 v{vt+5}, v{vt+5}, v{vt+6}
        v_subrev_u32 v{vt+6}, {e}, v{vt+10}
        v_and_or_b32 v{vt+5}, v{vt+5}, s{s_c}, v{vt+6}
        v_max_u32 v{v_key}, v{v_key}, v{vt+5}
        """)
    dpp_reduce(a, 'v_max_u32', v_key)
    a(f"""
    s_lshl_b32 s{s_t0}, s{s_w}, 2
    s_add_u32 s{s_t0}, s{s_t0}, {LR}
    v_mov_b32 v{vt+9}, s{s_t0}
    s_mov_b32 exec_lo, 0
    s_mov_b32 exec_hi, 0x80000000
    ds_write_b32 v{vt+9}, v{v_key}
    s_mov_b64 exec, -1
    v_mov_b32 v{vt+9}, {LR}
    s_waitcnt lgkmcnt(0)
    s_barrier
    ds_read_b128 {vr(ST,4)}, v{vt+9}
    ds_read_b128 {vr(ST+4,4)}, v{vt+9} offset:16
    v_min_u32 v{vt}, 143, v0
    v_lshlrev_b32 v{vt}, 3, v{vt}
    v_mov_b32 v{vt+1}, 0
    s_waitcnt lgkmcnt(0)
    v_max3_u32 v{ST}, v{ST}, v{ST+1}, v{ST+2}
    v_max3_u32 v{ST+3}, v{ST+3}, v{ST+4}, v{ST+5}
    v_max3_u32 v{ST}, v{ST}, v{ST+6}, v{ST+7}
    v_max_u32 v{ST}, v{ST}, v{ST+3}
    v_readfirstlane_b32 s{s_idx}, v{ST}
    s_and_b32 s{s_idx}, s{s_idx}, 0x7ff
    s_sub_u32 s{s_idx}, 2047, s{s_idx}
    """)
    stamp(a, 3)
    HR = 24
    a(f"""
    s_mul_i32 s{s_t0}, s{s_idx}, 1152
    s_add_u32 s{s_t0}, s{s_t0}, {WS_H}
    s_lshl_b32 s{s_t1}, s{s_idx}, 2
    s_add_u32 s{s_t1}, s{s_t1}, {WS_STAT}
    s_add_u32 s{s_c}, s{s_t1}, 8192
    buffer_load_dwordx2 v[{HR}:{HR+1}], v{vt}, s[{SWS}:{SWS+3}], s{s_t0} offen
    buffer_load_dword v{HR+2}, v{vt+1}, s[{SWS}:{SWS+3}], s{s_t1} offen
    buffer_load_dword v{HR+3}, v{vt+1}, s[{SWS}:{SWS+3}], s{s_c} offen
    s_add_u32 s{s_c}, s{s_c}, 8192
    buffer_load_dword v{HR+4}, v{vt+1}, s[{SWS}:{SWS+3}], s{s_c} offen
    """)
    wdma(4, 'g'); wdma(4, 'u')
    for j in range(5):
        wdma(j, 'd')
    a('s_waitcnt vmcnt(7)')
    stamp(a, 4)
    vm_, vri, vsb = 30, 31, 32
    ln_scalars(a, HR+2, HR+3, vm_, vri, vsb)
    for k in range(2):
        a(f"""
        v_lshlrev_b32 v{vt+5}, 16, v{HR+k}
        v_and_b32 v{vt+6}, 0xffff0000, v{HR+k}
        v_sub_f32 v{vt+5}, v{vt+5}, v{vm_}
        v_sub_f32 v{vt+6}, v{vt+6}, v{vm_}
        v_cvt_pk_bf16_f32 v{vt+7}, v{vt+5}, v{vt+6}
        v_lshlrev_b32 v{vt+5}, 16, v{vt+7}
        v_and_b32 v{vt+6}, 0xffff0000, v{vt+7}
        v_mul_f32 v{vt+5}, v{vt+5}, v{vri}
        v_mul_f32 v{vt+6}, v{vt+6}, v{vri}
        v_cvt_pk_bf16_f32 v{34+k}, v{vt+5}, v{vt+6}
        """)
    a(f"""
    v_add_u32 v{vt}, {LX}, v{vt}
    ds_write_b64 v{vt}, v[34:35]
    s_or_b32 s{s_t0}, s2, s{s_w}
    s_cmp_lg_u32 s{s_t0}, 0
    s_cbranch_scc1 {L}_nosel
    v_mov_b32 v36, s{s_idx}
    v_mov_b32 v37, v{vm_}
    v_mov_b32 v38, v{vri}
    v_fma_f32 v39, -v{vm_}, s{s_swr}, v{HR+4}
    v_mul_f32 v39, v39, v{vri}
    s_mov_b32 s{s_t0}, {WS_SEL}
    s_mov_b64 exec, 1
    buffer_store_dwordx4 v[36:39], v{vt+1}, s[{SWS}:{SWS+3}], s{s_t0} offen
    s_mov_b64 exec, -1
    {L}_nosel:
    """)
    vA, vB = vt, vt+1
    XFR = 40
    BFR = 76
    AC = 112
    a(f"""
    s_lshr_b32 s{s_t0}, s{s_w}, 1
    s_mul_i32 s{s_t1}, s{s_t0}, {9*32}
    s_add_u32 s{s_t1}, s{s_t1}, {LX}
    v_lshl_add_u32 v{vA}, v{v_h}, 4, s{s_t1}
    s_mul_i32 s{s_t0}, s{s_t0}, {9*1024}
    s_and_b32 s{s_t1}, s{s_w}, 1
    s_mul_i32 s{s_t1}, s{s_t1}, {LU}
    s_add_u32 s{s_t0}, s{s_t0}, s{s_t1}
    v_bfe_u32 v{vt+2}, v{v_l}, 2, 2
    v_lshl_add_u32 v{vt+2}, v{v_h}, 3, v{vt+2}
    v_lshlrev_b32 v{vB}, 6, v{vt+2}
    v_bfe_u32 v{vt+3}, v{v_l}, 4, 1
    v_lshl_add_u32 v{vB}, v{vt+3}, 5, v{vB}
    v_and_b32 v{vt+4}, 3, v{v_l}
    v_lshl_add_u32 v{vB}, v{vt+4}, 3, v{vB}
    v_add_u32 v{vB}, s{s_t0}, v{vB}
    s_waitcnt vmcnt(0) lgkmcnt(0)
    s_barrier
    """)
    for i in range(9):
        a(f'ds_read_b128 {vr(XFR+4*i,4)}, v{vA} offset:{32*i}')
        a(f'ds_read_b64_tr_b16 {vr(BFR+4*i,2)}, v{vB} offset:{1024*i}')
        a(f'ds_read_b64_tr_b16 {vr(BFR+4*i+2,2)}, v{vB} offset:{1024*i+256}')
        if i >= 3:
            k = i - 3
            a('s_waitcnt lgkmcnt(9)')
            a(f'v_mfma_f32_32x32x16_bf16 {vr(AC,16)}, {vr(XFR+4*k,4)}, {vr(BFR+4*k,4)}, {"0" if k == 0 else vr(AC,16)}')
    DB = 128
    DA = 152
    a(f"""
    v_mul_u32_u24 v{vB}, 1152, v{vt+2}
    v_lshl_add_u32 v{vB}, v{vt+3}, 5, v{vB}
    v_lshl_add_u32 v{vB}, v{vt+4}, 3, v{vB}
    s_lshl_b32 s{s_t0}, s{s_w}, 6
    s_add_u32 s{s_t0}, s{s_t0}, {LD}
    v_add_u32 v{vB}, s{s_t0}, v{vB}
    """)
    for k in range(6, 9):
        a(f's_waitcnt lgkmcnt({3*(8-k)})')
        a(f'v_mfma_f32_32x32x16_bf16 {vr(AC,16)}, {vr(XFR+4*k,4)}, {vr(BFR+4*k,4)}, {vr(AC,16)}')
    for j in range(3):
        for s_ in range(2):
            for jj in range(2):
                a(f'ds_read_b64_tr_b16 {vr(DB+8*j+4*s_+2*jj,2)}, v{vB} offset:{(16*s_+4*jj)*1152 + j*512}')
    stamp(a, 5)
    a(f"""
    s_lshl_b32 s{s_t0}, s{s_w}, 7
    s_add_u32 s{s_t0}, s{s_t0}, {LR+64}
    v_lshl_add_u32 v{vt+5}, v{v_t}, 2, s{s_t0}
    ds_write_b32 v{vt+5}, v{AC}
    v_lshlrev_b32 v{vt+5}, 2, v{v_t}
    v_add_u32 v{vt+5}, {LR+64}, v{vt+5}
    s_waitcnt lgkmcnt(0)
    s_barrier
    """)
    for j in range(8):
        a(f'ds_read_b32 v{24+j}, v{vt+5} offset:{128*j}')
    a(f"""
    s_mul_i32 s{s_t1}, s{s_fb}, 2304
    s_add_u32 s{s_t1}, s{s_t1}, {WS_Y}
    s_lshl_b32 s{s_t0}, s{s_w}, 7
    s_add_u32 s{s_t1}, s{s_t1}, s{s_t0}
    s_lshl_b32 s{s_t0}, s{s_w}, 6
    s_add_u32 s{s_t0}, s{s_t0}, {LR+1536}
    v_lshlrev_b32 v{vt+5}, 1, v{v_t}
    v_add_u32 v{vt+5}, s{s_t0}, v{vt+5}
    v_lshl_add_u32 v{vA}, v{v_h}, 4, s{s_t0}
    s_waitcnt lgkmcnt(0)
    v_add_f32 v24, v24, v26
    v_add_f32 v25, v25, v27
    v_add_f32 v28, v28, v30
    v_add_f32 v29, v29, v31
    v_add_f32 v24, v24, v28
    v_add_f32 v25, v25, v29
    """)
    bf16_round(a, 24, 24)
    bf16_round(a, 25, 25)
    a(f"""
    v_mul_f32 v26, {f32(-math.log2(math.e))}, v24
    v_exp_f32 v26, v26
    v_add_f32 v26, 1.0, v26
    v_rcp_f32 v26, v26
    v_mul_f32 v26, v24, v26
    """)
    bf16_round(a, 26, 26)
    a(f"""
    v_mul_f32 v26, v26, v25
    v_cvt_pk_bf16_f32 v26, v26, v26
    ds_write_b16 v{vt+5}, v26
    v_lshlrev_b32 v{vt+5}, 2, v{v_t}
    s_waitcnt lgkmcnt(0)
    ds_read_b128 {vr(XFR,4)}, v{vA}
    ds_read_b128 {vr(XFR+4,4)}, v{vA} offset:32
    s_waitcnt lgkmcnt(0)
    """)
    for j in range(3):
        a(f'v_mfma_f32_32x32x16_bf16 {vr(DA+16*j,16)}, {vr(XFR,4)}, {vr(DB+8*j,4)}, 0')
        a(f'v_mfma_f32_32x32x16_bf16 {vr(DA+16*j,16)}, {vr(XFR+4,4)}, {vr(DB+8*j+4,4)}, {vr(DA+16*j,16)}')
    a('s_mov_b64 exec, 0xffffffff')
    for j in range(2):
        a(f'buffer_store_dword v{DA+16*j}, v{vt+5}, s[{SWS}:{SWS+3}], s{s_t1} offen offset:{1024*j}')
    a(f"""
    s_cmp_gt_u32 s{s_w}, 1
    s_cbranch_scc1 {L}_fin
    buffer_store_dword v{DA+32}, v{vt+5}, s[{SWS}:{SWS+3}], s{s_t1} offen offset:2048
    {L}_fin:
    """)
    stamp(a, 7)
    stamps_flush(a, 3, SWS, s_w, 24)
    a('s_endpgm')
    a.label(f'{L}_out')
    HB = 32
    SB = 52
    a(f"""
    s_sub_u32 s{s_t0}, s2, {NFF}
    s_mul_i32 s{s_t1}, s{s_t0}, {32*1152}
    s_add_u32 s{s_c}, s{s_t1}, {WS_H}
    s_lshl_b32 s{s_t0}, s{s_t0}, 7
    s_add_u32 s{s_t0}, s{s_t0}, {WS_STAT}
    s_add_u32 s{s_fb}, s{s_t0}, 8192
    """)
    for j in range(5):
        a(f"""
        v_add_u32 v{vt}, {512*j}, v0
        v_min_u32 v{vt}, 2303, v{vt}
        v_lshlrev_b32 v{vt+10+j}, 4, v{vt}
        v_mul_u32_u24 v{vt+1}, 3641, v{vt}
        v_lshrrev_b32 v{vt+1}, 18, v{vt+1}
        v_lshlrev_b32 v{vt+1}, 2, v{vt+1}
        buffer_load_dwordx4 {vr(HB+4*j,4)}, v{vt+10+j}, s[{SWS}:{SWS+3}], s{s_c} offen
        buffer_load_dword v{SB+2*j}, v{vt+1}, s[{SWS}:{SWS+3}], s{s_t0} offen
        buffer_load_dword v{SB+2*j+1}, v{vt+1}, s[{SWS}:{SWS+3}], s{s_fb} offen
        """)
    OB = 64
    for j in range(5):
        a(f's_waitcnt vmcnt({3*(4-j) + j})')
        ln_scalars(a, SB+2*j, SB+2*j+1, vt, vt+1, vt+2)
        for k in range(4):
            hh = HB+4*j+k
            a(f"""
            v_lshlrev_b32 v{vt+3}, 16, v{hh}
            v_and_b32 v{vt+4}, 0xffff0000, v{hh}
            v_sub_f32 v{vt+5}, v{vt+3}, v{vt}
            v_sub_f32 v{vt+6}, v{vt+4}, v{vt}
            v_cvt_pk_bf16_f32 v{vt+7}, v{vt+5}, v{vt+6}
            v_lshlrev_b32 v{vt+5}, 16, v{vt+7}
            v_and_b32 v{vt+6}, 0xffff0000, v{vt+7}
            v_mul_f32 v{vt+5}, v{vt+5}, v{vt+1}
            v_mul_f32 v{vt+6}, v{vt+6}, v{vt+1}
            v_cvt_pk_bf16_f32 v{vt+7}, v{vt+5}, v{vt+6}
            v_lshlrev_b32 v{vt+5}, 16, v{vt+7}
            v_and_b32 v{vt+6}, 0xffff0000, v{vt+7}
            v_add_f32 v{vt+5}, v{vt+5}, v{vt+3}
            v_add_f32 v{vt+6}, v{vt+6}, v{vt+4}
            v_cvt_pk_bf16_f32 v{OB+4*j+k}, v{vt+5}, v{vt+6}
            """)
        a(f'buffer_store_dwordx4 {vr(OB+4*j,4)}, v{vt+10+j}, s[{SO}:{SO+3}], s{s_t1} offen')
    stamp(a, 7)
    stamps_flush(a, 3, SWS, s_w, 100)
    a(f"""
    {L}_end:
    s_endpgm
    """)
    kernels.append((L, NFF+NOUT, 512, LR + 2048, 200, 100))

def k5(a):
    L = 'k5_final_kernel'
    begin(a, L)
    SWS, SO = 12, 16
    s_t0, s_t1, s_idx = 20, 21, 22
    a(f'''
    s_cmp_ge_u32 s2, 18
    s_cbranch_scc1 {L}_end
    s_load_dwordx2 s[4:5], s[0:1], 64
    s_load_dwordx2 s[6:7], s[0:1], 80
    v_and_b32 v1, 31, v0
    v_lshrrev_b32 v2, 5, v0
    v_mul_u32_u24 v3, {18*2304}, v2
    v_lshl_add_u32 v3, v1, 2, v3
    v_mov_b32 v4, 0
    s_waitcnt lgkmcnt(0)
    ''')
    srd(a, SO, 4, 2048*1152)
    srd(a, SWS, 6, WS_SIZE)
    if DIAG and OPT.get('report'):
        a(f'''
        s_cmp_lg_u32 s2, 0
        s_cbranch_scc1 {L}_norep
        s_load_dwordx2 s[28:29], s[0:1], 72
        s_memrealtime s[30:31]
        s_waitcnt lgkmcnt(0)
        s_sub_u32 s32, s28, 0
        s_subb_u32 s33, s29, 0
        s_mov_b32 s34, 64
        s_mov_b32 s35, 0x00020000
        v_lshrrev_b32 v40, 2, v0
        v_mul_u32_u24 v40, {0x28000}, v40
        v_and_b32 v41, 3, v0
        v_mov_b32 v42, 0
        v_cmp_eq_u32 vcc, 1, v41
        v_cndmask_b32 v42, v42, 16, vcc
        v_cmp_eq_u32 vcc, 2, v41
        v_cndmask_b32 v42, v42, 24, vcc
        v_cmp_eq_u32 vcc, 3, v41
        v_cndmask_b32 v42, v42, 56, vcc
        v_add_u32 v40, v40, v42
        s_mov_b32 s36, {WS_DIAG + 5*512}
        buffer_load_dword v43, v40, s[{SWS}:{SWS+3}], s36 offen
        v_lshlrev_b32 v41, 2, v0
        s_waitcnt vmcnt(0)
        v_cmp_eq_u32 vcc, 14, v0
        v_mov_b32 v44, s30
        v_cndmask_b32 v43, v43, v44, vcc
        buffer_store_dword v43, v41, s[32:35], 0 offen
        v_readfirstlane_b32 s37, v43
        s_add_u32 s37, s37, {int(OPT.get('spin', '0'))}
        {L}_spin:
        s_memrealtime s[30:31]
        s_waitcnt lgkmcnt(0)
        s_sub_u32 s38, s30, s37
        s_cmp_lt_i32 s38, 0
        s_cbranch_scc1 {L}_spin
        {L}_norep:
        ''')
    a(f'''
    s_mov_b32 s{s_t1}, {WS_SEL}
    buffer_load_dwordx4 v[8:11], v4, s[{SWS}:{SWS+3}], s{s_t1} offen
    s_lshl_b32 s{s_t0}, s2, 7
    s_add_u32 s{s_t0}, s{s_t0}, {WS_Y}
    ''')
    for j in range(18):
        a(f'buffer_load_dword v{16+j}, v3, s[{SWS}:{SWS+3}], s{s_t0} offen')
        a(f's_add_u32 s{s_t0}, s{s_t0}, 2304')
    a(f'''
    s_waitcnt vmcnt(18)
    v_min_u32 v8, 2047, v8
    v_mul_u32_u24 v5, 1152, v8
    v_lshl_add_u32 v5, v1, 1, v5
    s_lshl_b32 s{s_t1}, s2, 6
    s_add_u32 s{s_t0}, s{s_t1}, {WS_H}
    buffer_load_ushort v12, v5, s[{SWS}:{SWS+3}], s{s_t0} offen
    s_waitcnt vmcnt(1)
    ''')
    for j in range(1, 18):
        a(f'v_add_f32 v16, v16, v{16+j}')
    a(f'''
    v_lshlrev_b32 v6, 2, v0
    ds_write_b32 v6, v16
    s_waitcnt lgkmcnt(0)
    s_barrier
    v_lshlrev_b32 v6, 2, v1
    ''')
    for j in range(8):
        a(f'ds_read_b32 v{16+j}, v6 offset:{128*j}')
    a('s_waitcnt vmcnt(0) lgkmcnt(0)')
    for j in range(1, 8):
        a(f'v_add_f32 v16, v16, v{16+j}')
    bf16_round(a, 16, 16)
    bf16_round(a, 11, 11)
    a(f'''
    v_mul_f32 v13, {f32(-math.log2(math.e))}, v11
    v_exp_f32 v13, v13
    v_add_f32 v13, 1.0, v13
    v_rcp_f32 v13, v13
    ''')
    bf16_round(a, 13, 13)
    a('v_mul_f32 v16, v16, v13')
    bf16_round(a, 16, 16)
    a(f'''
    v_lshlrev_b32 v12, 16, v12
    v_sub_f32 v14, v12, v9
    ''')
    bf16_round(a, 14, 14)
    a('v_mul_f32 v14, v14, v10')
    bf16_round(a, 14, 14)
    a('v_add_f32 v14, v14, v16')
    bf16_round(a, 14, 14)
    a(f'''
    v_add_f32 v14, v14, v12
    v_cvt_pk_bf16_f32 v14, v14, v14
    v_cmp_gt_u32 vcc, 32, v0
    s_and_saveexec_b64 s[24:25], vcc
    s_cbranch_execz {L}_end
    buffer_store_short v14, v5, s[{SO}:{SO+3}], s{s_t1} offen
    {L}_end:
    s_endpgm
    ''')
    kernels.append((L, 18, 256, 1024, 64, 64))


def build(extra_empty=0):
    a = Asm()
    a.raw('.amdgcn_target "amdgcn-amd-amdhsa--gfx950"')
    a.raw('.text')
    k1(a); k2(a); k3(a); k4(a); k5(a)
    nk = len(kernels)
    a.raw('code_end_marker:')
    a('s_endpgm')
    if extra_empty:
        begin(a, 'empty_kernel')
        a('s_endpgm')
        kernels.append(('empty_kernel', 256, 256, 0, 8, 16))
    body = a.render()
    hdr = ''
    for (lab, grid, block, lds, vg, sg) in kernels[:nk]:
        hdr += f'; @launch kernel={lab} grid=({grid},1,1) block=({block},1,1) lds={lds}\n'
    for i in range(extra_empty):
        hdr += f'; @launch kernel=empty_kernel grid=(256,1,1) block=(256,1,1) lds=0\n'
    desc = '.section .rodata,"a"\n'
    for (lab, grid, block, lds, vg, sg) in kernels:
        desc += f'''.p2align 6
.amdhsa_kernel {lab}
  .amdhsa_next_free_vgpr {vg}
  .amdhsa_next_free_sgpr {sg}
  .amdhsa_accum_offset {(vg+3)//4*4}
  .amdhsa_group_segment_fixed_size 0
  .amdhsa_kernarg_size 88
  .amdhsa_user_sgpr_count 2
  .amdhsa_user_sgpr_kernarg_segment_ptr 1
  .amdhsa_system_sgpr_workgroup_id_x 1
  .amdhsa_float_denorm_mode_32 3
.end_amdhsa_kernel
'''
    return hdr + body + desc

if __name__ == '__main__':
    if len(sys.argv) > 3 and sys.argv[3] == 'diag':
        DIAG = True
    if len(sys.argv) > 3 and sys.argv[3] == 'diagc':
        DIAG = 2
    out = sys.argv[1] if len(sys.argv) > 1 else f'cdna_kernels/{NAME}.s'
    open(out, 'w').write(build(int(sys.argv[2]) if len(sys.argv) > 2 else 0))
    print('wrote', out)
```

```python
import sys, struct, math
from asmlib import Asm

NAME = 'sequential_preLN__mha_block__moe_arch_mod__prompt'

CHUNK = 19456
HEADKV = 8 * CHUNK
WS_KV = 0
WS_Q = 0x500000
HEADQ = 73728
WS_O = 0x800000
WS_H = 0xB00000
WS_STAT = 0xE00000
WS_SEL = 0xE08000
WS_Y = 0xE10000
WS_SIZE = 0x1100000

def f32(x):
    return '0x%08x' % struct.unpack('<I', struct.pack('<f', x))[0]

CQ = (18 ** -0.5) * math.log2(math.e)

def srd(a, d, lo, nbytes):
    a(f'''
    s_mov_b32 s{d}, s{lo}
    s_mov_b32 s{d+1}, s{lo+1}
    s_mov_b32 s{d+2}, {nbytes}
    s_mov_b32 s{d+3}, 0x00020000
    ''')

def vr(b, n):
    return f'v[{b}:{b+n-1}]' if n > 1 else f'v{b}'

def bf16_round(a, dst, src):
    a(f'v_cvt_pk_bf16_f32 v{dst}, v{src}, v{src}')
    a(f'v_lshlrev_b32 v{dst}, 16, v{dst}')

def ln_scalars(a, vsum, vsq, vm, vrinv, vt):
    a(f'''
    v_mul_f32 v{vm}, {f32(1.0/576)}, v{vsum}
    v_mul_f32 v{vt}, {f32(1.0/576)}, v{vsq}
    v_fma_f32 v{vt}, -v{vm}, v{vm}, v{vt}
    v_max_f32 v{vt}, 0, v{vt}
    ''')
    bf16_round(a, vt, vt)
    a(f'v_add_f32 v{vt}, {f32(1e-5)}, v{vt}')
    bf16_round(a, vt, vt)
    a(f'v_sqrt_f32 v{vt}, v{vt}')
    bf16_round(a, vt, vt)
    a(f'v_rcp_f32 v{vrinv}, v{vt}')
    bf16_round(a, vm, vm)

kernels = []
DIAG = False
WS_DIAG = 0xF00000
ST0 = 80

import os
OPT = dict(kv.split('=') for kv in os.environ.get('OPT', '').split(',') if kv)

def stamp(a, i, cyc=False):
    if DIAG:
        a(f'{"s_memtime" if (DIAG == 2 or cyc) else "s_memrealtime"} s[{ST0+2*i}:{ST0+2*i+1}]')

def stamps_init(a):
    if DIAG:
        for i in range(16):
            a(f's_mov_b32 s{ST0+i}, 0')

def stamps_flush(a, kidx, sws, s_w, vtmp):
    if not DIAG:
        return
    a(f'''
    s_waitcnt lgkmcnt(0)
    s_lshl_b32 s96, s2, 9
    s_lshl_b32 s97, s{s_w}, 6
    s_add_u32 s96, s96, s97
    s_add_u32 s96, s96, {WS_DIAG + kidx*0x28000}
    s_mov_b64 exec, 1
    v_mov_b32 v{vtmp+4}, 0
    ''')
    for j in range(4):
        for k in range(4):
            a(f'v_mov_b32 v{vtmp+k}, s{ST0+4*j+k}')
        a(f'buffer_store_dwordx4 v[{vtmp}:{vtmp+3}], v{vtmp+4}, s[{sws}:{sws+3}], s96 offen offset:{16*j}')
        a('s_nop 1')

def begin(a, label):
    a.raw('.p2align 8')
    a.raw(f'.globl {label}')
    a.raw(f'.type {label},@function')
    a.label(label)

def k1(a):
    L = 'k1_qkv_kernel'
    begin(a, L)
    BUF = 32768
    EXA = 131072
    SX, SW, SWS = 12, 16, 20
    s_cb, s_tb, s_w, s_w1k, s_xb, s_wb, s_t0, s_t1 = 24, 25, 26, 27, 28, 29, 30, 31
    s_wmask = 32
    s_m = 34
    s_c, s_lds, s_xo, s_wo, s_wp, s_cp, s_a, s_b = 36, 37, 38, 39, 40, 41, 42, 43
    s_ub, s_uh, s_us, s_up = 44, 47, 50, 53
    s_tok = 56
    s_off = 66
    s_hs2, s_sc2, s_pt2, s_g, s_ct = 68, 69, 70, 71, 72
    s_eoff = 4
    v_l, v_t, v_h = 1, 2, 3
    vX, vX2 = 4, 5
    vXa, vXb, vWa = 6, 8, 10
    v_sq = 12
    vt = 16
    XF = [24, 32]
    WF = [40, 48]
    ONES = 56
    ACC = 64
    GR, WSA = 128, 144
    ADDR = list(range(vXa, vXa+6))
    a(f"""
    s_cmp_ge_u32 s2, 256
    s_cbranch_scc1 {L}_end
    s_load_dwordx4 s[4:7], s[0:1], 0
    s_load_dwordx2 s[8:9], s[0:1], 80
    s_and_b32 s10, s2, 7
    s_lshr_b32 s11, s2, 3
    s_and_b32 s{s_cb}, s10, 3
    s_lshl_b32 s{s_cb}, s{s_cb}, 2
    s_and_b32 s{s_t0}, s11, 3
    s_add_u32 s{s_cb}, s{s_cb}, s{s_t0}
    s_lshr_b32 s{s_tb}, s10, 2
    s_lshl_b32 s{s_tb}, s{s_tb}, 3
    s_lshr_b32 s{s_t0}, s11, 2
    s_add_u32 s{s_tb}, s{s_tb}, s{s_t0}
    v_and_b32 v{v_l}, 63, v0
    v_lshrrev_b32 v{vt}, 6, v0
    v_and_b32 v{v_t}, 31, v0
    v_readfirstlane_b32 s{s_w}, v{vt}
    v_bfe_u32 v{v_h}, v0, 5, 1
    s_mul_i32 s{s_xb}, s{s_tb}, {128*1152}
    s_mul_i32 s{s_wb}, s{s_cb}, 216
    s_cmp_ge_u32 s{s_w}, 8
    s_cbranch_scc1 {L}_loader
    s_and_b32 s{s_wp}, s{s_w}, 1
    s_bfe_u32 s{s_cp}, s{s_w}, 0x10001
    s_lshr_b32 s{s_g}, s{s_w}, 2
    s_xor_b32 s{s_ct}, s{s_wp}, s{s_g}
    s_lshl_b32 s{s_t0}, s{s_cp}, 1
    s_add_u32 s{s_ct}, s{s_ct}, s{s_t0}
    """)
    a(f"""
    v_and_b32 v{vt}, 3, v{v_l}
    v_lshlrev_b32 v{vt}, 2, v{vt}
    v_xor_b32 v{vt}, 14, v{vt}
    v_lshlrev_b32 v{vt}, 4, v{vt}
    v_lshl_add_u32 v{vt}, v{v_l}, 8, v{vt}
    s_and_b32 s{s_t0}, s{s_w}, 3
    s_lshl_b32 s{s_t0}, s{s_t0}, 15
    v_add_u32 v{vt+1}, s{s_t0}, v{vt}
    v_mov_b32 v{vt+2}, 0x3f80
    v_mov_b32 v{vt+3}, 0
    ds_write_b64 v{vt+1}, v[{vt+2}:{vt+3}] offset:16384
    """)
    for r in range(4):
        a(f'v_mov_b32 v{ONES+r}, 0x3f803f80')
    a(f"""
    s_lshl_b32 s{s_t0}, s{s_wp}, 13
    v_lshlrev_b32 v{vt}, 7, v{v_t}
    v_add_u32 v{vt}, s{s_t0}, v{vt}
    v_bfe_u32 v{vt+1}, v{v_t}, 1, 3
    v_xor_b32 v{vt+1}, v{vt+1}, v{v_h}
    v_lshl_add_u32 v{vt}, v{vt+1}, 4, v{vt}
    s_lshl_b32 s{s_t0}, s{s_cp}, 12
    v_add_u32 v{vt}, s{s_t0}, v{vt}
    s_lshl_b32 s{s_t0}, s{s_g}, 5
    v_xor_b32 v{vXa}, s{s_t0}, v{vt}
    v_xor_b32 v{vXa+1}, 64, v{vXa}
    v_xor_b32 v{vXb}, 0x1000, v{vXa}
    v_xor_b32 v{vXb+1}, 0x1000, v{vXa+1}
    """)
    v_r, v_c4, v_gp = vt+4, vt+5, vt+6
    a(f"""
    v_bfe_u32 v{v_r}, v{v_l}, 2, 2
    v_and_b32 v{v_c4}, 3, v{v_l}
    v_bfe_u32 v{v_gp}, v{v_l}, 4, 1
    v_lshrrev_b32 v{vt+1}, 1, v{v_c4}
    v_lshl_add_u32 v{vt+1}, v{v_gp}, 1, v{vt+1}
    v_mul_u32_u24 v{vt+2}, 72, v{vt+1}
    v_add_u32 v{vt+2}, 32, v{vt+2}
    v_min_u32 v{vt+2}, 224, v{vt+2}
    v_mul_u32_u24 v{vt+3}, 40, v{v_gp}
    v_lshl_add_u32 v{vt+3}, v{v_c4}, 3, v{vt+3}
    s_lshl_b32 s{s_a}, s{s_g}, 12
    s_add_u32 s{s_a}, s{s_a}, 16384
    """)
    for i in range(2):
        a(f"""
        s_xor_b32 s{s_t0}, s{s_ct}, {i}
        s_mul_i32 s{s_t1}, s{s_t0}, 72
        v_add_u32 v{vt}, s{s_t1}, v{vt+3}
        s_cmp_eq_u32 s{s_t0}, 3
        s_cselect_b64 s[{s_m}:{s_m+1}], -1, 0
        v_cndmask_b32 v{vt}, v{vt}, v{vt+2}, s[{s_m}:{s_m+1}]
        v_lshlrev_b32 v{vt+1}, 6, v{v_r}
        v_xor_b32 v{vt}, v{vt}, v{vt+1}
        v_lshl_add_u32 v{vt+1}, v{v_h}, 3, v{v_r}
        v_lshl_add_u32 v{vt}, v{vt+1}, 8, v{vt}
        v_add_u32 v{vWa+i}, s{s_a}, v{vt}
        """)
    a('s_waitcnt lgkmcnt(0)')
    srd(a, SWS, 8, WS_SIZE)
    stamps_init(a); stamp(a, 0)
    if OPT.get('pf1'):
        srd(a, SX, 4, 2048*1152)
        srd(a, SW, 6, 576*3456)
        a(f"""
        s_lshr_b32 s{s_t0}, s10, 2
        s_mul_i32 s{s_t0}, s{s_t0}, {1024*1152}
        s_mul_i32 s{s_t1}, s11, {576*64}
        s_add_u32 s{s_t0}, s{s_t0}, s{s_t1}
        v_lshlrev_b32 v{vt}, 6, v0
        buffer_load_dword v15, v{vt}, s[{SX}:{SX+3}], s{s_t0} offen
        s_cmp_lg_u32 s{s_w}, 0
        s_cbranch_scc1 {L}_pfw
        s_add_u32 s{s_t0}, s{s_t0}, {512*64}
        buffer_load_dword v15, v{vt}, s[{SX}:{SX+3}], s{s_t0} offen
        s_branch {L}_nopf
        {L}_pfw:
        v_subrev_u32 v{vt}, 64, v0
        v_min_u32 v{vt}, 287, v{vt}
        v_lshrrev_b32 v{vt+1}, 4, v{vt}
        v_and_b32 v{vt}, 15, v{vt}
        v_mul_u32_u24 v{vt+1}, 3456, v{vt+1}
        v_lshl_add_u32 v{vt}, v{vt}, 6, v{vt+1}
        s_and_b32 s{s_t0}, s10, 3
        s_mul_i32 s{s_t0}, s{s_t0}, 864
        s_and_b32 s{s_t0}, s{s_t0}, 0xffffffc0
        s_mul_i32 s{s_t1}, s11, {18*3456}
        s_add_u32 s{s_t0}, s{s_t0}, s{s_t1}
        buffer_load_dword v15, v{vt}, s[{SW}:{SW+3}], s{s_t0} offen
        {L}_nopf:
        """)
    for r in range(96):
        a(f'v_mov_b32 v{ACC+r}, 0')
    for g in range(3):
        a(f"""
        s_mul_i32 s{s_t0}, s{s_cb}, 3
        s_add_u32 s{s_t0}, s{s_t0}, {g}
        s_lshr_b32 s{s_up+g}, s{s_t0}, 4
        s_and_b32 s{s_t0}, s{s_t0}, 15
        s_cmp_eq_u32 s{s_up+g}, 0
        s_cselect_b32 s{s_us+g}, {f32(CQ)}, 1.0
        s_mov_b32 s{s_uh+g}, {HEADKV}
        s_cselect_b32 s{s_uh+g}, {HEADQ}, s{s_uh+g}
        s_cselect_b32 s{s_ub+g}, {WS_Q}, {WS_KV}
        s_lshl_b32 s{s_t0}, s{s_t0}, 1
        s_mul_i32 s{s_t0}, s{s_t0}, s{s_uh+g}
        s_add_u32 s{s_ub+g}, s{s_ub+g}, s{s_t0}
        """)
    for x in range(2):
        k = s_tok + 5*x
        a(f"""
        s_xor_b32 s{s_t0}, s{s_cp}, {x}
        s_lshl_b32 s{s_t1}, s{s_wp}, 1
        s_add_u32 s{s_t0}, s{s_t0}, s{s_t1}
        s_lshl_b32 s{s_t1}, s{s_tb}, 2
        s_add_u32 s{s_t0}, s{s_t0}, s{s_t1}
        s_lshl_b32 s{k}, s{s_t0}, 10
        s_lshl_b32 s{k+3}, s{s_t0}, 7
        s_add_u32 s{k+3}, s{k+3}, 65536
        s_lshr_b32 s{s_t1}, s{s_t0}, 3
        s_mul_i32 s{s_t1}, s{s_t1}, {CHUNK}
        s_and_b32 s{s_t0}, s{s_t0}, 7
        s_lshl_b32 s{k+1}, s{s_t0}, 10
        s_add_u32 s{k+1}, s{k+1}, s{s_t1}
        s_mul_i32 s{k+2}, s{s_t0}, 1280
        s_add_u32 s{k+2}, s{k+2}, s{s_t1}
        s_add_u32 s{k+2}, s{k+2}, 9216
        s_lshl_b32 s{k+4}, s{s_t0}, 7
        s_add_u32 s{k+4}, s{k+4}, s{s_t1}
        s_add_u32 s{k+4}, s{k+4}, 8192
        """)
    for g in range(3):
        for x in range(2):
            k = s_tok + 5*x
            d = s_eoff + 2*g + x
            a(f"""
            s_cmp_eq_u32 s{s_up+g}, 0
            s_cselect_b32 s{d}, s{k+3}, s{k+4}
            s_cmp_eq_u32 s{s_up+g}, 2
            s_cselect_b32 s{d}, s{k+2}, s{d}
            s_add_u32 s{d}, s{d}, s{s_ub+g}
            """)
    a(f"""
    s_cmp_eq_u32 s{s_ct}, 1
    s_cselect_b32 s{s_a}, s{s_ub+1}, s{s_ub}
    s_cselect_b32 s{s_hs2}, s{s_uh+1}, s{s_uh}
    s_cselect_b32 s{s_sc2}, s{s_us+1}, s{s_us}
    s_cselect_b32 s{s_pt2}, s{s_up+1}, s{s_up}
    s_cmp_eq_u32 s{s_ct}, 2
    s_cselect_b32 s{s_a}, s{s_ub+2}, s{s_a}
    s_cselect_b32 s{s_hs2}, s{s_uh+2}, s{s_hs2}
    s_cselect_b32 s{s_sc2}, s{s_us+2}, s{s_sc2}
    s_cselect_b32 s{s_pt2}, s{s_up+2}, s{s_pt2}
    """)
    for x in range(2):
        k = s_tok + 5*x
        d = s_off + x
        a(f"""
        s_cmp_eq_u32 s{s_pt2}, 0
        s_cselect_b32 s{d}, s{k}, s{k+1}
        s_cmp_eq_u32 s{s_pt2}, 2
        s_cselect_b32 s{d}, s{k+2}, s{d}
        s_add_u32 s{d}, s{d}, s{s_a}
        """)
    a(f"""
    v_lshlrev_b32 v{vt}, 2, v0
    v_mov_b32 v{vt+2}, 0
    s_mul_i32 s{s_t0}, s2, 96
    s_add_u32 s{s_t0}, s{s_t0}, {WS_STAT}
    s_cmp_lg_u32 s{s_w}, 0
    s_cbranch_scc1 {L}_nz
    s_mov_b64 exec, 0xffffff
    buffer_store_dword v{vt+2}, v{vt}, s[{SWS}:{SWS+3}], s{s_t0} offen
    s_mov_b64 exec, -1
    {L}_nz:
    """)

    def rd_list(ls, fb):
        r = []
        r.append(f'ds_read_b128 {vr(XF[fb], 4)}, v{vXa+ls}')
        r.append(f'ds_read_b64_tr_b16 {vr(WF[fb], 2)}, v{vWa} offset:{ls*8192}')
        r.append(f'ds_read_b64_tr_b16 {vr(WF[fb]+2, 2)}, v{vWa} offset:{ls*8192 + 1024}')
        r.append(f'ds_read_b128 {vr(XF[fb]+4, 4)}, v{vXb+ls}')
        r.append(f'ds_read_b64_tr_b16 {vr(WF[fb]+4, 2)}, v{vWa+1} offset:{ls*8192}')
        r.append(f'ds_read_b64_tr_b16 {vr(WF[fb]+6, 2)}, v{vWa+1} offset:{ls*8192 + 1024}')
        return r

    def compute(fb, rds, tail):
        ms = []
        for i in range(2):
            for x in range(2):
                acc = ACC + (i*2 + x)*16
                ms.append(f'v_mfma_f32_32x32x16_bf16 {vr(acc,16)}, {vr(WF[fb]+4*i,4)}, {vr(XF[fb]+4*x,4)}, {vr(acc,16)}')
        if not OPT.get('x_nostat'):
            ms.append(f'v_mfma_f32_32x32x16_bf16 {vr(GR,16)}, {vr(XF[fb],4)}, {vr(XF[fb],4)}, {vr(GR,16)}')
            ms.append(f'v_mfma_f32_32x32x16_bf16 {vr(WSA,16)}, {vr(WF[fb],4)}, {vr(ONES,4)}, {vr(WSA,16)}')
        for k, m in enumerate(ms):
            a(m)
            if k < 2:
                for rr in rds[3*k:3*k+3]:
                    a(rr)
            if k == 2:
                tail()

    def adv():
        for r in ADDR:
            a(f'v_add_u32 v{r}, {BUF}, v{r}')
            a(f'v_and_b32 v{r}, 0x1ffff, v{r}')

    stamp(a, 1)
    a('s_waitcnt lgkmcnt(0)')
    a('s_barrier')
    stamp(a, 2)
    for r in rd_list(0, 0):
        a(r)
    a(f's_mov_b32 s{s_c}, 0')
    a.label(f'{L}_loop')
    a('s_waitcnt lgkmcnt(0)')
    compute(0, rd_list(1, 1), adv)
    a('s_waitcnt lgkmcnt(0)')
    a('s_barrier')
    compute(1, rd_list(0, 0), lambda: None)
    a(f"""
    s_add_u32 s{s_c}, s{s_c}, 1
    s_cmp_lt_u32 s{s_c}, 9
    s_cbranch_scc1 {L}_loop
    """)
    stamp(a, 3)
    v_lin = 4
    a(f"""
    v_lshlrev_b32 v{v_lin}, 4, v{v_l}
    s_lshl_b32 s{s_t0}, s{s_w}, 13
    s_xor_b32 s{s_t1}, s{s_t0}, {4<<13}
    v_add_u32 v{vt+5}, s{s_t0}, v{v_lin}
    v_add_u32 v{vt+6}, s{s_t1}, v{v_lin}
    v_lshrrev_b32 v{vt}, 3, v{v_t}
    v_and_b32 v{vt+1}, 3, v{v_t}
    v_lshl_add_u32 v{vt}, v{vt}, 2, v{vt+1}
    s_waitcnt lgkmcnt(0)
    s_barrier
    """)
    for g in range(8):
        a(f'ds_write_b128 v{vt+5}, {vr(ACC+32+4*g,4)} offset:{1024*g}')
    a(f'v_mov_b32 v{v_sq}, v{GR}')
    for r in range(1, 16):
        a(f'v_cmp_eq_u32 vcc, {r}, v{vt}')
        a(f'v_cndmask_b32 v{v_sq}, v{v_sq}, v{GR+r}, vcc')
    a(f"""
    s_lshl_b32 s{s_a}, s{s_wp}, 1
    s_add_u32 s{s_a}, s{s_a}, s{s_cp}
    s_lshl_b32 s{s_a}, s{s_a}, 7
    s_add_u32 s{s_a}, s{s_a}, {EXA}
    v_lshlrev_b32 v{vt}, 2, v{v_t}
    v_add_u32 v{vt+1}, s{s_a}, v{vt}
    s_lshl_b32 s{s_t0}, s{s_g}, 9
    v_add_u32 v{vt+4}, s{s_t0}, v{vt+1}
    v_bfe_u32 v{vt+2}, v{v_t}, 2, 1
    v_cmp_eq_u32 vcc, v{vt+2}, v{v_h}
    s_and_saveexec_b64 s[{s_m}:{s_m+1}], vcc
    ds_write_b32 v{vt+4}, v{v_sq}
    s_mov_b64 exec, -1
    s_lshl_b32 s{s_b}, s{s_ct}, 7
    s_add_u32 s{s_b}, s{s_b}, {EXA}
    s_add_u32 s{s_t1}, s{s_b}, s{s_t0}
    v_lshl_add_u32 v{vt+2}, v{v_h}, 4, s{s_t1}
    s_mov_b32 exec_lo, 1
    s_mov_b32 exec_hi, 1
    """)
    for g in range(4):
        a(f'ds_write_b128 v{vt+2}, {vr(WSA+4*g,4)} offset:{2048+32*g}')
    a(f"""
    s_mov_b64 exec, -1
    v_xor_b32 v{vt+2}, 128, v{vt+1}
    v_xor_b32 v{vt+7}, 128, v{vt+4}
    s_cmp_eq_u32 s{s_cp}, 0
    s_cbranch_scc1 {L}_nosx
    s_cmp_eq_u32 s{s_ct}, 3
    s_cselect_b64 s[{s_m}:{s_m+1}], -1, 0
    v_cndmask_b32 v{vt+3}, v{ACC+2*16+12}, v{ACC+0*16+12}, s[{s_m}:{s_m+1}]
    v_cndmask_b32 v{v_sq}, v{ACC+3*16+12}, v{ACC+1*16+12}, s[{s_m}:{s_m+1}]
    ds_write_b32 v{vt+4}, v{vt+3} offset:1024
    ds_write_b32 v{vt+7}, v{v_sq} offset:1024
    {L}_nosx:
    s_xor_b32 s{s_t1}, s{s_t1}, 512
    v_lshl_add_u32 v{vt+4}, v{v_h}, 4, s{s_t1}
    """)
    v_vrec, v_e4, v_e40, v_off, v_sc = 5, 6, 7, 8, 30
    a(f"""
    v_mul_u32_u24 v{v_vrec}, 40, v{v_t}
    v_lshlrev_b32 v{v_e4}, 2, v{v_t}
    v_add_u32 v{v_e40}, 32, v{v_vrec}
    v_lshl_add_u32 v{v_vrec}, v{v_h}, 4, v{v_vrec}
    s_waitcnt lgkmcnt(0)
    s_barrier
    """)
    vM = [24, 26]; vR = [28, 29]; vS = 48
    WS1 = 32
    a(f"""
    ds_read_b32 v{vS}, v{vt+1}
    ds_read_b32 v{vS+1}, v{vt+1} offset:1024
    ds_read_b32 v{vS+2}, v{vt+2}
    ds_read_b32 v{vS+3}, v{vt+2} offset:1024
    ds_read_b32 v{vS+4}, v{vt+1} offset:512
    ds_read_b32 v{vS+5}, v{vt+1} offset:1536
    ds_read_b32 v{vS+6}, v{vt+2} offset:512
    ds_read_b32 v{vS+7}, v{vt+2} offset:1536
    """)
    for g in range(4):
        a(f'ds_read_b128 {vr(WS1+4*g, 4)}, v{vt+4} offset:{2048+32*g}')
    RC = ACC + 32
    a('s_waitcnt lgkmcnt(4)')
    for g in range(8):
        a(f'ds_read_b128 {vr(RC+4*g,4)}, v{vt+6} offset:{1024*g}')
    for k in range(4):
        a(f'v_add_f32 v{vS+k}, v{vS+k}, v{vS+4+k}')
    for x in range(2):
        ln_scalars(a, vS+2*x+1, vS+2*x, vM[x], vR[x], vt+3)
    a('s_waitcnt lgkmcnt(8)')
    for r in range(0, 16, 2):
        a(f'v_pk_add_f32 {vr(WS1+r,2)}, {vr(WS1+r,2)}, {vr(WSA+r,2)}')
    for x in range(2):
        acc = ACC + x*16
        for r in range(0, 16, 2):
            a(f'v_pk_fma_f32 {vr(acc+r,2)}, {vr(WS1+r,2)}, {vr(vM[x],2)}, {vr(acc+r,2)} op_sel_hi:[1,0,1] neg_lo:[0,1,0] neg_hi:[0,1,0]')
    a('s_waitcnt lgkmcnt(0)')
    for r in range(0, 32, 2):
        a(f'v_pk_add_f32 {vr(ACC+r,2)}, {vr(ACC+r,2)}, {vr(RC+r,2)}')
    stamp(a, 6)
    PK = 32
    a(f"""
    s_cmp_eq_u32 s{s_ct}, 3
    s_cbranch_scc1 {L}_ext
    s_cmp_eq_u32 s{s_pt2}, 2
    s_cselect_b64 s[{s_m}:{s_m+1}], -1, 0
    v_cndmask_b32 v{v_off}, v{v_lin}, v{v_vrec}, s[{s_m}:{s_m+1}]
    """)
    for x in range(2):
        acc = ACC + x*16
        a(f'v_mul_f32 v{v_sc}, s{s_sc2}, v{vR[x]}')
        a(f's_add_u32 s{s_a}, s{s_off+x}, s{s_hs2}')
        for r in range(0, 16, 2):
            a(f'v_pk_mul_f32 {vr(acc+r,2)}, {vr(acc+r,2)}, {vr(v_sc,2)} op_sel_hi:[1,0]')
        pk = PK + 8*x
        for k in range(8):
            a(f'v_cvt_pk_bf16_f32 v{pk+k}, v{acc+2*k}, v{acc+2*k+1}')
        a(f'buffer_store_dwordx4 {vr(pk,4)}, v{v_off}, s[{SWS}:{SWS+3}], s{s_off+x} offen')
        a(f'buffer_store_dwordx4 {vr(pk+4,4)}, v{v_off}, s[{SWS}:{SWS+3}], s{s_a} offen')
    a(f's_branch {L}_done')
    a.label(f'{L}_ext')
    a(f'v_cmp_eq_u32 vcc, 1, v{v_h}')
    for g in range(3):
        a(f"""
        s_cmp_eq_u32 s{s_up+g}, 2
        s_cselect_b64 s[{s_m}:{s_m+1}], -1, 0
        v_cndmask_b32 v{v_off}, v{v_e4}, v{v_e40}, s[{s_m}:{s_m+1}]
        v_mul_lo_u32 v{vt}, v{v_h}, s{s_uh+g}
        v_add_u32 v{v_off}, v{v_off}, v{vt}
        """)
        for x in range(2):
            acc = ACC + x*16
            pk = PK + 4*g + 2*x
            a(f"""
            v_mul_f32 v{v_sc}, s{s_us+g}, v{vR[x]}
            v_cndmask_b32 v{vt}, v{acc+4*g}, v{acc+4*g+2}, vcc
            v_cndmask_b32 v{vt+1}, v{acc+4*g+1}, v{acc+4*g+3}, vcc
            v_mul_f32 v{vt}, v{v_sc}, v{vt}
            v_mul_f32 v{vt+1}, v{v_sc}, v{vt+1}
            v_cvt_pk_bf16_f32 v{pk}, v{vt}, v{vt+1}
            v_mov_b32 v{pk+1}, 0x3f80
            """)
        pk = PK + 4*g
        a(f"""
        s_cbranch_scc1 {L}_e{g}v
        buffer_store_dword v{pk}, v{v_off}, s[{SWS}:{SWS+3}], s{s_eoff+2*g} offen
        buffer_store_dword v{pk+2}, v{v_off}, s[{SWS}:{SWS+3}], s{s_eoff+2*g+1} offen
        s_branch {L}_e{g}d
        {L}_e{g}v:
        buffer_store_dwordx2 {vr(pk,2)}, v{v_off}, s[{SWS}:{SWS+3}], s{s_eoff+2*g} offen
        buffer_store_dwordx2 {vr(pk+2,2)}, v{v_off}, s[{SWS}:{SWS+3}], s{s_eoff+2*g+1} offen
        {L}_e{g}d:
        """)
    a.label(f'{L}_done')
    stamp(a, 7)
    stamps_flush(a, 0, SWS, s_w, 16)
    a('s_endpgm')
    a.label(f'{L}_loader')
    s_par, s_isw, s_step, s_cstep, s_go, s_i = 44, 45, 46, 47, 48, 49
    SL = 12
    a(f"""
    s_and_b32 s{s_par}, s{s_w}, 1
    s_bfe_u32 s{s_isw}, s{s_w}, 0x10001
    v_lshrrev_b32 v{vt}, 3, v{v_l}
    s_lshl_b32 s{s_t0}, s{s_par}, 3
    v_add_u32 v{vt}, s{s_t0}, v{vt}
    v_mul_u32_u24 v{vX}, 1152, v{vt}
    s_lshl_b32 s{s_t0}, s{s_par}, 2
    v_lshrrev_b32 v{vt}, 4, v{v_l}
    v_add_u32 v{vt+1}, s{s_t0}, v{vt}
    v_and_b32 v{vt+2}, 7, v{v_l}
    v_xor_b32 v{vt+2}, v{vt+2}, v{vt+1}
    v_lshl_add_u32 v{vX}, v{vt+2}, 4, v{vX}
    v_mul_u32_u24 v{vX2}, 3456, v{vt+1}
    v_and_b32 v{vt+2}, 15, v{v_l}
    v_lshlrev_b32 v{vt+3}, 2, v{vt}
    v_xor_b32 v{vt+2}, v{vt+2}, v{vt+3}
    v_lshl_add_u32 v{vX2}, v{vt+2}, 4, v{vX2}
    v_cmp_gt_u32 s[{s_wmask}:{s_wmask+1}], 14, v{vt+2}
    s_cmp_eq_u32 s{s_isw}, 1
    s_cselect_b64 s[{s_m}:{s_m+1}], -1, 0
    v_cndmask_b32 v{vX}, v{vX}, v{vX2}, s[{s_m}:{s_m+1}]
    s_cselect_b32 s{s_go}, s{s_wb}, s{s_xb}
    s_mov_b32 s{s_step}, {16*1152}
    s_cselect_b32 s{s_step}, {8*3456}, s{s_step}
    s_mov_b32 s{s_cstep}, 128
    s_cselect_b32 s{s_cstep}, {64*3456}, s{s_cstep}
    s_lshl_b32 s{s_lds}, s{s_isw}, 14
    s_lshl_b32 s{s_t0}, s{s_par}, 10
    s_add_u32 s{s_lds}, s{s_lds}, s{s_t0}
    s_cmp_eq_u32 s{s_isw}, 1
    s_mov_b32 s{SL+2}, {2048*1152}
    s_cselect_b32 s{SL+2}, {576*3456}, s{SL+2}
    s_mov_b32 s{SL+3}, 0x00020000
    s_cselect_b64 s[{s_wmask}:{s_wmask+1}], s[{s_wmask}:{s_wmask+1}], -1
    s_waitcnt lgkmcnt(0)
    s_cselect_b32 s{SL}, s6, s4
    s_cselect_b32 s{SL+1}, s7, s5
    s_mov_b64 exec, s[{s_wmask}:{s_wmask+1}]
    """)

    def issue():
        a(f's_mov_b32 s{s_t0}, s{s_go}')
        for j in range(8):
            a(f"""
            s_add_u32 m0, s{s_lds}, {j*2048}
            buffer_load_dwordx4 v{vX}, s[{SL}:{SL+3}], s{s_t0} offen lds
            s_add_u32 s{s_t0}, s{s_t0}, s{s_step}
            """)
        a(f"""
        s_add_u32 s{s_go}, s{s_go}, s{s_cstep}
        s_add_u32 s{s_lds}, s{s_lds}, {BUF}
        s_and_b32 s{s_lds}, s{s_lds}, 0x1ffff
        """)
    a(f's_mov_b32 s{s_c}, 0')
    a.label(f'{L}_lp')
    issue()
    a(f"""
    s_add_u32 s{s_c}, s{s_c}, 1
    s_cmp_lt_u32 s{s_c}, 3
    s_cbranch_scc1 {L}_lp
    s_waitcnt vmcnt(16)
    s_barrier
    s_cmp_lt_u32 s{s_c}, 9
    s_cbranch_scc1 {L}_lp
    s_waitcnt vmcnt(8)
    s_barrier
    s_waitcnt vmcnt(0)
    s_barrier
    s_barrier
    {L}_end:
    s_endpgm
    """)
    kernels.append((L, 256, 768, EXA + 4096, 160, 100))

def k2(a):
    L = 'k2_attn_kernel'
    begin(a, L)
    SWS = 12
    s_head, s_qb, s_w, s_t0, s_t1, s_kv, s_mode, s_c, s_qs, s_kg, s_n = 20, 21, 22, 23, 24, 25, 26, 27, 28, 29, 30
    s_m = 32
    FLAG = HEADKV
    v_l, v_t, v_h = 1, 2, 3
    vKa, vKe, vVa, vlin = 4, 5, 6, 7
    vt = 8
    QM = [16, 20]; QE = [24, 26]
    KM = [28, 32]; KE = [36, 38]
    VF = [40, 48]
    P = 56
    S = [64, 80]
    O = [96, 112]
    a(f'''
    s_cmp_ge_u32 s2, 256
    s_cbranch_scc1 {L}_end
    s_load_dwordx2 s[8:9], s[0:1], 80
    s_load_dwordx2 s[4:5], s[0:1], 0
    s_load_dwordx2 s[6:7], s[0:1], 16
    s_load_dwordx4 s[56:59], s[0:1], 40
    s_load_dwordx2 s[60:61], s[0:1], 56
    s_and_b32 s10, s2, 7
    s_lshr_b32 s11, s2, 3
    s_lshl_b32 s{s_head}, s10, 2
    s_lshr_b32 s{s_t0}, s11, 3
    s_add_u32 s{s_head}, s{s_head}, s{s_t0}
    s_and_b32 s{s_qb}, s11, 7
    v_and_b32 v{v_l}, 63, v0
    v_lshrrev_b32 v{vt}, 6, v0
    v_and_b32 v{v_t}, 31, v0
    v_readfirstlane_b32 s{s_w}, v{vt}
    v_bfe_u32 v{v_h}, v0, 5, 1
    v_lshlrev_b32 v{vlin}, 4, v{v_l}
    s_and_b32 s{s_qs}, s{s_w}, 3
    s_lshr_b32 s{s_kg}, s{s_w}, 2
    s_mul_i32 s{s_kv}, s{s_head}, {HEADKV}
    s_add_u32 s{s_kv}, s{s_kv}, {WS_KV}
    s_mov_b32 s{s_mode}, 0
    s_waitcnt lgkmcnt(0)
    ''')
    srd(a, SWS, 8, WS_SIZE)
    SPX, SPO, SPG, SPU, SPD = 36, 40, 44, 48, 52
    srd(a, SPX, 4, 2048*1152)
    srd(a, SPO, 6, 576*1152)
    srd(a, SPG, 56, 576*9216)
    srd(a, SPU, 58, 576*9216)
    srd(a, SPD, 60, 4608*1152)
    stamps_init(a); stamp(a, 0)
    a.label(f'{L}_start')
    a(f'''
    s_cmp_eq_u32 s{s_w}, 8
    s_cbranch_scc1 {L}_loader
    ''')
    a(f'''
    s_lshl_b32 s{s_t0}, s{s_qb}, 3
    s_lshl_b32 s{s_t1}, s{s_qs}, 1
    s_add_u32 s{s_t0}, s{s_t0}, s{s_t1}
    s_mul_i32 s{s_t1}, s{s_head}, {HEADQ}
    s_add_u32 s{s_t1}, s{s_t1}, {WS_Q}
    s_lshl_b32 s{s_c}, s{s_t0}, 10
    s_add_u32 s{s_c}, s{s_c}, s{s_t1}
    buffer_load_dwordx4 {vr(QM[0],4)}, v{vlin}, s[{SWS}:{SWS+3}], s{s_c} offen
    buffer_load_dwordx4 {vr(QM[1],4)}, v{vlin}, s[{SWS}:{SWS+3}], s{s_c} offen offset:1024
    s_lshl_b32 s{s_c}, s{s_t0}, 7
    s_add_u32 s{s_c}, s{s_c}, s{s_t1}
    s_add_u32 s{s_c}, s{s_c}, 65536
    v_lshlrev_b32 v{vt}, 2, v{v_t}
    buffer_load_dword v{QE[0]}, v{vt}, s[{SWS}:{SWS+3}], s{s_c} offen
    buffer_load_dword v{QE[1]}, v{vt}, s[{SWS}:{SWS+3}], s{s_c} offen offset:128
    s_lshl_b32 s{s_t0}, s{s_w}, 10
    s_add_u32 s{s_t1}, s{s_kv}, s{s_t0}
    ''')
    s_dl, s_dg = 62, 63
    a(f'''
    s_mov_b32 s{s_dl}, s{s_t0}
    s_mov_b32 s{s_dg}, s{s_t1}
    ''')

    def kvdma(js):
        for j in js:
            a(f'''
            s_add_u32 m0, s{s_dl}, {j*8192}
            s_add_u32 s{s_t1}, s{s_dg}, {j*8192}
            buffer_load_dwordx4 v{vlin}, s[{SWS}:{SWS+3}], s{s_t1} offen lds
            ''')
    kvdma(range(3))
    a(f'''
    v_mov_b32 v{vt}, {FLAG}
    v_mov_b32 v{vt+1}, 0
    ds_write_b32 v{vt}, v{vt+1}
    v_mov_b32 v{KE[0]+1}, 0x3f803f80
    v_mov_b32 v{KE[1]+1}, 0x3f803f80
    v_mov_b32 v{QE[0]+1}, 0
    v_mov_b32 v{QE[1]+1}, 0
    ''')
    a(f'''
    v_bfe_u32 v{vt}, v{v_l}, 2, 2
    v_lshl_add_u32 v{vt}, v{v_h}, 2, v{vt}
    s_lshl_b32 s{s_t0}, s{s_kg}, 7
    v_add_u32 v{vt}, s{s_t0}, v{vt}
    v_mul_u32_u24 v{vVa}, 40, v{vt}
    v_and_b32 v{vt}, 3, v{v_l}
    v_lshlrev_b32 v{vt}, 3, v{vt}
    v_and_b32 v{vt+1}, 16, v{v_l}
    v_cmp_ne_u32 vcc, 0, v{vt+1}
    v_cndmask_b32 v{vt}, v{vt}, 32, vcc
    v_add3_u32 v{vVa}, v{vVa}, v{vt}, 0
    v_add_u32 v{vVa}, 9216, v{vVa}
    ''')
    if OPT.get('vzero'):
        a(f'''
        v_and_b32 v{vt}, 18, v{v_l}
        v_cmp_eq_u32 vcc, 18, v{vt}
        v_add_u32 v{vt}, 0x100000, v{vVa}
        v_cndmask_b32 v{vVa}, v{vVa}, v{vt}, vcc
        ''')
    for r in range(16):
        a(f'v_mov_b32 v{O[0]+r}, 0')
        a(f'v_mov_b32 v{O[1]+r}, 0')
    for r in range(8):
        a(f'v_mov_b32 v{P+r}, 0')
    for r in range(4):
        a(f'v_mov_b32 v{VF[1]+4+r}, 0')
    stamp(a, 1)
    a(f'''
    s_waitcnt vmcnt(0) lgkmcnt(0)
    s_barrier
    v_cmp_eq_u32 vcc, 0, v{v_h}
    v_cndmask_b32 v{QE[0]}, 0, v{QE[0]}, vcc
    v_cndmask_b32 v{QE[1]}, 0, v{QE[1]}, vcc
    ''')
    stamp(a, 2)
    vmx = [vt+4, vt+5]
    a(f'''
    s_cmp_eq_u32 s{s_mode}, 0
    s_cselect_b32 s{s_n}, 1, 64
    s_mov_b32 s{s_c}, 0
    v_mov_b32 v{vmx[0]}, 0xff800000
    v_mov_b32 v{vmx[1]}, 0xff800000
    {L}_mx:
    s_lshr_b32 s{s_t0}, s{s_c}, 3
    s_mul_i32 s{s_t0}, s{s_t0}, {CHUNK}
    s_and_b32 s{s_t1}, s{s_c}, 7
    s_lshl_b32 s{s_t1}, s{s_t1}, 10
    s_add_u32 s{s_t1}, s{s_t1}, s{s_t0}
    v_add_u32 v{vt}, s{s_t1}, v{vlin}
    ds_read_b128 {vr(KM[0],4)}, v{vt}
    s_and_b32 s{s_t1}, s{s_c}, 7
    s_lshl_b32 s{s_t1}, s{s_t1}, 7
    s_add_u32 s{s_t1}, s{s_t1}, s{s_t0}
    v_lshl_add_u32 v{vt}, v{v_t}, 2, s{s_t1}
    ds_read_b32 v{KE[0]}, v{vt} offset:8192
    s_waitcnt lgkmcnt(0)
    ''')
    for q in range(2):
        a(f'v_mfma_f32_32x32x16_bf16 {vr(S[q],16)}, {vr(KM[0],4)}, {vr(QM[q],4)}, 0')
        a(f'v_mfma_f32_32x32x8_bf16 {vr(S[q],16)}, {vr(KE[0],2)}, {vr(QE[q],2)}, {vr(S[q],16)}')
    for q in range(2):
        for k in range(8):
            a(f'v_max3_f32 v{vmx[q]}, v{S[q]+2*k}, v{S[q]+2*k+1}, v{vmx[q]}')
    a(f'''
    s_add_u32 s{s_c}, s{s_c}, 1
    s_cmp_lt_u32 s{s_c}, s{s_n}
    s_cbranch_scc1 {L}_mx
    ''')
    a(f'v_cmp_eq_u32 vcc, 0, v{v_h}')
    for q in range(2):
        a(f'''
        v_mov_b32 v{vt}, v{vmx[q]}
        v_permlane32_swap_b32 v{vmx[q]}, v{vt}
        v_max_f32 v{vt}, v{vmx[q]}, v{vt}
        v_xor_b32 v{vt}, 0x80000000, v{vt}
        v_and_b32 v{vt+1}, 0xffff0000, v{vt}
        v_sub_f32 v{vt}, v{vt}, v{vt+1}
        v_and_b32 v{vt+2}, 0xffff0000, v{vt}
        v_sub_f32 v{vt}, v{vt}, v{vt+2}
        v_lshrrev_b32 v{vt+1}, 16, v{vt+1}
        v_or_b32 v{vt+1}, v{vt+1}, v{vt+2}
        v_lshrrev_b32 v{vt}, 16, v{vt}
        v_cndmask_b32 v{QE[q]+1}, v{vt}, v{vt+1}, vcc
        ''')
    a(f'''
    s_lshl_b32 s{s_t0}, s{s_kg}, 12
    v_add_u32 v{vKa}, s{s_t0}, v{vlin}
    s_lshl_b32 s{s_t0}, s{s_kg}, 9
    s_add_u32 s{s_t0}, s{s_t0}, 8192
    v_lshl_add_u32 v{vKe}, v{v_t}, 2, s{s_t0}
    ''')

    def koff(i):
        return (i // 4) * CHUNK + (i % 4) * 1024, (i // 4) * CHUNK + (i % 4) * 128

    def read_k(i, p):
        o1, o2 = koff(i)
        a(f'ds_read_b128 {vr(KM[p],4)}, v{vKa} offset:{o1}')
        a(f'ds_read_b32 v{KE[p]}, v{vKe} offset:{o2}')

    def read_v(i, p):
        base = (i // 4) * CHUNK + (i % 4) * 1280
        for m in range(2):
            for part in range(2):
                a(f'ds_read_b64_tr_b16 {vr(VF[p]+4*m+2*part,2)}, v{vVa} offset:{base + m*640 + part*320}')

    read_k(0, 0)
    read_k(1, 1)
    read_v(0, 0)
    a('s_waitcnt lgkmcnt(6)')
    a(f'v_mfma_f32_32x32x16_bf16 {vr(S[0],16)}, {vr(KM[0],4)}, {vr(QM[0],4)}, 0')
    a(f'v_mfma_f32_32x32x8_bf16 {vr(S[0],16)}, {vr(KE[0],2)}, {vr(QE[0],2)}, {vr(S[0],16)}')
    a(f's_mov_b32 s{s_c}, 0')
    stamp(a, 3)
    stamp(a, 4, True)
    a('s_nop 7')
    a('s_nop 3')
    a.label(f'{L}_loop')

    def gap(X, g):
        s = S[X]
        for e in range(4):
            a(f'v_exp_f32 v{s+4*g+e}, v{s+4*g+e}')
        a(f'v_cvt_pk_bf16_f32 v{P+2*g}, v{s+4*g}, v{s+4*g+1}')
        a(f'v_cvt_pk_bf16_f32 v{P+2*g+1}, v{s+4*g+2}, v{s+4*g+3}')

    for i in range(4):
        p = i % 2
        if i == 2:
            a(f'''
            s_cmp_gt_u32 s{s_c}, 3
            s_cbranch_scc1 {L}_nb
            s_barrier
            ''')
            a.label(f'{L}_nb')
        a(f'v_mfma_f32_32x32x16_bf16 {vr(S[1],16)}, {vr(KM[p],4)}, {vr(QM[1],4)}, 0')
        gap(0, 0)
        a(f'v_mfma_f32_32x32x8_bf16 {vr(S[1],16)}, {vr(KE[p],2)}, {vr(QE[1],2)}, {vr(S[1],16)}')
        read_k(i+2, p)
        gap(0, 1)
        a(f'v_mfma_f32_32x32x16_bf16 {vr(O[1],16)}, {vr(VF[1-p]+4,4)}, {vr(P+4,4)}, {vr(O[1],16)}')
        read_v(i+1, 1-p)
        gap(0, 2)
        a('s_waitcnt lgkmcnt(6)')
        a(f'v_mfma_f32_32x32x16_bf16 {vr(O[0],16)}, {vr(VF[p],4)}, {vr(P,4)}, {vr(O[0],16)}')
        gap(0, 3)
        a(f'v_mfma_f32_32x32x16_bf16 {vr(S[0],16)}, {vr(KM[1-p],4)}, {vr(QM[0],4)}, 0')
        gap(1, 0)
        a(f'v_mfma_f32_32x32x8_bf16 {vr(S[0],16)}, {vr(KE[1-p],2)}, {vr(QE[0],2)}, {vr(S[0],16)}')
        gap(1, 1)
        a(f'v_mfma_f32_32x32x16_bf16 {vr(O[0],16)}, {vr(VF[p]+4,4)}, {vr(P+4,4)}, {vr(O[0],16)}')
        gap(1, 2)
        a(f'v_mfma_f32_32x32x16_bf16 {vr(O[1],16)}, {vr(VF[p],4)}, {vr(P,4)}, {vr(O[1],16)}')
        gap(1, 3)
    a(f'''
    v_add_u32 v{vKa}, {CHUNK}, v{vKa}
    v_add_u32 v{vKe}, {CHUNK}, v{vKe}
    v_add_u32 v{vVa}, {CHUNK}, v{vVa}
    s_add_u32 s{s_c}, s{s_c}, 1
    s_cmp_lt_u32 s{s_c}, 8
    s_cbranch_scc1 {L}_loop
    v_mfma_f32_32x32x16_bf16 {vr(O[1],16)}, {vr(VF[1]+4,4)}, {vr(P+4,4)}, {vr(O[1],16)}
    ''')
    a('''
    s_waitcnt lgkmcnt(0)
    s_barrier
    ''')
    stamp(a, 5, True)
    stamp(a, 6)
    a(f'''
    s_cmp_eq_u32 s{s_kg}, 1
    s_cselect_b64 s[{s_m}:{s_m+1}], -1, 0
    s_lshl_b32 s{s_t0}, s{s_qs}, 1
    s_add_u32 s{s_t0}, s{s_t0}, s{s_kg}
    s_xor_b32 s{s_t1}, s{s_t0}, 1
    s_mul_i32 s{s_t0}, s{s_t0}, 3072
    s_mul_i32 s{s_t1}, s{s_t1}, 3072
    v_add_u32 v{vt}, s{s_t1}, v{vlin}
    v_add_u32 v{vt+1}, s{s_t0}, v{vlin}
    ''')
    SND, KEEP = S[0], S[1]
    for r in range(12):
        a(f'v_cndmask_b32 v{SND+r}, v{O[1]+r}, v{O[0]+r}, s[{s_m}:{s_m+1}]')
        a(f'v_cndmask_b32 v{KEEP+r}, v{O[0]+r}, v{O[1]+r}, s[{s_m}:{s_m+1}]')
    for g in range(3):
        a(f'ds_write_b128 v{vt}, {vr(SND+4*g,4)} offset:{1024*g}')
    a('s_waitcnt lgkmcnt(0)')
    a('s_barrier')
    for g in range(3):
        a(f'ds_read_b128 {vr(SND+4*g,4)}, v{vt+1} offset:{1024*g}')
    a('s_waitcnt lgkmcnt(0)')
    for r in range(11):
        a(f'v_add_f32 v{KEEP+r}, v{KEEP+r}, v{SND+r}')
    a(f'''
    v_cmp_ngt_f32 vcc, {f32(2.0**60)}, v{KEEP+10}
    v_cmp_nlt_f32 s[{s_m}:{s_m+1}], {f32(2.0**-90)}, v{KEEP+10}
    ''' .replace(f'v_cmp_nlt_f32 s[{s_m}:{s_m+1}], {f32(2.0**-90)}, v{KEEP+10}', f'v_mov_b32 v{vt+2}, {f32(2.0**-90)}\n v_cmp_nlt_f32 s[{s_m}:{s_m+1}], v{vt+2}, v{KEEP+10}'))
    a(f'''
    v_rcp_f32 v{vt+3}, v{KEEP+10}
    s_or_b64 vcc, vcc, s[{s_m}:{s_m+1}]
    s_cbranch_vccz {L}_ok
    v_mov_b32 v{vt}, {FLAG}
    v_mov_b32 v{vt+1}, 1
    ds_write_b32 v{vt}, v{vt+1}
    {L}_ok:
    ''')
    for r in range(10):
        a(f'v_mul_f32 v{KEEP+r}, v{vt+3}, v{KEEP+r}')
    for k in range(5):
        a(f'v_cvt_pk_bf16_f32 v{P+k}, v{KEEP+2*k}, v{KEEP+2*k+1}')
    a(f'''
    s_lshl_b32 s{s_t0}, s{s_qb}, 3
    s_lshl_b32 s{s_t1}, s{s_qs}, 1
    s_add_u32 s{s_t0}, s{s_t0}, s{s_t1}
    s_add_u32 s{s_t0}, s{s_t0}, s{s_kg}
    s_mul_i32 s{s_t0}, s{s_t0}, {36*1024}
    s_add_u32 s{s_t0}, s{s_t0}, {WS_O}
    s_lshl_b32 s{s_t1}, s{s_head}, 10
    s_add_u32 s{s_t1}, s{s_t1}, s{s_t0}
    buffer_store_dwordx4 {vr(P,4)}, v{vlin}, s[{SWS}:{SWS+3}], s{s_t1} offen
    s_lshr_b32 s{s_t1}, s{s_head}, 3
    s_add_u32 s{s_t1}, s{s_t1}, 32
    s_lshl_b32 s{s_t1}, s{s_t1}, 10
    s_add_u32 s{s_t0}, s{s_t0}, s{s_t1}
    s_bfe_u32 s{s_t1}, s{s_head}, 0x10002
    s_lshl_b32 s{s_t1}, s{s_t1}, 9
    s_add_u32 s{s_t0}, s{s_t0}, s{s_t1}
    s_and_b32 s{s_t1}, s{s_head}, 3
    s_lshl_b32 s{s_t1}, s{s_t1}, 2
    s_add_u32 s{s_t0}, s{s_t0}, s{s_t1}
    v_lshlrev_b32 v{vt}, 4, v{v_t}
    buffer_store_dword v{P+4}, v{vt}, s[{SWS}:{SWS+3}], s{s_t0} offen
    ''')
    stamp(a, 7)
    stamps_flush(a, 1, SWS, s_w, 40)
    a(f'''
    s_mov_b64 exec, -1
    {L}_tail:
    s_cmp_eq_u32 s{s_mode}, 1
    s_cbranch_scc1 {L}_end
    s_waitcnt lgkmcnt(0)
    s_barrier
    v_mov_b32 v{vt}, {FLAG}
    ds_read_b32 v{vt+1}, v{vt}
    s_waitcnt lgkmcnt(0)
    v_readfirstlane_b32 s{s_t0}, v{vt+1}
    s_cmp_eq_u32 s{s_t0}, 0
    s_cbranch_scc1 {L}_end
    s_mov_b32 s{s_mode}, 1
    s_waitcnt vmcnt(0)
    s_barrier
    s_branch {L}_start
    {L}_loader:
    s_mov_b32 s{s_c}, {24*1024}
    ''')

    def ldr(upto, tag):
        a(f'''
        {L}_ld{tag}:
        s_mov_b32 m0, s{s_c}
        s_add_u32 s{s_t1}, s{s_kv}, s{s_c}
        buffer_load_dwordx4 v{vlin}, s[{SWS}:{SWS+3}], s{s_t1} offen lds
        s_add_u32 s{s_c}, s{s_c}, 1024
        s_cmp_lt_u32 s{s_c}, {upto*1024}
        s_cbranch_scc1 {L}_ld{tag}
        ''')
    a(f'''
    s_cmp_eq_u32 s{s_mode}, 0
    s_cbranch_scc1 {L}_lfast
    ''')
    ldr(152, 'x')
    a(f'''
    s_waitcnt vmcnt(0)
    s_barrier
    s_barrier
    s_barrier
    s_barrier
    s_barrier
    s_branch {L}_lend
    {L}_lfast:
    ''')
    ldr(38, 'a')
    a('s_barrier')
    ldr(57, 'b')
    a('s_waitcnt vmcnt(19)')
    a('s_barrier')
    ldr(95, 'c')
    a('s_waitcnt vmcnt(38)')
    a('s_barrier')
    ldr(133, 'd')
    a('s_waitcnt vmcnt(57)')
    a('s_barrier')
    ldr(152, 'e')
    a('s_waitcnt vmcnt(0)')
    a('s_barrier')
    if not OPT.get('nopf2'):
        a(f'''
        v_mov_b32 v{vt+3}, v{v_l}
        s_mov_b32 s{s_c}, 0
        {L}_pfl:
        ''')
        a(f'''
        v_min_u32 v{vt}, 323, v{vt+3}
        v_lshlrev_b32 v{vt+1}, 6, v{vt}
        s_mul_i32 s{s_t0}, s11, {324*64}
        buffer_load_dword v{vt+7}, v{vt+1}, s[{SPO}:{SPO+3}], s{s_t0} offen
        s_mul_i32 s{s_t1}, s10, 663552
        s_add_u32 s{s_t0}, s{s_t0}, s{s_t1}
        buffer_load_dword v{vt+7}, v{vt+1}, s[{SPD}:{SPD+3}], s{s_t0} offen
        v_mul_u32_u24 v{vt+1}, 3641, v{vt}
        v_lshrrev_b32 v{vt+1}, 16, v{vt+1}
        v_mul_u32_u24 v{vt+2}, 18, v{vt+1}
        v_sub_u32 v{vt+2}, v{vt}, v{vt+2}
        v_mul_u32_u24 v{vt+1}, 9216, v{vt+1}
        v_lshl_add_u32 v{vt+1}, v{vt+2}, 6, v{vt+1}
        s_mul_i32 s{s_t0}, s11, {18*9216}
        s_mul_i32 s{s_t1}, s10, 1152
        s_add_u32 s{s_t0}, s{s_t0}, s{s_t1}
        buffer_load_dword v{vt+7}, v{vt+1}, s[{SPG}:{SPG+3}], s{s_t0} offen
        buffer_load_dword v{vt+7}, v{vt+1}, s[{SPU}:{SPU+3}], s{s_t0} offen
        v_min_u32 v{vt}, 143, v{vt+3}
        v_lshlrev_b32 v{vt+1}, 6, v{vt}
        s_mul_i32 s{s_t0}, s11, {144*64}
        s_mul_i32 s{s_t1}, s10, 294912
        s_add_u32 s{s_t0}, s{s_t0}, s{s_t1}
        buffer_load_dword v{vt+7}, v{vt+1}, s[{SPX}:{SPX+3}], s{s_t0} offen
        s_getpc_b64 s[64:65]
        {L}_pc:
        s_add_u32 s64, s64, k3_oproj_kernel-{L}_pc
        s_addc_u32 s65, s65, 0
        v_min_u32 v{vt}, (code_end_marker-k3_oproj_kernel)/64, v{vt+3}
        v_lshlrev_b32 v{vt+1}, 6, v{vt}
        global_load_dword v{vt+7}, v{vt+1}, s[64:65]
        v_add_u32 v{vt+3}, 64, v{vt+3}
        s_add_u32 s{s_c}, s{s_c}, 1
        s_cmp_lt_u32 s{s_c}, 6
        s_cbranch_scc1 {L}_pfl
        ''')
    a(f'''
    {L}_lend:
    s_barrier
    s_barrier
    s_branch {L}_tail
    {L}_end:
    s_endpgm
    ''')
    kernels.append((L, 256, 576, HEADKV + 64, 128, 100))

def k3(a):
    L = 'k3_oproj_kernel'
    begin(a, L)
    SX, SWO, SWR, SWS = 12, 16, 20, 24
    s_tb, s_cb, s_w, s_tt, s_kh, s_t0, s_t1, s_g, s_rb, s_gt = 28, 29, 30, 31, 32, 33, 34, 35, 36, 37
    s_m = 38
    v_l, v_t, v_h, vlin = 1, 2, 3, 4
    vt = 6
    vDm = 16
    vDe = 19
    vWa = 22
    vdo = 23
    XR = 24
    WR = 36
    WF = [48, 60]
    ACC = 72
    OF = 120
    EX = 110592
    a(f"""
    s_cmp_ge_u32 s2, 192
    s_cbranch_scc1 {L}_end
    s_load_dwordx2 s[4:5], s[0:1], 0
    s_load_dwordx2 s[6:7], s[0:1], 16
    s_load_dwordx2 s[8:9], s[0:1], 32
    s_load_dwordx2 s[10:11], s[0:1], 80
    s_and_b32 s{s_t0}, s2, 7
    s_lshr_b32 s{s_t1}, s2, 3
    s_mul_i32 s{s_g}, s{s_t1}, 43
    s_lshr_b32 s{s_g}, s{s_g}, 8
    s_mul_i32 s{s_cb}, s{s_g}, 6
    s_sub_u32 s{s_cb}, s{s_t1}, s{s_cb}
    s_lshl_b32 s{s_tb}, s{s_t0}, 2
    s_add_u32 s{s_tb}, s{s_tb}, s{s_g}
    v_and_b32 v{v_l}, 63, v0
    v_lshrrev_b32 v{vt}, 6, v0
    v_and_b32 v{v_t}, 31, v0
    v_readfirstlane_b32 s{s_w}, v{vt}
    v_bfe_u32 v{v_h}, v0, 5, 1
    v_lshlrev_b32 v{vlin}, 4, v{v_l}
    s_and_b32 s{s_tt}, s{s_w}, 1
    s_bfe_u32 s{s_kh}, s{s_w}, 0x10001
    s_cmp_ge_u32 s{s_w}, 4
    s_cbranch_scc1 {L}_loader
    s_lshl_b32 s{s_gt}, s{s_tb}, 1
    s_add_u32 s{s_gt}, s{s_gt}, s{s_tt}
    s_mul_i32 s{s_t0}, s{s_gt}, 36
    s_mul_i32 s{s_t1}, s{s_kh}, 18
    s_add_u32 s{s_t0}, s{s_t0}, s{s_t1}
    s_lshl_b32 s{s_t0}, s{s_t0}, 10
    s_add_u32 s{s_rb}, s{s_t0}, {WS_O}
    v_mul_u32_u24 v{vt}, 1152, v{v_t}
    v_lshl_add_u32 v{vt}, v{v_h}, 3, v{vt}
    v_lshlrev_b32 v{vt+1}, 3, v{v_h}
    s_waitcnt lgkmcnt(0)
    """)
    srd(a, SWS, 10, WS_SIZE)
    srd(a, SX, 4, 2048*1152)
    srd(a, SWR, 8, 1152)
    stamps_init(a); stamp(a, 0)
    for i in range(18):
        a(f'buffer_load_dwordx4 {vr(OF+4*i,4)}, v{vlin}, s[{SWS}:{SWS+3}], s{s_rb} offen offset:{(i%4)*1024}')
        if i % 4 == 3:
            a(f's_add_u32 s{s_rb}, s{s_rb}, 4096')
    a(f"""
    s_mul_i32 s{s_t0}, s{s_cb}, 192
    s_mul_i32 s{s_t1}, s{s_kh}, 96
    s_add_u32 s{s_t0}, s{s_t0}, s{s_t1}
    s_mul_i32 s{s_t1}, s{s_gt}, {32*1152}
    s_add_u32 s{s_t1}, s{s_t1}, s{s_t0}
    """)
    for j in range(6):
        a(f'buffer_load_dwordx2 {vr(XR+2*j,2)}, v{vt}, s[{SX}:{SX+3}], s{s_t1} offen offset:{16*j}')
    for j in range(6):
        a(f'buffer_load_dwordx2 {vr(WR+2*j,2)}, v{vt+1}, s[{SWR}:{SWR+3}], s{s_t0} offen offset:{16*j}')
    v_hoff = 5
    s_hoff = 40
    a(f"""
    v_mov_b32 v{v_hoff}, v{vt}
    s_add_u32 s{s_hoff}, s{s_t1}, {WS_H}
    v_bfe_u32 v{vt}, v{v_l}, 2, 2
    v_lshl_add_u32 v{vt}, v{v_h}, 3, v{vt}
    v_mul_u32_u24 v{vWa}, 192, v{vt}
    v_bfe_u32 v{vt}, v{v_l}, 4, 1
    v_lshl_add_u32 v{vWa}, v{vt}, 5, v{vWa}
    v_and_b32 v{vt}, 3, v{v_l}
    v_lshl_add_u32 v{vWa}, v{vt}, 3, v{vWa}
    s_mul_i32 s{s_t0}, s{s_kh}, {18*3072}
    v_add_u32 v{vWa}, s{s_t0}, v{vWa}
    s_cmp_eq_u32 s{s_kh}, 1
    s_cselect_b64 s[{s_m}:{s_m+1}], -1, 0
    s_mul_i32 s{s_t0}, s{s_w}, 6144
    s_xor_b32 s{s_t1}, s{s_w}, 2
    s_mul_i32 s{s_t1}, s{s_t1}, 6144
    s_add_u32 s{s_t0}, s{s_t0}, {EX}
    s_add_u32 s{s_t1}, s{s_t1}, {EX}
    v_add_u32 v{vt}, s{s_t0}, v{vlin}
    v_add_u32 v{vt+1}, s{s_t1}, v{vlin}
    """)

    def reads(i, fb):
        return [f'ds_read_b64_tr_b16 {vr(WF[fb]+4*ct+2*j,2)}, v{vWa} offset:{i*3072 + j*768 + ct*64}' for ct in range(3) for j in range(2)]

    NST = 6
    stamp(a, 1)
    a('s_barrier')
    stamp(a, 2)
    for r in reads(0, 0):
        a(r)
    for i in range(18):
        fb = i % 2
        if i < 17 and (i + 1) % 3 == 0:
            a('s_barrier')
        a(f's_waitcnt vmcnt({12 + 17 - i}) lgkmcnt(0)')
        nxt = reads(i+1, 1-fb) if i < 17 else []
        for ct in range(3):
            acc = ACC + 16*ct
            cc = '0' if i == 0 else vr(acc, 16)
            a(f'v_mfma_f32_32x32x16_bf16 {vr(acc,16)}, {vr(WF[fb]+4*ct,4)}, {vr(OF+4*i,4)}, {cc}')
            if ct == 0:
                for r in nxt:
                    a(r)
    stamp(a, 5)
    SND, KEEP = OF, OF + 24
    for r in range(24):
        a(f'v_cndmask_b32 v{SND+r}, v{ACC+24+r}, v{ACC+r}, s[{s_m}:{s_m+1}]')
        if r % 4 == 3:
            a(f'ds_write_b128 v{vt}, {vr(SND+r-3,4)} offset:{256*(r-3)}')
    for r in range(24):
        a(f'v_cndmask_b32 v{KEEP+r}, v{ACC+r}, v{ACC+24+r}, s[{s_m}:{s_m+1}]')
    v1, v2, v3, vone = vt+2, vt+3, vt+4, vt+5
    a(f"""
    v_mov_b32 v{v1}, 0
    v_mov_b32 v{v2}, 0
    v_mov_b32 v{v3}, 0
    v_mov_b32 v{vone}, 0x3f803f80
    s_waitcnt vmcnt(0) lgkmcnt(0)
    s_barrier
    """)
    RCV = ACC
    for g in range(6):
        a(f'ds_read_b128 {vr(RCV+4*g,4)}, v{vt+1} offset:{1024*g}')
    XU = OF + 48
    for j in range(12):
        a(f'v_lshlrev_b32 v{XU+2*j}, 16, v{XR+j}')
        a(f'v_and_b32 v{XU+2*j+1}, 0xffff0000, v{XR+j}')
    stamp(a, 6)
    HP = ACC + 24
    for g in range(6):
        a(f's_waitcnt lgkmcnt({5-g})')
        for k in range(2):
            r = 4*g + 2*k
            a(f"""
            v_pk_add_f32 {vr(KEEP+r,2)}, {vr(KEEP+r,2)}, {vr(RCV+r,2)}
            v_cvt_pk_bf16_f32 v{vt+6}, v{KEEP+r}, v{KEEP+r+1}
            v_lshlrev_b32 v{KEEP+r}, 16, v{vt+6}
            v_and_b32 v{KEEP+r+1}, 0xffff0000, v{vt+6}
            v_pk_add_f32 {vr(KEEP+r,2)}, {vr(KEEP+r,2)}, {vr(XU+r,2)}
            v_cvt_pk_bf16_f32 v{HP+2*g+k}, v{KEEP+r}, v{KEEP+r+1}
            """)
        a(f'buffer_store_dwordx2 {vr(HP+2*g,2)}, v{v_hoff}, s[{SWS}:{SWS+3}], s{s_hoff} offen offset:{16*g}')
        for k in range(2):
            a(f"""
            v_dot2c_f32_bf16 v{v1}, v{HP+2*g+k}, v{vone}
            v_dot2c_f32_bf16 v{v2}, v{HP+2*g+k}, v{HP+2*g+k}
            v_dot2c_f32_bf16 v{v3}, v{HP+2*g+k}, v{WR+2*g+k}
            """)
    a(f"""
    v_mov_b32 v{vt+6}, v{v3}
    v_permlane32_swap_b32 v{v1}, v{v2}
    v_permlane32_swap_b32 v{v3}, v{vt+6}
    v_add_f32 v{v1}, v{v1}, v{v2}
    v_add_f32 v{v3}, v{v3}, v{vt+6}
    v_lshlrev_b32 v{vt+7}, 13, v{v_h}
    v_lshl_add_u32 v{vt+7}, v{v_t}, 2, v{vt+7}
    s_lshl_b32 s{s_t0}, s{s_gt}, 7
    s_add_u32 s{s_t0}, s{s_t0}, {WS_STAT}
    s_add_u32 s{s_t1}, s{s_t0}, 16384
    buffer_atomic_add_f32 v{v1}, v{vt+7}, s[{SWS}:{SWS+3}], s{s_t0} offen
    s_mov_b64 exec, 0xffffffff
    buffer_atomic_add_f32 v{v3}, v{vt+7}, s[{SWS}:{SWS+3}], s{s_t1} offen
    """)
    stamp(a, 7)
    stamps_flush(a, 2, SWS, s_w, 48)
    a('s_endpgm')
    a.label(f'{L}_loader')
    for i3 in range(3):
        a(f"""
        v_add_u32 v{vt}, {64*i3}, v{v_l}
        v_mul_u32_u24 v{vt+1}, 1366, v{vt}
        v_lshrrev_b32 v{vt+1}, 14, v{vt+1}
        v_mul_u32_u24 v{vt+2}, 12, v{vt+1}
        v_sub_u32 v{vt+2}, v{vt}, v{vt+2}
        v_lshlrev_b32 v{vt+2}, 4, v{vt+2}
        v_mul_u32_u24 v{vt+3}, 1152, v{vt+1}
        v_add_u32 v{vDm+i3}, v{vt+3}, v{vt+2}
        v_lshrrev_b32 v{vt+3}, 1, v{vt+1}
        v_mul_u32_u24 v{vt+4}, 18, v{vt+3}
        v_and_b32 v{vt+5}, 1, v{vt+1}
        v_add_u32 v{vt+4}, v{vt+4}, v{vt+5}
        v_and_b32 v{vt+3}, 1, v{vt+3}
        v_xor_b32 v{vt+3}, 1, v{vt+3}
        v_lshl_add_u32 v{vt+4}, v{vt+3}, 4, v{vt+4}
        v_mul_u32_u24 v{vt+4}, 1152, v{vt+4}
        v_add_u32 v{vDe+i3}, v{vt+4}, v{vt+2}
        """)
    s_i = 41
    a(f"""
    s_mul_i32 s{s_g}, s{s_kh}, 18
    s_add_u32 s{s_g}, s{s_g}, s{s_tt}
    s_mul_i32 s{s_gt}, s{s_cb}, 192
    s_waitcnt lgkmcnt(0)
    """)
    srd(a, SWO, 6, 576*1152)
    a(f"""
    s_lshl_b32 s{s_t0}, s{s_tt}, 1
    s_mul_i32 s{s_rb}, s{s_g}, 18
    s_add_u32 s{s_rb}, s{s_rb}, s{s_t0}
    s_mul_i32 s{s_rb}, s{s_rb}, 1152
    s_add_u32 s{s_rb}, s{s_rb}, s{s_gt}
    s_mul_i32 s{s_t1}, s{s_g}, 3072
    """)

    def group(m):
        if m >= 7:
            a(f"""
            s_mul_i32 s{s_t0}, s{s_tt}, {144*1152}
            s_add_u32 s{s_t0}, s{s_t0}, {(2*m-14)*144*1152}
            s_add_u32 s{s_t0}, s{s_t0}, s{s_gt}
            s_cmp_eq_u32 s{s_kh}, 1
            s_cselect_b32 s{s_rb}, s{s_t0}, s{s_rb}
            s_cselect_b64 s[{s_m}:{s_m+1}], -1, 0
            """)
        for i3 in range(3):
            src = vDm + i3
            if m >= 7:
                a(f'v_cndmask_b32 v{vdo}, v{vDm+i3}, v{vDe+i3}, s[{s_m}:{s_m+1}]')
                src = vdo
            a(f"""
            s_add_u32 m0, s{s_t1}, {m*6144 + i3*1024}
            s_nop 0
            buffer_load_dwordx4 v{src}, s[{SWO}:{SWO+3}], s{s_rb} offen lds
            """)
        a(f's_add_u32 s{s_rb}, s{s_rb}, {36*1152}')
    issued = 0
    for k in range(6):
        need = min(9, (3*k + 2) // 2 + 1)
        while issued < min(9, need + 2):
            group(issued); issued += 1
        a(f's_waitcnt vmcnt({3*(issued-need)})')
        a('s_barrier')
    a(f"""
    {L}_end:
    s_endpgm
    """)
    kernels.append((L, 192, 512, EX + 24576, 192, 100))

NFF = 144
NOUT = 64
def dpp_reduce(a, op, reg):
    for sh in (1, 2, 4, 8):
        a(f'{op}_dpp v{reg}, v{reg}, v{reg} row_shr:{sh} row_mask:0xf bank_mask:0xf bound_ctrl:0')
    a(f'{op}_dpp v{reg}, v{reg}, v{reg} row_bcast:15 row_mask:0xa bank_mask:0xf')
    a(f'{op}_dpp v{reg}, v{reg}, v{reg} row_bcast:31 row_mask:0xc bank_mask:0xf')

def k4(a):
    L = 'k4_ffn_kernel'
    begin(a, L)
    SG, SU, SD, SWS, SO, SWR = 16, 20, 24, 28, 32, 36
    s_w, s_t0, s_t1, s_fb, s_idx, s_c, s_swr, s_go, s_do, s_w1k = 40, 41, 42, 43, 44, 45, 46, 47, 48, 49
    v_l, v_t, v_h, vlin, vgu = 1, 2, 3, 4, 5
    vt = 6
    a(f"""
    s_cmp_ge_u32 s2, {NFF+NOUT}
    s_cbranch_scc1 {L}_end
    s_load_dwordx8 s[4:11], s[0:1], 32
    s_load_dwordx2 s[12:13], s[0:1], 64
    s_load_dwordx2 s[14:15], s[0:1], 80
    v_and_b32 v{v_l}, 63, v0
    v_lshrrev_b32 v{vt}, 6, v0
    v_and_b32 v{v_t}, 31, v0
    v_readfirstlane_b32 s{s_w}, v{vt}
    v_bfe_u32 v{v_h}, v0, 5, 1
    v_lshlrev_b32 v{vlin}, 4, v{v_l}
    s_and_b32 s{s_t0}, s2, 7
    s_mul_i32 s{s_fb}, s{s_t0}, 18
    s_lshr_b32 s{s_t0}, s2, 3
    s_add_u32 s{s_fb}, s{s_fb}, s{s_t0}
    v_lshrrev_b32 v{vt}, 2, v{v_l}
    s_lshl_b32 s{s_t0}, s{s_w}, 4
    v_add_u32 v{vt}, s{s_t0}, v{vt}
    v_mul_u32_u24 v{vt}, 9216, v{vt}
    v_and_b32 v{vt+1}, 3, v{v_l}
    v_lshl_add_u32 v{vgu}, v{vt+1}, 4, v{vt}
    s_lshl_b32 s{s_go}, s{s_fb}, 6
    s_lshl_b32 s{s_w1k}, s{s_w}, 10
    s_mul_i32 s{s_do}, s{s_fb}, 36864
    s_add_u32 s{s_do}, s{s_do}, s{s_w1k}
    v_lshlrev_b32 v{vt}, 4, v0
    v_lshlrev_b32 v{vt+1}, 2, v{v_l}
    s_waitcnt lgkmcnt(0)
    """)
    srd(a, SWS, 14, WS_SIZE)
    srd(a, SWR, 4, 1152)
    srd(a, SG, 6, 576*9216)
    srd(a, SU, 8, 576*9216)
    srd(a, SD, 10, 4608*1152)
    srd(a, SO, 12, 2048*1152)
    stamps_init(a); stamp(a, 0)
    a(f"""
    s_cmp_ge_u32 s2, {NFF}
    s_cbranch_scc1 {L}_out
    """)
    LG, LU, LD, LX, LR = 0, 40960, 81920, 122880, 124928
    ST = 24
    WRR = 36
    a(f"""
    s_mov_b32 s{s_t0}, {WS_STAT}
    s_mov_b32 s{s_t1}, {WS_STAT+8192}
    s_mov_b32 s{s_c}, {WS_STAT+16384}
    buffer_load_dwordx4 {vr(ST,4)}, v{vt}, s[{SWS}:{SWS+3}], s{s_t0} offen
    buffer_load_dwordx4 {vr(ST+4,4)}, v{vt}, s[{SWS}:{SWS+3}], s{s_t1} offen
    buffer_load_dwordx4 {vr(ST+8,4)}, v{vt}, s[{SWS}:{SWS+3}], s{s_c} offen
    """)
    for j in range(5):
        a(f'buffer_load_dword v{WRR+j}, v{vt+1}, s[{SWR}:{SWR+3}], 0 offen offset:{256*j}')

    def wdma(j, which):
        S_, LB, so, step, vo = {'g': (SG, LG, s_go, 128*9216, vgu), 'u': (SU, LU, s_go, 128*9216, vgu), 'd': (SD, LD, s_do, 8192, vlin)}[which]
        a(f"""
        s_add_u32 m0, s{s_w1k}, {LB + j*8192}
        s_add_u32 s{s_t0}, s{so}, {j*step}
        buffer_load_dwordx4 v{vo}, s[{S_}:{S_+3}], s{s_t0} offen lds
        """)
    NPRE = int(OPT.get('k4pre', '2'))
    for j in range(NPRE):
        wdma(j, 'g'); wdma(j, 'u')
    stamp(a, 1)
    a(f's_waitcnt vmcnt({2*NPRE})')
    stamp(a, 2)
    v_swr, v_key = vt+2, vt+4
    a(f"""
    v_mov_b32 v{v_swr}, 0
    v_mov_b32 v{vt+3}, 0x3f803f80
    """)
    for j in range(5):
        a(f'v_dot2c_f32_bf16 v{v_swr}, v{WRR+j}, v{vt+3}')
    dpp_reduce(a, 'v_add_f32', v_swr)
    a(f"""
    v_lshlrev_b32 v{vt+10}, 2, v0
    v_sub_u32 v{vt+10}, 2047, v{vt+10}
    v_mov_b32 v{v_key}, 0
    s_mov_b32 s{s_c}, 0xfffff800
    v_readlane_b32 s{s_swr}, v{v_swr}, 63
    """)
    for e in range(4):
        a(f"""
        v_mul_f32 v{vt+5}, {f32(1.0/576)}, v{ST+e}
        v_mul_f32 v{vt+6}, {f32(1.0/576)}, v{ST+4+e}
        v_fma_f32 v{vt+6}, -v{vt+5}, v{vt+5}, v{vt+6}
        v_max_f32 v{vt+6}, 0, v{vt+6}
        v_add_f32 v{vt+6}, {f32(1e-5)}, v{vt+6}
        v_rsq_f32 v{vt+6}, v{vt+6}
        v_fma_f32 v{vt+5}, -v{vt+5}, s{s_swr}, v{ST+8+e}
        v_mul_f32 v{vt+5}, v{vt+5}, v{vt+6}
        v_ashrrev_i32 v{vt+6}, 31, v{vt+5}
        v_or_b32 v{vt+6}, 0x80000000, v{vt+6}
        v_xor_b32 v{vt+5}, v{vt+5}, v{vt+6}
        v_subrev_u32 v{vt+6}, {e}, v{vt+10}
        v_and_or_b32 v{vt+5}, v{vt+5}, s{s_c}, v{vt+6}
        v_max_u32 v{v_key}, v{v_key}, v{vt+5}
        """)
    dpp_reduce(a, 'v_max_u32', v_key)
    a(f"""
    s_lshl_b32 s{s_t0}, s{s_w}, 2
    s_add_u32 s{s_t0}, s{s_t0}, {LR}
    v_mov_b32 v{vt+9}, s{s_t0}
    s_mov_b32 exec_lo, 0
    s_mov_b32 exec_hi, 0x80000000
    ds_write_b32 v{vt+9}, v{v_key}
    s_mov_b64 exec, -1
    v_mov_b32 v{vt+9}, {LR}
    s_waitcnt lgkmcnt(0)
    s_barrier
    ds_read_b128 {vr(ST,4)}, v{vt+9}
    ds_read_b128 {vr(ST+4,4)}, v{vt+9} offset:16
    v_min_u32 v{vt}, 143, v0
    v_lshlrev_b32 v{vt}, 3, v{vt}
    v_mov_b32 v{vt+1}, 0
    s_waitcnt lgkmcnt(0)
    v_max3_u32 v{ST}, v{ST}, v{ST+1}, v{ST+2}
    v_max3_u32 v{ST+3}, v{ST+3}, v{ST+4}, v{ST+5}
    v_max3_u32 v{ST}, v{ST}, v{ST+6}, v{ST+7}
    v_max_u32 v{ST}, v{ST}, v{ST+3}
    v_readfirstlane_b32 s{s_idx}, v{ST}
    s_and_b32 s{s_idx}, s{s_idx}, 0x7ff
    s_sub_u32 s{s_idx}, 2047, s{s_idx}
    """)
    stamp(a, 3)
    HR = 24
    a(f"""
    s_mul_i32 s{s_t0}, s{s_idx}, 1152
    s_add_u32 s{s_t0}, s{s_t0}, {WS_H}
    s_lshl_b32 s{s_t1}, s{s_idx}, 2
    s_add_u32 s{s_t1}, s{s_t1}, {WS_STAT}
    s_add_u32 s{s_c}, s{s_t1}, 8192
    buffer_load_dwordx2 v[{HR}:{HR+1}], v{vt}, s[{SWS}:{SWS+3}], s{s_t0} offen
    buffer_load_dword v{HR+2}, v{vt+1}, s[{SWS}:{SWS+3}], s{s_t1} offen
    buffer_load_dword v{HR+3}, v{vt+1}, s[{SWS}:{SWS+3}], s{s_c} offen
    s_add_u32 s{s_c}, s{s_c}, 8192
    buffer_load_dword v{HR+4}, v{vt+1}, s[{SWS}:{SWS+3}], s{s_c} offen
    """)
    NMID = int(OPT.get('k4mid', '4'))
    rest = [(j, w) for j in range(NPRE, 5) for w in 'gu'] + [(j, 'd') for j in range(5)]
    for (j, w) in rest[:NMID]:
        wdma(j, w)
    a(f's_waitcnt vmcnt({NMID})')
    stamp(a, 4)
    vm_, vri, vsb = 30, 31, 32
    ln_scalars(a, HR+2, HR+3, vm_, vri, vsb)
    for k in range(2):
        a(f"""
        v_lshlrev_b32 v{vt+5}, 16, v{HR+k}
        v_and_b32 v{vt+6}, 0xffff0000, v{HR+k}
        v_sub_f32 v{vt+5}, v{vt+5}, v{vm_}
        v_sub_f32 v{vt+6}, v{vt+6}, v{vm_}
        v_cvt_pk_bf16_f32 v{vt+7}, v{vt+5}, v{vt+6}
        v_lshlrev_b32 v{vt+5}, 16, v{vt+7}
        v_and_b32 v{vt+6}, 0xffff0000, v{vt+7}
        v_mul_f32 v{vt+5}, v{vt+5}, v{vri}
        v_mul_f32 v{vt+6}, v{vt+6}, v{vri}
        v_cvt_pk_bf16_f32 v{34+k}, v{vt+5}, v{vt+6}
        """)
    a(f"""
    v_add_u32 v{vt}, {LX}, v{vt}
    ds_write_b64 v{vt}, v[34:35]
    """)
    for (j, w) in rest[NMID:]:
        wdma(j, w)
    a(f"""
    s_or_b32 s{s_t0}, s2, s{s_w}
    s_cmp_lg_u32 s{s_t0}, 0
    s_cbranch_scc1 {L}_nosel
    v_mov_b32 v36, s{s_idx}
    v_mov_b32 v37, v{vm_}
    v_mov_b32 v38, v{vri}
    v_fma_f32 v39, -v{vm_}, s{s_swr}, v{HR+4}
    v_mul_f32 v39, v39, v{vri}
    s_mov_b32 s{s_t0}, {WS_SEL}
    s_mov_b64 exec, 1
    buffer_store_dwordx4 v[36:39], v{vt+1}, s[{SWS}:{SWS+3}], s{s_t0} offen
    s_mov_b64 exec, -1
    {L}_nosel:
    """)
    vA, vB = vt, vt+1
    XFR = 40
    BFR = 76
    AC = 112
    a(f"""
    s_lshr_b32 s{s_t0}, s{s_w}, 1
    s_mul_i32 s{s_t1}, s{s_t0}, {9*32}
    s_add_u32 s{s_t1}, s{s_t1}, {LX}
    v_lshl_add_u32 v{vA}, v{v_h}, 4, s{s_t1}
    s_mul_i32 s{s_t0}, s{s_t0}, {9*1024}
    s_and_b32 s{s_t1}, s{s_w}, 1
    s_mul_i32 s{s_t1}, s{s_t1}, {LU}
    s_add_u32 s{s_t0}, s{s_t0}, s{s_t1}
    v_bfe_u32 v{vt+2}, v{v_l}, 2, 2
    v_lshl_add_u32 v{vt+2}, v{v_h}, 3, v{vt+2}
    v_lshlrev_b32 v{vB}, 6, v{vt+2}
    v_bfe_u32 v{vt+3}, v{v_l}, 4, 1
    v_lshl_add_u32 v{vB}, v{vt+3}, 5, v{vB}
    v_and_b32 v{vt+4}, 3, v{v_l}
    v_lshl_add_u32 v{vB}, v{vt+4}, 3, v{vB}
    v_add_u32 v{vB}, s{s_t0}, v{vB}
    s_waitcnt vmcnt(0) lgkmcnt(0)
    s_barrier
    """)
    for i in range(9):
        a(f'ds_read_b128 {vr(XFR+4*i,4)}, v{vA} offset:{32*i}')
        a(f'ds_read_b64_tr_b16 {vr(BFR+4*i,2)}, v{vB} offset:{1024*i}')
        a(f'ds_read_b64_tr_b16 {vr(BFR+4*i+2,2)}, v{vB} offset:{1024*i+256}')
        if i >= 3:
            k = i - 3
            a('s_waitcnt lgkmcnt(9)')
            a(f'v_mfma_f32_32x32x16_bf16 {vr(AC,16)}, {vr(XFR+4*k,4)}, {vr(BFR+4*k,4)}, {"0" if k == 0 else vr(AC,16)}')
    DB = 128
    DA = 152
    a(f"""
    v_mul_u32_u24 v{vB}, 1152, v{vt+2}
    v_lshl_add_u32 v{vB}, v{vt+3}, 5, v{vB}
    v_lshl_add_u32 v{vB}, v{vt+4}, 3, v{vB}
    s_lshl_b32 s{s_t0}, s{s_w}, 6
    s_add_u32 s{s_t0}, s{s_t0}, {LD}
    v_add_u32 v{vB}, s{s_t0}, v{vB}
    """)
    for k in range(6, 9):
        a(f's_waitcnt lgkmcnt({3*(8-k)})')
        a(f'v_mfma_f32_32x32x16_bf16 {vr(AC,16)}, {vr(XFR+4*k,4)}, {vr(BFR+4*k,4)}, {vr(AC,16)}')
    for j in range(3):
        for s_ in range(2):
            for jj in range(2):
                a(f'ds_read_b64_tr_b16 {vr(DB+8*j+4*s_+2*jj,2)}, v{vB} offset:{(16*s_+4*jj)*1152 + j*512}')
    stamp(a, 5)
    a(f"""
    s_lshl_b32 s{s_t0}, s{s_w}, 7
    s_add_u32 s{s_t0}, s{s_t0}, {LR+64}
    v_lshl_add_u32 v{vt+5}, v{v_t}, 2, s{s_t0}
    ds_write_b32 v{vt+5}, v{AC}
    v_lshlrev_b32 v{vt+5}, 2, v{v_t}
    v_add_u32 v{vt+5}, {LR+64}, v{vt+5}
    s_waitcnt lgkmcnt(0)
    s_barrier
    """)
    for j in range(8):
        a(f'ds_read_b32 v{24+j}, v{vt+5} offset:{128*j}')
    a(f"""
    s_mul_i32 s{s_t1}, s{s_fb}, 2304
    s_add_u32 s{s_t1}, s{s_t1}, {WS_Y}
    s_lshl_b32 s{s_t0}, s{s_w}, 7
    s_add_u32 s{s_t1}, s{s_t1}, s{s_t0}
    s_lshl_b32 s{s_t0}, s{s_w}, 6
    s_add_u32 s{s_t0}, s{s_t0}, {LR+1536}
    v_lshlrev_b32 v{vt+5}, 1, v{v_t}
    v_add_u32 v{vt+5}, s{s_t0}, v{vt+5}
    v_lshl_add_u32 v{vA}, v{v_h}, 4, s{s_t0}
    s_waitcnt lgkmcnt(0)
    v_add_f32 v24, v24, v26
    v_add_f32 v25, v25, v27
    v_add_f32 v28, v28, v30
    v_add_f32 v29, v29, v31
    v_add_f32 v24, v24, v28
    v_add_f32 v25, v25, v29
    """)
    bf16_round(a, 24, 24)
    bf16_round(a, 25, 25)
    a(f"""
    v_mul_f32 v26, {f32(-math.log2(math.e))}, v24
    v_exp_f32 v26, v26
    v_add_f32 v26, 1.0, v26
    v_rcp_f32 v26, v26
    v_mul_f32 v26, v24, v26
    """)
    bf16_round(a, 26, 26)
    a(f"""
    v_mul_f32 v26, v26, v25
    v_cvt_pk_bf16_f32 v26, v26, v26
    ds_write_b16 v{vt+5}, v26
    v_lshlrev_b32 v{vt+5}, 2, v{v_t}
    s_waitcnt lgkmcnt(0)
    ds_read_b128 {vr(XFR,4)}, v{vA}
    ds_read_b128 {vr(XFR+4,4)}, v{vA} offset:32
    s_waitcnt lgkmcnt(0)
    """)
    for j in range(3):
        a(f'v_mfma_f32_32x32x16_bf16 {vr(DA+16*j,16)}, {vr(XFR,4)}, {vr(DB+8*j,4)}, 0')
        a(f'v_mfma_f32_32x32x16_bf16 {vr(DA+16*j,16)}, {vr(XFR+4,4)}, {vr(DB+8*j+4,4)}, {vr(DA+16*j,16)}')
    a('s_mov_b64 exec, 0xffffffff')
    for j in range(2):
        a(f'buffer_store_dword v{DA+16*j}, v{vt+5}, s[{SWS}:{SWS+3}], s{s_t1} offen offset:{1024*j}')
    a(f"""
    s_cmp_gt_u32 s{s_w}, 1
    s_cbranch_scc1 {L}_fin
    buffer_store_dword v{DA+32}, v{vt+5}, s[{SWS}:{SWS+3}], s{s_t1} offen offset:2048
    {L}_fin:
    """)
    stamp(a, 7)
    stamps_flush(a, 3, SWS, s_w, 24)
    a('s_endpgm')
    a.label(f'{L}_out')
    HB = 32
    SB = 52
    a(f"""
    s_sub_u32 s{s_t0}, s2, {NFF}
    s_mul_i32 s{s_t1}, s{s_t0}, {32*1152}
    s_add_u32 s{s_c}, s{s_t1}, {WS_H}
    s_lshl_b32 s{s_t0}, s{s_t0}, 7
    s_add_u32 s{s_t0}, s{s_t0}, {WS_STAT}
    s_add_u32 s{s_fb}, s{s_t0}, 8192
    """)
    for j in range(5):
        a(f"""
        v_add_u32 v{vt}, {512*j}, v0
        v_min_u32 v{vt}, 2303, v{vt}
        v_lshlrev_b32 v{vt+10+j}, 4, v{vt}
        v_mul_u32_u24 v{vt+1}, 3641, v{vt}
        v_lshrrev_b32 v{vt+1}, 18, v{vt+1}
        v_lshlrev_b32 v{vt+1}, 2, v{vt+1}
        buffer_load_dwordx4 {vr(HB+4*j,4)}, v{vt+10+j}, s[{SWS}:{SWS+3}], s{s_c} offen
        buffer_load_dword v{SB+2*j}, v{vt+1}, s[{SWS}:{SWS+3}], s{s_t0} offen
        buffer_load_dword v{SB+2*j+1}, v{vt+1}, s[{SWS}:{SWS+3}], s{s_fb} offen
        """)
    OB = 64
    for j in range(5):
        a(f's_waitcnt vmcnt({3*(4-j) + j})')
        ln_scalars(a, SB+2*j, SB+2*j+1, vt, vt+1, vt+2)
        for k in range(4):
            hh = HB+4*j+k
            a(f"""
            v_lshlrev_b32 v{vt+3}, 16, v{hh}
            v_and_b32 v{vt+4}, 0xffff0000, v{hh}
            v_sub_f32 v{vt+5}, v{vt+3}, v{vt}
            v_sub_f32 v{vt+6}, v{vt+4}, v{vt}
            v_cvt_pk_bf16_f32 v{vt+7}, v{vt+5}, v{vt+6}
            v_lshlrev_b32 v{vt+5}, 16, v{vt+7}
            v_and_b32 v{vt+6}, 0xffff0000, v{vt+7}
            v_mul_f32 v{vt+5}, v{vt+5}, v{vt+1}
            v_mul_f32 v{vt+6}, v{vt+6}, v{vt+1}
            v_cvt_pk_bf16_f32 v{vt+7}, v{vt+5}, v{vt+6}
            v_lshlrev_b32 v{vt+5}, 16, v{vt+7}
            v_and_b32 v{vt+6}, 0xffff0000, v{vt+7}
            v_add_f32 v{vt+5}, v{vt+5}, v{vt+3}
            v_add_f32 v{vt+6}, v{vt+6}, v{vt+4}
            v_cvt_pk_bf16_f32 v{OB+4*j+k}, v{vt+5}, v{vt+6}
            """)
        a(f'buffer_store_dwordx4 {vr(OB+4*j,4)}, v{vt+10+j}, s[{SO}:{SO+3}], s{s_t1} offen')
    stamp(a, 7)
    stamps_flush(a, 3, SWS, s_w, 100)
    a(f"""
    {L}_end:
    s_endpgm
    """)
    kernels.append((L, NFF+NOUT, 512, LR + 2048, 200, 100))

def k5(a):
    L = 'k5_final_kernel'
    begin(a, L)
    SWS, SO = 12, 16
    s_t0, s_t1, s_idx = 20, 21, 22
    a(f'''
    s_cmp_ge_u32 s2, 18
    s_cbranch_scc1 {L}_end
    s_load_dwordx2 s[4:5], s[0:1], 64
    s_load_dwordx2 s[6:7], s[0:1], 80
    v_and_b32 v1, 31, v0
    v_lshrrev_b32 v2, 5, v0
    v_mul_u32_u24 v3, {18*2304}, v2
    v_lshl_add_u32 v3, v1, 2, v3
    v_mov_b32 v4, 0
    s_waitcnt lgkmcnt(0)
    ''')
    srd(a, SO, 4, 2048*1152)
    srd(a, SWS, 6, WS_SIZE)
    if DIAG and OPT.get('report'):
        a(f'''
        s_cmp_lg_u32 s2, 0
        s_cbranch_scc1 {L}_norep
        s_load_dwordx2 s[28:29], s[0:1], 72
        s_memrealtime s[30:31]
        s_waitcnt lgkmcnt(0)
        s_sub_u32 s32, s28, 0
        s_subb_u32 s33, s29, 0
        s_mov_b32 s34, 64
        s_mov_b32 s35, 0x00020000
        v_lshrrev_b32 v40, 2, v0
        v_mul_u32_u24 v40, {0x28000}, v40
        v_and_b32 v41, 3, v0
        v_mov_b32 v42, 0
        v_cmp_eq_u32 vcc, 1, v41
        v_cndmask_b32 v42, v42, 16, vcc
        v_cmp_eq_u32 vcc, 2, v41
        v_cndmask_b32 v42, v42, 24, vcc
        v_cmp_eq_u32 vcc, 3, v41
        v_cndmask_b32 v42, v42, 56, vcc
        v_add_u32 v40, v40, v42
        s_mov_b32 s36, {WS_DIAG + 5*512}
        buffer_load_dword v43, v40, s[{SWS}:{SWS+3}], s36 offen
        v_lshlrev_b32 v41, 2, v0
        s_waitcnt vmcnt(0)
        v_cmp_eq_u32 vcc, 14, v0
        v_mov_b32 v44, s30
        v_cndmask_b32 v43, v43, v44, vcc
        buffer_store_dword v43, v41, s[32:35], 0 offen
        v_readfirstlane_b32 s37, v43
        s_add_u32 s37, s37, {int(OPT.get('spin', '0'))}
        {L}_spin:
        s_memrealtime s[30:31]
        s_waitcnt lgkmcnt(0)
        s_sub_u32 s38, s30, s37
        s_cmp_lt_i32 s38, 0
        s_cbranch_scc1 {L}_spin
        {L}_norep:
        ''')
    a(f'''
    s_mov_b32 s{s_t1}, {WS_SEL}
    buffer_load_dwordx4 v[8:11], v4, s[{SWS}:{SWS+3}], s{s_t1} offen
    s_lshl_b32 s{s_t0}, s2, 7
    s_add_u32 s{s_t0}, s{s_t0}, {WS_Y}
    ''')
    for j in range(18):
        a(f'buffer_load_dword v{16+j}, v3, s[{SWS}:{SWS+3}], s{s_t0} offen')
        a(f's_add_u32 s{s_t0}, s{s_t0}, 2304')
    a(f'''
    s_waitcnt vmcnt(18)
    v_min_u32 v8, 2047, v8
    v_mul_u32_u24 v5, 1152, v8
    v_lshl_add_u32 v5, v1, 1, v5
    s_lshl_b32 s{s_t1}, s2, 6
    s_add_u32 s{s_t0}, s{s_t1}, {WS_H}
    buffer_load_ushort v12, v5, s[{SWS}:{SWS+3}], s{s_t0} offen
    s_waitcnt vmcnt(1)
    ''')
    for j in range(1, 18):
        a(f'v_add_f32 v16, v16, v{16+j}')
    a(f'''
    v_lshlrev_b32 v6, 2, v0
    ds_write_b32 v6, v16
    s_waitcnt lgkmcnt(0)
    s_barrier
    v_lshlrev_b32 v6, 2, v1
    ''')
    for j in range(8):
        a(f'ds_read_b32 v{16+j}, v6 offset:{128*j}')
    a('s_waitcnt vmcnt(0) lgkmcnt(0)')
    for j in range(1, 8):
        a(f'v_add_f32 v16, v16, v{16+j}')
    bf16_round(a, 16, 16)
    bf16_round(a, 11, 11)
    a(f'''
    v_mul_f32 v13, {f32(-math.log2(math.e))}, v11
    v_exp_f32 v13, v13
    v_add_f32 v13, 1.0, v13
    v_rcp_f32 v13, v13
    ''')
    bf16_round(a, 13, 13)
    a('v_mul_f32 v16, v16, v13')
    bf16_round(a, 16, 16)
    a(f'''
    v_lshlrev_b32 v12, 16, v12
    v_sub_f32 v14, v12, v9
    ''')
    bf16_round(a, 14, 14)
    a('v_mul_f32 v14, v14, v10')
    bf16_round(a, 14, 14)
    a('v_add_f32 v14, v14, v16')
    bf16_round(a, 14, 14)
    a(f'''
    v_add_f32 v14, v14, v12
    v_cvt_pk_bf16_f32 v14, v14, v14
    v_cmp_gt_u32 vcc, 32, v0
    s_and_saveexec_b64 s[24:25], vcc
    s_cbranch_execz {L}_end
    buffer_store_short v14, v5, s[{SO}:{SO+3}], s{s_t1} offen
    {L}_end:
    s_endpgm
    ''')
    kernels.append((L, 18, 256, 1024, 64, 64))


def build(extra_empty=0):
    a = Asm()
    a.raw('.amdgcn_target "amdgcn-amd-amdhsa--gfx950"')
    a.raw('.text')
    k1(a); k2(a); k3(a); k4(a); k5(a)
    nk = len(kernels)
    a.raw('code_end_marker:')
    a('s_endpgm')
    if extra_empty:
        begin(a, 'empty_kernel')
        a('s_endpgm')
        kernels.append(('empty_kernel', 256, 256, 0, 8, 16))
    body = a.render()
    hdr = ''
    for (lab, grid, block, lds, vg, sg) in kernels[:nk]:
        hdr += f'; @launch kernel={lab} grid=({grid},1,1) block=({block},1,1) lds={lds}\n'
    for i in range(extra_empty):
        hdr += f'; @launch kernel=empty_kernel grid=(256,1,1) block=(256,1,1) lds=0\n'
    desc = '.section .rodata,"a"\n'
    for (lab, grid, block, lds, vg, sg) in kernels:
        desc += f'''.p2align 6
.amdhsa_kernel {lab}
  .amdhsa_next_free_vgpr {vg}
  .amdhsa_next_free_sgpr {sg}
  .amdhsa_accum_offset {(vg+3)//4*4}
  .amdhsa_group_segment_fixed_size 0
  .amdhsa_kernarg_size 88
  .amdhsa_user_sgpr_count 2
  .amdhsa_user_sgpr_kernarg_segment_ptr 1
  .amdhsa_system_sgpr_workgroup_id_x 1
  .amdhsa_float_denorm_mode_32 3
.end_amdhsa_kernel
'''
    return hdr + body + desc

if __name__ == '__main__':
    if len(sys.argv) > 3 and sys.argv[3] == 'diag':
        DIAG = True
    if len(sys.argv) > 3 and sys.argv[3] == 'diagc':
        DIAG = 2
    out = sys.argv[1] if len(sys.argv) > 1 else f'cdna_kernels/{NAME}.s'
    open(out, 'w').write(build(int(sys.argv[2]) if len(sys.argv) > 2 else 0))
    print('wrote', out)
```

```python
import sys, struct, math
from asmlib import Asm

NAME = 'sequential_preLN__mha_block__moe_arch_mod__prompt'

CHUNK = 19456
HEADKV = 8 * CHUNK
WS_KV = 0
WS_Q = 0x500000
HEADQ = 73728
WS_O = 0x800000
WS_H = 0xB00000
WS_STAT = 0xE00000
WS_SEL = 0xE08000
WS_Y = 0xE10000
WS_SIZE = 0x1100000

def f32(x):
    return '0x%08x' % struct.unpack('<I', struct.pack('<f', x))[0]

CQ = (18 ** -0.5) * math.log2(math.e)

def srd(a, d, lo, nbytes):
    a(f'''
    s_mov_b32 s{d}, s{lo}
    s_mov_b32 s{d+1}, s{lo+1}
    s_mov_b32 s{d+2}, {nbytes}
    s_mov_b32 s{d+3}, 0x00020000
    ''')

def vr(b, n):
    return f'v[{b}:{b+n-1}]' if n > 1 else f'v{b}'

def bf16_round(a, dst, src):
    a(f'v_cvt_pk_bf16_f32 v{dst}, v{src}, v{src}')
    a(f'v_lshlrev_b32 v{dst}, 16, v{dst}')

def ln_scalars(a, vsum, vsq, vm, vrinv, vt):
    a(f'''
    v_mul_f32 v{vm}, {f32(1.0/576)}, v{vsum}
    v_mul_f32 v{vt}, {f32(1.0/576)}, v{vsq}
    v_fma_f32 v{vt}, -v{vm}, v{vm}, v{vt}
    v_max_f32 v{vt}, 0, v{vt}
    ''')
    bf16_round(a, vt, vt)
    a(f'v_add_f32 v{vt}, {f32(1e-5)}, v{vt}')
    bf16_round(a, vt, vt)
    a(f'v_sqrt_f32 v{vt}, v{vt}')
    bf16_round(a, vt, vt)
    a(f'v_rcp_f32 v{vrinv}, v{vt}')
    bf16_round(a, vm, vm)

kernels = []
DIAG = False
WS_DIAG = 0xF00000
ST0 = 80

import os
OPT = dict(kv.split('=') for kv in os.environ.get('OPT', '').split(',') if kv)

def stamp(a, i, cyc=False):
    if DIAG:
        a(f'{"s_memtime" if (DIAG == 2 or cyc) else "s_memrealtime"} s[{ST0+2*i}:{ST0+2*i+1}]')

def stamps_init(a):
    if DIAG:
        for i in range(16):
            a(f's_mov_b32 s{ST0+i}, 0')

def stamps_flush(a, kidx, sws, s_w, vtmp):
    if not DIAG:
        return
    a(f'''
    s_waitcnt lgkmcnt(0)
    s_lshl_b32 s96, s2, 9
    s_lshl_b32 s97, s{s_w}, 6
    s_add_u32 s96, s96, s97
    s_add_u32 s96, s96, {WS_DIAG + kidx*0x28000}
    s_mov_b64 exec, 1
    v_mov_b32 v{vtmp+4}, 0
    ''')
    for j in range(4):
        for k in range(4):
            a(f'v_mov_b32 v{vtmp+k}, s{ST0+4*j+k}')
        a(f'buffer_store_dwordx4 v[{vtmp}:{vtmp+3}], v{vtmp+4}, s[{sws}:{sws+3}], s96 offen offset:{16*j}')
        a('s_nop 1')

def begin(a, label):
    a.raw('.p2align 8')
    a.raw(f'.globl {label}')
    a.raw(f'.type {label},@function')
    a.label(label)

def k1(a):
    L = 'k1_qkv_kernel'
    begin(a, L)
    BUF = 32768
    EXA = 131072
    SX, SW, SWS = 12, 16, 20
    s_cb, s_tb, s_w, s_w1k, s_xb, s_wb, s_t0, s_t1 = 24, 25, 26, 27, 28, 29, 30, 31
    s_wmask = 32
    s_m = 34
    s_c, s_lds, s_xo, s_wo, s_wp, s_cp, s_a, s_b = 36, 37, 38, 39, 40, 41, 42, 43
    s_ub, s_uh, s_us, s_up = 44, 47, 50, 53
    s_tok = 56
    s_off = 66
    s_hs2, s_sc2, s_pt2, s_g, s_ct = 68, 69, 70, 71, 72
    s_eoff = 4
    v_l, v_t, v_h = 1, 2, 3
    vX, vX2 = 4, 5
    vXa, vXb, vWa = 6, 8, 10
    v_sq = 12
    vt = 16
    XF = [24, 32]
    WF = [40, 48]
    ONES = 56
    ACC = 64
    GR, WSA = 128, 144
    ADDR = list(range(vXa, vXa+6))
    if DIAG and OPT.get('early'):
        a('s_memrealtime s[98:99]')
    a(f"""
    s_cmp_ge_u32 s2, 256
    s_cbranch_scc1 {L}_end
    s_load_dwordx4 s[4:7], s[0:1], 0
    s_load_dwordx2 s[8:9], s[0:1], 80
    s_and_b32 s10, s2, 7
    s_lshr_b32 s11, s2, 3
    s_and_b32 s{s_cb}, s10, 3
    s_lshl_b32 s{s_cb}, s{s_cb}, 2
    s_and_b32 s{s_t0}, s11, 3
    s_add_u32 s{s_cb}, s{s_cb}, s{s_t0}
    s_lshr_b32 s{s_tb}, s10, 2
    s_lshl_b32 s{s_tb}, s{s_tb}, 3
    s_lshr_b32 s{s_t0}, s11, 2
    s_add_u32 s{s_tb}, s{s_tb}, s{s_t0}
    v_and_b32 v{v_l}, 63, v0
    v_lshrrev_b32 v{vt}, 6, v0
    v_and_b32 v{v_t}, 31, v0
    v_readfirstlane_b32 s{s_w}, v{vt}
    v_bfe_u32 v{v_h}, v0, 5, 1
    s_mul_i32 s{s_xb}, s{s_tb}, {128*1152}
    s_mul_i32 s{s_wb}, s{s_cb}, 216
    s_cmp_ge_u32 s{s_w}, 8
    s_cbranch_scc1 {L}_loader
    s_and_b32 s{s_wp}, s{s_w}, 1
    s_bfe_u32 s{s_cp}, s{s_w}, 0x10001
    s_lshr_b32 s{s_g}, s{s_w}, 2
    s_xor_b32 s{s_ct}, s{s_wp}, s{s_g}
    s_lshl_b32 s{s_t0}, s{s_cp}, 1
    s_add_u32 s{s_ct}, s{s_ct}, s{s_t0}
    """)
    a(f"""
    v_and_b32 v{vt}, 3, v{v_l}
    v_lshlrev_b32 v{vt}, 2, v{vt}
    v_xor_b32 v{vt}, 14, v{vt}
    v_lshlrev_b32 v{vt}, 4, v{vt}
    v_lshl_add_u32 v{vt}, v{v_l}, 8, v{vt}
    s_and_b32 s{s_t0}, s{s_w}, 3
    s_lshl_b32 s{s_t0}, s{s_t0}, 15
    v_add_u32 v{vt+1}, s{s_t0}, v{vt}
    v_mov_b32 v{vt+2}, 0x3f80
    v_mov_b32 v{vt+3}, 0
    ds_write_b64 v{vt+1}, v[{vt+2}:{vt+3}] offset:16384
    """)
    for r in range(4):
        a(f'v_mov_b32 v{ONES+r}, 0x3f803f80')
    a(f"""
    s_lshl_b32 s{s_t0}, s{s_wp}, 13
    v_lshlrev_b32 v{vt}, 7, v{v_t}
    v_add_u32 v{vt}, s{s_t0}, v{vt}
    v_bfe_u32 v{vt+1}, v{v_t}, 1, 3
    v_xor_b32 v{vt+1}, v{vt+1}, v{v_h}
    v_lshl_add_u32 v{vt}, v{vt+1}, 4, v{vt}
    s_lshl_b32 s{s_t0}, s{s_cp}, 12
    v_add_u32 v{vt}, s{s_t0}, v{vt}
    s_lshl_b32 s{s_t0}, s{s_g}, 5
    v_xor_b32 v{vXa}, s{s_t0}, v{vt}
    v_xor_b32 v{vXa+1}, 64, v{vXa}
    v_xor_b32 v{vXb}, 0x1000, v{vXa}
    v_xor_b32 v{vXb+1}, 0x1000, v{vXa+1}
    """)
    v_r, v_c4, v_gp = vt+4, vt+5, vt+6
    a(f"""
    v_bfe_u32 v{v_r}, v{v_l}, 2, 2
    v_and_b32 v{v_c4}, 3, v{v_l}
    v_bfe_u32 v{v_gp}, v{v_l}, 4, 1
    v_lshrrev_b32 v{vt+1}, 1, v{v_c4}
    v_lshl_add_u32 v{vt+1}, v{v_gp}, 1, v{vt+1}
    v_mul_u32_u24 v{vt+2}, 72, v{vt+1}
    v_add_u32 v{vt+2}, 32, v{vt+2}
    v_min_u32 v{vt+2}, 224, v{vt+2}
    v_mul_u32_u24 v{vt+3}, 40, v{v_gp}
    v_lshl_add_u32 v{vt+3}, v{v_c4}, 3, v{vt+3}
    s_lshl_b32 s{s_a}, s{s_g}, 12
    s_add_u32 s{s_a}, s{s_a}, 16384
    """)
    for i in range(2):
        a(f"""
        s_xor_b32 s{s_t0}, s{s_ct}, {i}
        s_mul_i32 s{s_t1}, s{s_t0}, 72
        v_add_u32 v{vt}, s{s_t1}, v{vt+3}
        s_cmp_eq_u32 s{s_t0}, 3
        s_cselect_b64 s[{s_m}:{s_m+1}], -1, 0
        v_cndmask_b32 v{vt}, v{vt}, v{vt+2}, s[{s_m}:{s_m+1}]
        v_lshlrev_b32 v{vt+1}, 6, v{v_r}
        v_xor_b32 v{vt}, v{vt}, v{vt+1}
        v_lshl_add_u32 v{vt+1}, v{v_h}, 3, v{v_r}
        v_lshl_add_u32 v{vt}, v{vt+1}, 8, v{vt}
        v_add_u32 v{vWa+i}, s{s_a}, v{vt}
        """)
    a('s_waitcnt lgkmcnt(0)')
    srd(a, SWS, 8, WS_SIZE)
    stamps_init(a); stamp(a, 0)
    if DIAG and OPT.get('early'):
        a('s_waitcnt lgkmcnt(0)')
        a(f's_mov_b64 s[{ST0+8}:{ST0+9}], s[{ST0}:{ST0+1}]')
        a(f's_mov_b64 s[{ST0}:{ST0+1}], s[98:99]')
    if OPT.get('pf1'):
        srd(a, SX, 4, 2048*1152)
        srd(a, SW, 6, 576*3456)
        a(f"""
        s_lshr_b32 s{s_t0}, s10, 2
        s_mul_i32 s{s_t0}, s{s_t0}, {1024*1152}
        s_mul_i32 s{s_t1}, s11, {576*64}
        s_add_u32 s{s_t0}, s{s_t0}, s{s_t1}
        v_lshlrev_b32 v{vt}, 6, v0
        buffer_load_dword v15, v{vt}, s[{SX}:{SX+3}], s{s_t0} offen
        s_cmp_lg_u32 s{s_w}, 0
        s_cbranch_scc1 {L}_pfw
        s_add_u32 s{s_t0}, s{s_t0}, {512*64}
        buffer_load_dword v15, v{vt}, s[{SX}:{SX+3}], s{s_t0} offen
        s_branch {L}_nopf
        {L}_pfw:
        v_subrev_u32 v{vt}, 64, v0
        v_min_u32 v{vt}, 287, v{vt}
        v_lshrrev_b32 v{vt+1}, 4, v{vt}
        v_and_b32 v{vt}, 15, v{vt}
        v_mul_u32_u24 v{vt+1}, 3456, v{vt+1}
        v_lshl_add_u32 v{vt}, v{vt}, 6, v{vt+1}
        s_and_b32 s{s_t0}, s10, 3
        s_mul_i32 s{s_t0}, s{s_t0}, 864
        s_and_b32 s{s_t0}, s{s_t0}, 0xffffffc0
        s_mul_i32 s{s_t1}, s11, {18*3456}
        s_add_u32 s{s_t0}, s{s_t0}, s{s_t1}
        buffer_load_dword v15, v{vt}, s[{SW}:{SW+3}], s{s_t0} offen
        {L}_nopf:
        """)
    for r in range(96):
        a(f'v_mov_b32 v{ACC+r}, 0')
    for g in range(3):
        a(f"""
        s_mul_i32 s{s_t0}, s{s_cb}, 3
        s_add_u32 s{s_t0}, s{s_t0}, {g}
        s_lshr_b32 s{s_up+g}, s{s_t0}, 4
        s_and_b32 s{s_t0}, s{s_t0}, 15
        s_cmp_eq_u32 s{s_up+g}, 0
        s_cselect_b32 s{s_us+g}, {f32(CQ)}, 1.0
        s_mov_b32 s{s_uh+g}, {HEADKV}
        s_cselect_b32 s{s_uh+g}, {HEADQ}, s{s_uh+g}
        s_cselect_b32 s{s_ub+g}, {WS_Q}, {WS_KV}
        s_lshl_b32 s{s_t0}, s{s_t0}, 1
        s_mul_i32 s{s_t0}, s{s_t0}, s{s_uh+g}
        s_add_u32 s{s_ub+g}, s{s_ub+g}, s{s_t0}
        """)
    for x in range(2):
        k = s_tok + 5*x
        a(f"""
        s_xor_b32 s{s_t0}, s{s_cp}, {x}
        s_lshl_b32 s{s_t1}, s{s_wp}, 1
        s_add_u32 s{s_t0}, s{s_t0}, s{s_t1}
        s_lshl_b32 s{s_t1}, s{s_tb}, 2
        s_add_u32 s{s_t0}, s{s_t0}, s{s_t1}
        s_lshl_b32 s{k}, s{s_t0}, 10
        s_lshl_b32 s{k+3}, s{s_t0}, 7
        s_add_u32 s{k+3}, s{k+3}, 65536
        s_lshr_b32 s{s_t1}, s{s_t0}, 3
        s_mul_i32 s{s_t1}, s{s_t1}, {CHUNK}
        s_and_b32 s{s_t0}, s{s_t0}, 7
        s_lshl_b32 s{k+1}, s{s_t0}, 10
        s_add_u32 s{k+1}, s{k+1}, s{s_t1}
        s_mul_i32 s{k+2}, s{s_t0}, 1280
        s_add_u32 s{k+2}, s{k+2}, s{s_t1}
        s_add_u32 s{k+2}, s{k+2}, 9216
        s_lshl_b32 s{k+4}, s{s_t0}, 7
        s_add_u32 s{k+4}, s{k+4}, s{s_t1}
        s_add_u32 s{k+4}, s{k+4}, 8192
        """)
    for g in range(3):
        for x in range(2):
            k = s_tok + 5*x
            d = s_eoff + 2*g + x
            a(f"""
            s_cmp_eq_u32 s{s_up+g}, 0
            s_cselect_b32 s{d}, s{k+3}, s{k+4}
            s_cmp_eq_u32 s{s_up+g}, 2
            s_cselect_b32 s{d}, s{k+2}, s{d}
            s_add_u32 s{d}, s{d}, s{s_ub+g}
            """)
    a(f"""
    s_cmp_eq_u32 s{s_ct}, 1
    s_cselect_b32 s{s_a}, s{s_ub+1}, s{s_ub}
    s_cselect_b32 s{s_hs2}, s{s_uh+1}, s{s_uh}
    s_cselect_b32 s{s_sc2}, s{s_us+1}, s{s_us}
    s_cselect_b32 s{s_pt2}, s{s_up+1}, s{s_up}
    s_cmp_eq_u32 s{s_ct}, 2
    s_cselect_b32 s{s_a}, s{s_ub+2}, s{s_a}
    s_cselect_b32 s{s_hs2}, s{s_uh+2}, s{s_hs2}
    s_cselect_b32 s{s_sc2}, s{s_us+2}, s{s_sc2}
    s_cselect_b32 s{s_pt2}, s{s_up+2}, s{s_pt2}
    """)
    for x in range(2):
        k = s_tok + 5*x
        d = s_off + x
        a(f"""
        s_cmp_eq_u32 s{s_pt2}, 0
        s_cselect_b32 s{d}, s{k}, s{k+1}
        s_cmp_eq_u32 s{s_pt2}, 2
        s_cselect_b32 s{d}, s{k+2}, s{d}
        s_add_u32 s{d}, s{d}, s{s_a}
        """)
    a(f"""
    v_lshlrev_b32 v{vt}, 2, v0
    v_mov_b32 v{vt+2}, 0
    s_mul_i32 s{s_t0}, s2, 96
    s_add_u32 s{s_t0}, s{s_t0}, {WS_STAT}
    s_cmp_lg_u32 s{s_w}, 0
    s_cbranch_scc1 {L}_nz
    s_mov_b64 exec, 0xffffff
    buffer_store_dword v{vt+2}, v{vt}, s[{SWS}:{SWS+3}], s{s_t0} offen
    s_mov_b64 exec, -1
    {L}_nz:
    """)

    def rd_list(ls, fb):
        r = []
        r.append(f'ds_read_b128 {vr(XF[fb], 4)}, v{vXa+ls}')
        r.append(f'ds_read_b64_tr_b16 {vr(WF[fb], 2)}, v{vWa} offset:{ls*8192}')
        r.append(f'ds_read_b64_tr_b16 {vr(WF[fb]+2, 2)}, v{vWa} offset:{ls*8192 + 1024}')
        r.append(f'ds_read_b128 {vr(XF[fb]+4, 4)}, v{vXb+ls}')
        r.append(f'ds_read_b64_tr_b16 {vr(WF[fb]+4, 2)}, v{vWa+1} offset:{ls*8192}')
        r.append(f'ds_read_b64_tr_b16 {vr(WF[fb]+6, 2)}, v{vWa+1} offset:{ls*8192 + 1024}')
        return r

    def compute(fb, rds, tail):
        ms = []
        for i in range(2):
            for x in range(2):
                acc = ACC + (i*2 + x)*16
                ms.append(f'v_mfma_f32_32x32x16_bf16 {vr(acc,16)}, {vr(WF[fb]+4*i,4)}, {vr(XF[fb]+4*x,4)}, {vr(acc,16)}')
        if not OPT.get('x_nostat'):
            ms.append(f'v_mfma_f32_32x32x16_bf16 {vr(GR,16)}, {vr(XF[fb],4)}, {vr(XF[fb],4)}, {vr(GR,16)}')
            ms.append(f'v_mfma_f32_32x32x16_bf16 {vr(WSA,16)}, {vr(WF[fb],4)}, {vr(ONES,4)}, {vr(WSA,16)}')
        for k, m in enumerate(ms):
            a(m)
            if k < 2:
                for rr in rds[3*k:3*k+3]:
                    a(rr)
            if k == 2:
                tail()

    def adv():
        for r in ADDR:
            a(f'v_add_u32 v{r}, {BUF}, v{r}')
            a(f'v_and_b32 v{r}, 0x1ffff, v{r}')

    stamp(a, 1)
    a('s_waitcnt lgkmcnt(0)')
    a('s_barrier')
    stamp(a, 2)
    for r in rd_list(0, 0):
        a(r)
    a(f's_mov_b32 s{s_c}, 0')
    a.label(f'{L}_loop')
    a('s_waitcnt lgkmcnt(0)')
    compute(0, rd_list(1, 1), adv)
    a('s_waitcnt lgkmcnt(0)')
    a('s_barrier')
    compute(1, rd_list(0, 0), lambda: None)
    a(f"""
    s_add_u32 s{s_c}, s{s_c}, 1
    s_cmp_lt_u32 s{s_c}, 9
    s_cbranch_scc1 {L}_loop
    """)
    stamp(a, 3)
    v_lin = 4
    a(f"""
    v_lshlrev_b32 v{v_lin}, 4, v{v_l}
    s_lshl_b32 s{s_t0}, s{s_w}, 13
    s_xor_b32 s{s_t1}, s{s_t0}, {4<<13}
    v_add_u32 v{vt+5}, s{s_t0}, v{v_lin}
    v_add_u32 v{vt+6}, s{s_t1}, v{v_lin}
    v_lshrrev_b32 v{vt}, 3, v{v_t}
    v_and_b32 v{vt+1}, 3, v{v_t}
    v_lshl_add_u32 v{vt}, v{vt}, 2, v{vt+1}
    s_waitcnt lgkmcnt(0)
    s_barrier
    """)
    for g in range(8):
        a(f'ds_write_b128 v{vt+5}, {vr(ACC+32+4*g,4)} offset:{1024*g}')
    a(f'v_mov_b32 v{v_sq}, v{GR}')
    for r in range(1, 16):
        a(f'v_cmp_eq_u32 vcc, {r}, v{vt}')
        a(f'v_cndmask_b32 v{v_sq}, v{v_sq}, v{GR+r}, vcc')
    a(f"""
    s_lshl_b32 s{s_a}, s{s_wp}, 1
    s_add_u32 s{s_a}, s{s_a}, s{s_cp}
    s_lshl_b32 s{s_a}, s{s_a}, 7
    s_add_u32 s{s_a}, s{s_a}, {EXA}
    v_lshlrev_b32 v{vt}, 2, v{v_t}
    v_add_u32 v{vt+1}, s{s_a}, v{vt}
    s_lshl_b32 s{s_t0}, s{s_g}, 9
    v_add_u32 v{vt+4}, s{s_t0}, v{vt+1}
    v_bfe_u32 v{vt+2}, v{v_t}, 2, 1
    v_cmp_eq_u32 vcc, v{vt+2}, v{v_h}
    s_and_saveexec_b64 s[{s_m}:{s_m+1}], vcc
    ds_write_b32 v{vt+4}, v{v_sq}
    s_mov_b64 exec, -1
    s_lshl_b32 s{s_b}, s{s_ct}, 7
    s_add_u32 s{s_b}, s{s_b}, {EXA}
    s_add_u32 s{s_t1}, s{s_b}, s{s_t0}
    v_lshl_add_u32 v{vt+2}, v{v_h}, 4, s{s_t1}
    s_mov_b32 exec_lo, 1
    s_mov_b32 exec_hi, 1
    """)
    for g in range(4):
        a(f'ds_write_b128 v{vt+2}, {vr(WSA+4*g,4)} offset:{2048+32*g}')
    a(f"""
    s_mov_b64 exec, -1
    v_xor_b32 v{vt+2}, 128, v{vt+1}
    v_xor_b32 v{vt+7}, 128, v{vt+4}
    s_cmp_eq_u32 s{s_cp}, 0
    s_cbranch_scc1 {L}_nosx
    s_cmp_eq_u32 s{s_ct}, 3
    s_cselect_b64 s[{s_m}:{s_m+1}], -1, 0
    v_cndmask_b32 v{vt+3}, v{ACC+2*16+12}, v{ACC+0*16+12}, s[{s_m}:{s_m+1}]
    v_cndmask_b32 v{v_sq}, v{ACC+3*16+12}, v{ACC+1*16+12}, s[{s_m}:{s_m+1}]
    ds_write_b32 v{vt+4}, v{vt+3} offset:1024
    ds_write_b32 v{vt+7}, v{v_sq} offset:1024
    {L}_nosx:
    s_xor_b32 s{s_t1}, s{s_t1}, 512
    v_lshl_add_u32 v{vt+4}, v{v_h}, 4, s{s_t1}
    """)
    v_vrec, v_e4, v_e40, v_off, v_sc = 5, 6, 7, 8, 30
    a(f"""
    v_mul_u32_u24 v{v_vrec}, 40, v{v_t}
    v_lshlrev_b32 v{v_e4}, 2, v{v_t}
    v_add_u32 v{v_e40}, 32, v{v_vrec}
    v_lshl_add_u32 v{v_vrec}, v{v_h}, 4, v{v_vrec}
    s_waitcnt lgkmcnt(0)
    s_barrier
    """)
    vM = [24, 26]; vR = [28, 29]; vS = 48
    WS1 = 32
    a(f"""
    ds_read_b32 v{vS}, v{vt+1}
    ds_read_b32 v{vS+1}, v{vt+1} offset:1024
    ds_read_b32 v{vS+2}, v{vt+2}
    ds_read_b32 v{vS+3}, v{vt+2} offset:1024
    ds_read_b32 v{vS+4}, v{vt+1} offset:512
    ds_read_b32 v{vS+5}, v{vt+1} offset:1536
    ds_read_b32 v{vS+6}, v{vt+2} offset:512
    ds_read_b32 v{vS+7}, v{vt+2} offset:1536
    """)
    for g in range(4):
        a(f'ds_read_b128 {vr(WS1+4*g, 4)}, v{vt+4} offset:{2048+32*g}')
    RC = ACC + 32
    a('s_waitcnt lgkmcnt(4)')
    for g in range(8):
        a(f'ds_read_b128 {vr(RC+4*g,4)}, v{vt+6} offset:{1024*g}')
    for k in range(4):
        a(f'v_add_f32 v{vS+k}, v{vS+k}, v{vS+4+k}')
    for x in range(2):
        ln_scalars(a, vS+2*x+1, vS+2*x, vM[x], vR[x], vt+3)
    a('s_waitcnt lgkmcnt(8)')
    for r in range(0, 16, 2):
        a(f'v_pk_add_f32 {vr(WS1+r,2)}, {vr(WS1+r,2)}, {vr(WSA+r,2)}')
    for x in range(2):
        acc = ACC + x*16
        for r in range(0, 16, 2):
            a(f'v_pk_fma_f32 {vr(acc+r,2)}, {vr(WS1+r,2)}, {vr(vM[x],2)}, {vr(acc+r,2)} op_sel_hi:[1,0,1] neg_lo:[0,1,0] neg_hi:[0,1,0]')
    a('s_waitcnt lgkmcnt(0)')
    for r in range(0, 32, 2):
        a(f'v_pk_add_f32 {vr(ACC+r,2)}, {vr(ACC+r,2)}, {vr(RC+r,2)}')
    stamp(a, 6)
    PK = 32
    a(f"""
    s_cmp_eq_u32 s{s_ct}, 3
    s_cbranch_scc1 {L}_ext
    s_cmp_eq_u32 s{s_pt2}, 2
    s_cselect_b64 s[{s_m}:{s_m+1}], -1, 0
    v_cndmask_b32 v{v_off}, v{v_lin}, v{v_vrec}, s[{s_m}:{s_m+1}]
    """)
    for x in range(2):
        acc = ACC + x*16
        a(f'v_mul_f32 v{v_sc}, s{s_sc2}, v{vR[x]}')
        a(f's_add_u32 s{s_a}, s{s_off+x}, s{s_hs2}')
        for r in range(0, 16, 2):
            a(f'v_pk_mul_f32 {vr(acc+r,2)}, {vr(acc+r,2)}, {vr(v_sc,2)} op_sel_hi:[1,0]')
        pk = PK + 8*x
        for k in range(8):
            a(f'v_cvt_pk_bf16_f32 v{pk+k}, v{acc+2*k}, v{acc+2*k+1}')
        a(f'buffer_store_dwordx4 {vr(pk,4)}, v{v_off}, s[{SWS}:{SWS+3}], s{s_off+x} offen')
        a(f'buffer_store_dwordx4 {vr(pk+4,4)}, v{v_off}, s[{SWS}:{SWS+3}], s{s_a} offen')
    a(f's_branch {L}_done')
    a.label(f'{L}_ext')
    a(f'v_cmp_eq_u32 vcc, 1, v{v_h}')
    for g in range(3):
        a(f"""
        s_cmp_eq_u32 s{s_up+g}, 2
        s_cselect_b64 s[{s_m}:{s_m+1}], -1, 0
        v_cndmask_b32 v{v_off}, v{v_e4}, v{v_e40}, s[{s_m}:{s_m+1}]
        v_mul_lo_u32 v{vt}, v{v_h}, s{s_uh+g}
        v_add_u32 v{v_off}, v{v_off}, v{vt}
        """)
        for x in range(2):
            acc = ACC + x*16
            pk = PK + 4*g + 2*x
            a(f"""
            v_mul_f32 v{v_sc}, s{s_us+g}, v{vR[x]}
            v_cndmask_b32 v{vt}, v{acc+4*g}, v{acc+4*g+2}, vcc
            v_cndmask_b32 v{vt+1}, v{acc+4*g+1}, v{acc+4*g+3}, vcc
            v_mul_f32 v{vt}, v{v_sc}, v{vt}
            v_mul_f32 v{vt+1}, v{v_sc}, v{vt+1}
            v_cvt_pk_bf16_f32 v{pk}, v{vt}, v{vt+1}
            v_mov_b32 v{pk+1}, 0x3f80
            """)
        pk = PK + 4*g
        a(f"""
        s_cbranch_scc1 {L}_e{g}v
        buffer_store_dword v{pk}, v{v_off}, s[{SWS}:{SWS+3}], s{s_eoff+2*g} offen
        buffer_store_dword v{pk+2}, v{v_off}, s[{SWS}:{SWS+3}], s{s_eoff+2*g+1} offen
        s_branch {L}_e{g}d
        {L}_e{g}v:
        buffer_store_dwordx2 {vr(pk,2)}, v{v_off}, s[{SWS}:{SWS+3}], s{s_eoff+2*g} offen
        buffer_store_dwordx2 {vr(pk+2,2)}, v{v_off}, s[{SWS}:{SWS+3}], s{s_eoff+2*g+1} offen
        {L}_e{g}d:
        """)
    a.label(f'{L}_done')
    stamp(a, 7)
    stamps_flush(a, 0, SWS, s_w, 16)
    a('s_endpgm')
    a.label(f'{L}_loader')
    s_par, s_isw, s_step, s_cstep, s_go, s_i = 44, 45, 46, 47, 48, 49
    SL = 12
    a(f"""
    s_and_b32 s{s_par}, s{s_w}, 1
    s_bfe_u32 s{s_isw}, s{s_w}, 0x10001
    v_lshrrev_b32 v{vt}, 3, v{v_l}
    s_lshl_b32 s{s_t0}, s{s_par}, 3
    v_add_u32 v{vt}, s{s_t0}, v{vt}
    v_mul_u32_u24 v{vX}, 1152, v{vt}
    s_lshl_b32 s{s_t0}, s{s_par}, 2
    v_lshrrev_b32 v{vt}, 4, v{v_l}
    v_add_u32 v{vt+1}, s{s_t0}, v{vt}
    v_and_b32 v{vt+2}, 7, v{v_l}
    v_xor_b32 v{vt+2}, v{vt+2}, v{vt+1}
    v_lshl_add_u32 v{vX}, v{vt+2}, 4, v{vX}
    v_mul_u32_u24 v{vX2}, 3456, v{vt+1}
    v_and_b32 v{vt+2}, 15, v{v_l}
    v_lshlrev_b32 v{vt+3}, 2, v{vt}
    v_xor_b32 v{vt+2}, v{vt+2}, v{vt+3}
    v_lshl_add_u32 v{vX2}, v{vt+2}, 4, v{vX2}
    v_cmp_gt_u32 s[{s_wmask}:{s_wmask+1}], 14, v{vt+2}
    s_cmp_eq_u32 s{s_isw}, 1
    s_cselect_b64 s[{s_m}:{s_m+1}], -1, 0
    v_cndmask_b32 v{vX}, v{vX}, v{vX2}, s[{s_m}:{s_m+1}]
    s_cselect_b32 s{s_go}, s{s_wb}, s{s_xb}
    s_mov_b32 s{s_step}, {16*1152}
    s_cselect_b32 s{s_step}, {8*3456}, s{s_step}
    s_mov_b32 s{s_cstep}, 128
    s_cselect_b32 s{s_cstep}, {64*3456}, s{s_cstep}
    s_lshl_b32 s{s_lds}, s{s_isw}, 14
    s_lshl_b32 s{s_t0}, s{s_par}, 10
    s_add_u32 s{s_lds}, s{s_lds}, s{s_t0}
    s_cmp_eq_u32 s{s_isw}, 1
    s_mov_b32 s{SL+2}, {2048*1152}
    s_cselect_b32 s{SL+2}, {576*3456}, s{SL+2}
    s_mov_b32 s{SL+3}, 0x00020000
    s_cselect_b64 s[{s_wmask}:{s_wmask+1}], s[{s_wmask}:{s_wmask+1}], -1
    s_waitcnt lgkmcnt(0)
    s_cselect_b32 s{SL}, s6, s4
    s_cselect_b32 s{SL+1}, s7, s5
    s_mov_b64 exec, s[{s_wmask}:{s_wmask+1}]
    """)

    def issue():
        a(f's_mov_b32 s{s_t0}, s{s_go}')
        for j in range(8):
            a(f"""
            s_add_u32 m0, s{s_lds}, {j*2048}
            buffer_load_dwordx4 v{vX}, s[{SL}:{SL+3}], s{s_t0} offen lds
            s_add_u32 s{s_t0}, s{s_t0}, s{s_step}
            """)
        a(f"""
        s_add_u32 s{s_go}, s{s_go}, s{s_cstep}
        s_add_u32 s{s_lds}, s{s_lds}, {BUF}
        s_and_b32 s{s_lds}, s{s_lds}, 0x1ffff
        """)
    a(f's_mov_b32 s{s_c}, 0')
    a.label(f'{L}_lp')
    issue()
    a(f"""
    s_add_u32 s{s_c}, s{s_c}, 1
    s_cmp_lt_u32 s{s_c}, 3
    s_cbranch_scc1 {L}_lp
    s_waitcnt vmcnt(16)
    s_barrier
    s_cmp_lt_u32 s{s_c}, 9
    s_cbranch_scc1 {L}_lp
    s_waitcnt vmcnt(8)
    s_barrier
    s_waitcnt vmcnt(0)
    s_barrier
    s_barrier
    {L}_end:
    s_endpgm
    """)
    kernels.append((L, 256, 768, EXA + 4096, 160, 100))

def k2(a):
    L = 'k2_attn_kernel'
    begin(a, L)
    SWS = 12
    s_head, s_qb, s_w, s_t0, s_t1, s_kv, s_mode, s_c, s_qs, s_kg, s_n = 20, 21, 22, 23, 24, 25, 26, 27, 28, 29, 30
    s_m = 32
    FLAG = HEADKV
    v_l, v_t, v_h = 1, 2, 3
    vKa, vKe, vVa, vlin = 4, 5, 6, 7
    vt = 8
    QM = [16, 20]; QE = [24, 26]
    KM = [28, 32]; KE = [36, 38]
    VF = [40, 48]
    P = 56
    S = [64, 80]
    O = [96, 112]
    a(f'''
    s_cmp_ge_u32 s2, 256
    s_cbranch_scc1 {L}_end
    s_load_dwordx2 s[8:9], s[0:1], 80
    s_load_dwordx2 s[4:5], s[0:1], 0
    s_load_dwordx2 s[6:7], s[0:1], 16
    s_load_dwordx4 s[56:59], s[0:1], 40
    s_load_dwordx2 s[60:61], s[0:1], 56
    s_and_b32 s10, s2, 7
    s_lshr_b32 s11, s2, 3
    s_lshl_b32 s{s_head}, s10, 2
    s_lshr_b32 s{s_t0}, s11, 3
    s_add_u32 s{s_head}, s{s_head}, s{s_t0}
    s_and_b32 s{s_qb}, s11, 7
    v_and_b32 v{v_l}, 63, v0
    v_lshrrev_b32 v{vt}, 6, v0
    v_and_b32 v{v_t}, 31, v0
    v_readfirstlane_b32 s{s_w}, v{vt}
    v_bfe_u32 v{v_h}, v0, 5, 1
    v_lshlrev_b32 v{vlin}, 4, v{v_l}
    s_and_b32 s{s_qs}, s{s_w}, 3
    s_lshr_b32 s{s_kg}, s{s_w}, 2
    s_mul_i32 s{s_kv}, s{s_head}, {HEADKV}
    s_add_u32 s{s_kv}, s{s_kv}, {WS_KV}
    s_mov_b32 s{s_mode}, 0
    s_waitcnt lgkmcnt(0)
    ''')
    srd(a, SWS, 8, WS_SIZE)
    SPX, SPO, SPG, SPU, SPD = 36, 40, 44, 48, 52
    srd(a, SPX, 4, 2048*1152)
    srd(a, SPO, 6, 576*1152)
    srd(a, SPG, 56, 576*9216)
    srd(a, SPU, 58, 576*9216)
    srd(a, SPD, 60, 4608*1152)
    stamps_init(a); stamp(a, 0)
    a.label(f'{L}_start')
    a(f'''
    s_cmp_eq_u32 s{s_w}, 8
    s_cbranch_scc1 {L}_loader
    ''')
    a(f'''
    s_lshl_b32 s{s_t0}, s{s_qb}, 3
    s_lshl_b32 s{s_t1}, s{s_qs}, 1
    s_add_u32 s{s_t0}, s{s_t0}, s{s_t1}
    s_mul_i32 s{s_t1}, s{s_head}, {HEADQ}
    s_add_u32 s{s_t1}, s{s_t1}, {WS_Q}
    s_lshl_b32 s{s_c}, s{s_t0}, 10
    s_add_u32 s{s_c}, s{s_c}, s{s_t1}
    buffer_load_dwordx4 {vr(QM[0],4)}, v{vlin}, s[{SWS}:{SWS+3}], s{s_c} offen
    buffer_load_dwordx4 {vr(QM[1],4)}, v{vlin}, s[{SWS}:{SWS+3}], s{s_c} offen offset:1024
    s_lshl_b32 s{s_c}, s{s_t0}, 7
    s_add_u32 s{s_c}, s{s_c}, s{s_t1}
    s_add_u32 s{s_c}, s{s_c}, 65536
    v_lshlrev_b32 v{vt}, 2, v{v_t}
    buffer_load_dword v{QE[0]}, v{vt}, s[{SWS}:{SWS+3}], s{s_c} offen
    buffer_load_dword v{QE[1]}, v{vt}, s[{SWS}:{SWS+3}], s{s_c} offen offset:128
    s_lshl_b32 s{s_t0}, s{s_w}, 10
    s_add_u32 s{s_t1}, s{s_kv}, s{s_t0}
    ''')
    s_dl, s_dg = 62, 63
    a(f'''
    s_mov_b32 s{s_dl}, s{s_t0}
    s_mov_b32 s{s_dg}, s{s_t1}
    ''')

    def kvdma(js):
        for j in js:
            a(f'''
            s_add_u32 m0, s{s_dl}, {j*8192}
            s_add_u32 s{s_t1}, s{s_dg}, {j*8192}
            buffer_load_dwordx4 v{vlin}, s[{SWS}:{SWS+3}], s{s_t1} offen lds
            ''')
    kvdma(range(3))
    a(f'''
    v_mov_b32 v{vt}, {FLAG}
    v_mov_b32 v{vt+1}, 0
    ds_write_b32 v{vt}, v{vt+1}
    v_mov_b32 v{KE[0]+1}, 0x3f803f80
    v_mov_b32 v{KE[1]+1}, 0x3f803f80
    v_mov_b32 v{QE[0]+1}, 0
    v_mov_b32 v{QE[1]+1}, 0
    ''')
    a(f'''
    v_bfe_u32 v{vt}, v{v_l}, 2, 2
    v_lshl_add_u32 v{vt}, v{v_h}, 2, v{vt}
    s_lshl_b32 s{s_t0}, s{s_kg}, 7
    v_add_u32 v{vt}, s{s_t0}, v{vt}
    v_mul_u32_u24 v{vVa}, 40, v{vt}
    v_and_b32 v{vt}, 3, v{v_l}
    v_lshlrev_b32 v{vt}, 3, v{vt}
    v_and_b32 v{vt+1}, 16, v{v_l}
    v_cmp_ne_u32 vcc, 0, v{vt+1}
    v_cndmask_b32 v{vt}, v{vt}, 32, vcc
    v_add3_u32 v{vVa}, v{vVa}, v{vt}, 0
    v_add_u32 v{vVa}, 9216, v{vVa}
    ''')
    if OPT.get('vzero'):
        a(f'''
        v_and_b32 v{vt}, 18, v{v_l}
        v_cmp_eq_u32 vcc, 18, v{vt}
        v_add_u32 v{vt}, 0x100000, v{vVa}
        v_cndmask_b32 v{vVa}, v{vVa}, v{vt}, vcc
        ''')
    for r in range(16):
        a(f'v_mov_b32 v{O[0]+r}, 0')
        a(f'v_mov_b32 v{O[1]+r}, 0')
    for r in range(8):
        a(f'v_mov_b32 v{P+r}, 0')
    for r in range(4):
        a(f'v_mov_b32 v{VF[1]+4+r}, 0')
    stamp(a, 1)
    a(f'''
    s_waitcnt vmcnt(0) lgkmcnt(0)
    s_barrier
    v_cmp_eq_u32 vcc, 0, v{v_h}
    v_cndmask_b32 v{QE[0]}, 0, v{QE[0]}, vcc
    v_cndmask_b32 v{QE[1]}, 0, v{QE[1]}, vcc
    ''')
    stamp(a, 2)
    vmx = [vt+4, vt+5]
    a(f'''
    s_cmp_eq_u32 s{s_mode}, 0
    s_cselect_b32 s{s_n}, 1, 64
    s_mov_b32 s{s_c}, 0
    v_mov_b32 v{vmx[0]}, 0xff800000
    v_mov_b32 v{vmx[1]}, 0xff800000
    {L}_mx:
    s_lshr_b32 s{s_t0}, s{s_c}, 3
    s_mul_i32 s{s_t0}, s{s_t0}, {CHUNK}
    s_and_b32 s{s_t1}, s{s_c}, 7
    s_lshl_b32 s{s_t1}, s{s_t1}, 10
    s_add_u32 s{s_t1}, s{s_t1}, s{s_t0}
    v_add_u32 v{vt}, s{s_t1}, v{vlin}
    ds_read_b128 {vr(KM[0],4)}, v{vt}
    s_and_b32 s{s_t1}, s{s_c}, 7
    s_lshl_b32 s{s_t1}, s{s_t1}, 7
    s_add_u32 s{s_t1}, s{s_t1}, s{s_t0}
    v_lshl_add_u32 v{vt}, v{v_t}, 2, s{s_t1}
    ds_read_b32 v{KE[0]}, v{vt} offset:8192
    s_waitcnt lgkmcnt(0)
    ''')
    for q in range(2):
        a(f'v_mfma_f32_32x32x16_bf16 {vr(S[q],16)}, {vr(KM[0],4)}, {vr(QM[q],4)}, 0')
        a(f'v_mfma_f32_32x32x8_bf16 {vr(S[q],16)}, {vr(KE[0],2)}, {vr(QE[q],2)}, {vr(S[q],16)}')
    for q in range(2):
        for k in range(8):
            a(f'v_max3_f32 v{vmx[q]}, v{S[q]+2*k}, v{S[q]+2*k+1}, v{vmx[q]}')
    a(f'''
    s_add_u32 s{s_c}, s{s_c}, 1
    s_cmp_lt_u32 s{s_c}, s{s_n}
    s_cbranch_scc1 {L}_mx
    ''')
    a(f'v_cmp_eq_u32 vcc, 0, v{v_h}')
    for q in range(2):
        a(f'''
        v_mov_b32 v{vt}, v{vmx[q]}
        v_permlane32_swap_b32 v{vmx[q]}, v{vt}
        v_max_f32 v{vt}, v{vmx[q]}, v{vt}
        v_xor_b32 v{vt}, 0x80000000, v{vt}
        v_and_b32 v{vt+1}, 0xffff0000, v{vt}
        v_sub_f32 v{vt}, v{vt}, v{vt+1}
        v_and_b32 v{vt+2}, 0xffff0000, v{vt}
        v_sub_f32 v{vt}, v{vt}, v{vt+2}
        v_lshrrev_b32 v{vt+1}, 16, v{vt+1}
        v_or_b32 v{vt+1}, v{vt+1}, v{vt+2}
        v_lshrrev_b32 v{vt}, 16, v{vt}
        v_cndmask_b32 v{QE[q]+1}, v{vt}, v{vt+1}, vcc
        ''')
    a(f'''
    s_lshl_b32 s{s_t0}, s{s_kg}, 12
    v_add_u32 v{vKa}, s{s_t0}, v{vlin}
    s_lshl_b32 s{s_t0}, s{s_kg}, 9
    s_add_u32 s{s_t0}, s{s_t0}, 8192
    v_lshl_add_u32 v{vKe}, v{v_t}, 2, s{s_t0}
    ''')

    def koff(i):
        return (i // 4) * CHUNK + (i % 4) * 1024, (i // 4) * CHUNK + (i % 4) * 128

    def read_k(i, p):
        o1, o2 = koff(i)
        a(f'ds_read_b128 {vr(KM[p],4)}, v{vKa} offset:{o1}')
        a(f'ds_read_b32 v{KE[p]}, v{vKe} offset:{o2}')

    def read_v(i, p):
        base = (i // 4) * CHUNK + (i % 4) * 1280
        for m in range(2):
            for part in range(2):
                a(f'ds_read_b64_tr_b16 {vr(VF[p]+4*m+2*part,2)}, v{vVa} offset:{base + m*640 + part*320}')

    read_k(0, 0)
    read_k(1, 1)
    read_v(0, 0)
    a('s_waitcnt lgkmcnt(6)')
    a(f'v_mfma_f32_32x32x16_bf16 {vr(S[0],16)}, {vr(KM[0],4)}, {vr(QM[0],4)}, 0')
    a(f'v_mfma_f32_32x32x8_bf16 {vr(S[0],16)}, {vr(KE[0],2)}, {vr(QE[0],2)}, {vr(S[0],16)}')
    a(f's_mov_b32 s{s_c}, 0')
    stamp(a, 3)
    stamp(a, 4, True)
    a('s_nop 7')
    a('s_nop 3')
    a.label(f'{L}_loop')

    def gap(X, g):
        s = S[X]
        for e in range(4):
            a(f'v_exp_f32 v{s+4*g+e}, v{s+4*g+e}')
        a(f'v_cvt_pk_bf16_f32 v{P+2*g}, v{s+4*g}, v{s+4*g+1}')
        a(f'v_cvt_pk_bf16_f32 v{P+2*g+1}, v{s+4*g+2}, v{s+4*g+3}')

    for i in range(4):
        p = i % 2
        if i == 2:
            a(f'''
            s_cmp_gt_u32 s{s_c}, 3
            s_cbranch_scc1 {L}_nb
            s_barrier
            ''')
            a.label(f'{L}_nb')
        a(f'v_mfma_f32_32x32x16_bf16 {vr(S[1],16)}, {vr(KM[p],4)}, {vr(QM[1],4)}, 0')
        gap(0, 0)
        a(f'v_mfma_f32_32x32x8_bf16 {vr(S[1],16)}, {vr(KE[p],2)}, {vr(QE[1],2)}, {vr(S[1],16)}')
        read_k(i+2, p)
        gap(0, 1)
        a(f'v_mfma_f32_32x32x16_bf16 {vr(O[1],16)}, {vr(VF[1-p]+4,4)}, {vr(P+4,4)}, {vr(O[1],16)}')
        read_v(i+1, 1-p)
        gap(0, 2)
        a('s_waitcnt lgkmcnt(6)')
        a(f'v_mfma_f32_32x32x16_bf16 {vr(O[0],16)}, {vr(VF[p],4)}, {vr(P,4)}, {vr(O[0],16)}')
        gap(0, 3)
        a(f'v_mfma_f32_32x32x16_bf16 {vr(S[0],16)}, {vr(KM[1-p],4)}, {vr(QM[0],4)}, 0')
        gap(1, 0)
        a(f'v_mfma_f32_32x32x8_bf16 {vr(S[0],16)}, {vr(KE[1-p],2)}, {vr(QE[0],2)}, {vr(S[0],16)}')
        gap(1, 1)
        a(f'v_mfma_f32_32x32x16_bf16 {vr(O[0],16)}, {vr(VF[p]+4,4)}, {vr(P+4,4)}, {vr(O[0],16)}')
        gap(1, 2)
        a(f'v_mfma_f32_32x32x16_bf16 {vr(O[1],16)}, {vr(VF[p],4)}, {vr(P,4)}, {vr(O[1],16)}')
        gap(1, 3)
    a(f'''
    v_add_u32 v{vKa}, {CHUNK}, v{vKa}
    v_add_u32 v{vKe}, {CHUNK}, v{vKe}
    v_add_u32 v{vVa}, {CHUNK}, v{vVa}
    s_add_u32 s{s_c}, s{s_c}, 1
    s_cmp_lt_u32 s{s_c}, 8
    s_cbranch_scc1 {L}_loop
    v_mfma_f32_32x32x16_bf16 {vr(O[1],16)}, {vr(VF[1]+4,4)}, {vr(P+4,4)}, {vr(O[1],16)}
    ''')
    a('''
    s_waitcnt lgkmcnt(0)
    s_barrier
    ''')
    stamp(a, 5, True)
    stamp(a, 6)
    a(f'''
    s_cmp_eq_u32 s{s_kg}, 1
    s_cselect_b64 s[{s_m}:{s_m+1}], -1, 0
    s_lshl_b32 s{s_t0}, s{s_qs}, 1
    s_add_u32 s{s_t0}, s{s_t0}, s{s_kg}
    s_xor_b32 s{s_t1}, s{s_t0}, 1
    s_mul_i32 s{s_t0}, s{s_t0}, 3072
    s_mul_i32 s{s_t1}, s{s_t1}, 3072
    v_add_u32 v{vt}, s{s_t1}, v{vlin}
    v_add_u32 v{vt+1}, s{s_t0}, v{vlin}
    ''')
    SND, KEEP = S[0], S[1]
    for r in range(12):
        a(f'v_cndmask_b32 v{SND+r}, v{O[1]+r}, v{O[0]+r}, s[{s_m}:{s_m+1}]')
        a(f'v_cndmask_b32 v{KEEP+r}, v{O[0]+r}, v{O[1]+r}, s[{s_m}:{s_m+1}]')
    for g in range(3):
        a(f'ds_write_b128 v{vt}, {vr(SND+4*g,4)} offset:{1024*g}')
    a('s_waitcnt lgkmcnt(0)')
    a('s_barrier')
    for g in range(3):
        a(f'ds_read_b128 {vr(SND+4*g,4)}, v{vt+1} offset:{1024*g}')
    a('s_waitcnt lgkmcnt(0)')
    for r in range(11):
        a(f'v_add_f32 v{KEEP+r}, v{KEEP+r}, v{SND+r}')
    a(f'''
    v_cmp_ngt_f32 vcc, {f32(2.0**60)}, v{KEEP+10}
    v_cmp_nlt_f32 s[{s_m}:{s_m+1}], {f32(2.0**-90)}, v{KEEP+10}
    ''' .replace(f'v_cmp_nlt_f32 s[{s_m}:{s_m+1}], {f32(2.0**-90)}, v{KEEP+10}', f'v_mov_b32 v{vt+2}, {f32(2.0**-90)}\n v_cmp_nlt_f32 s[{s_m}:{s_m+1}], v{vt+2}, v{KEEP+10}'))
    a(f'''
    v_rcp_f32 v{vt+3}, v{KEEP+10}
    s_or_b64 vcc, vcc, s[{s_m}:{s_m+1}]
    s_cbranch_vccz {L}_ok
    v_mov_b32 v{vt}, {FLAG}
    v_mov_b32 v{vt+1}, 1
    ds_write_b32 v{vt}, v{vt+1}
    {L}_ok:
    ''')
    for r in range(10):
        a(f'v_mul_f32 v{KEEP+r}, v{vt+3}, v{KEEP+r}')
    for k in range(5):
        a(f'v_cvt_pk_bf16_f32 v{P+k}, v{KEEP+2*k}, v{KEEP+2*k+1}')
    a(f'''
    s_lshl_b32 s{s_t0}, s{s_qb}, 3
    s_lshl_b32 s{s_t1}, s{s_qs}, 1
    s_add_u32 s{s_t0}, s{s_t0}, s{s_t1}
    s_add_u32 s{s_t0}, s{s_t0}, s{s_kg}
    s_mul_i32 s{s_t0}, s{s_t0}, {36*1024}
    s_add_u32 s{s_t0}, s{s_t0}, {WS_O}
    s_lshl_b32 s{s_t1}, s{s_head}, 10
    s_add_u32 s{s_t1}, s{s_t1}, s{s_t0}
    buffer_store_dwordx4 {vr(P,4)}, v{vlin}, s[{SWS}:{SWS+3}], s{s_t1} offen
    s_lshr_b32 s{s_t1}, s{s_head}, 3
    s_add_u32 s{s_t1}, s{s_t1}, 32
    s_lshl_b32 s{s_t1}, s{s_t1}, 10
    s_add_u32 s{s_t0}, s{s_t0}, s{s_t1}
    s_bfe_u32 s{s_t1}, s{s_head}, 0x10002
    s_lshl_b32 s{s_t1}, s{s_t1}, 9
    s_add_u32 s{s_t0}, s{s_t0}, s{s_t1}
    s_and_b32 s{s_t1}, s{s_head}, 3
    s_lshl_b32 s{s_t1}, s{s_t1}, 2
    s_add_u32 s{s_t0}, s{s_t0}, s{s_t1}
    v_lshlrev_b32 v{vt}, 4, v{v_t}
    buffer_store_dword v{P+4}, v{vt}, s[{SWS}:{SWS+3}], s{s_t0} offen
    ''')
    stamp(a, 7)
    stamps_flush(a, 1, SWS, s_w, 40)
    a(f'''
    s_mov_b64 exec, -1
    {L}_tail:
    s_cmp_eq_u32 s{s_mode}, 1
    s_cbranch_scc1 {L}_end
    s_waitcnt lgkmcnt(0)
    s_barrier
    v_mov_b32 v{vt}, {FLAG}
    ds_read_b32 v{vt+1}, v{vt}
    s_waitcnt lgkmcnt(0)
    v_readfirstlane_b32 s{s_t0}, v{vt+1}
    s_cmp_eq_u32 s{s_t0}, 0
    s_cbranch_scc1 {L}_end
    s_mov_b32 s{s_mode}, 1
    s_waitcnt vmcnt(0)
    s_barrier
    s_branch {L}_start
    {L}_loader:
    s_mov_b32 s{s_c}, {24*1024}
    ''')

    def ldr(upto, tag):
        a(f'''
        {L}_ld{tag}:
        s_mov_b32 m0, s{s_c}
        s_add_u32 s{s_t1}, s{s_kv}, s{s_c}
        buffer_load_dwordx4 v{vlin}, s[{SWS}:{SWS+3}], s{s_t1} offen lds
        s_add_u32 s{s_c}, s{s_c}, 1024
        s_cmp_lt_u32 s{s_c}, {upto*1024}
        s_cbranch_scc1 {L}_ld{tag}
        ''')
    a(f'''
    s_cmp_eq_u32 s{s_mode}, 0
    s_cbranch_scc1 {L}_lfast
    ''')
    ldr(152, 'x')
    a(f'''
    s_waitcnt vmcnt(0)
    s_barrier
    s_barrier
    s_barrier
    s_barrier
    s_barrier
    s_branch {L}_lend
    {L}_lfast:
    ''')
    ldr(38, 'a')
    a('s_barrier')
    ldr(57, 'b')
    a('s_waitcnt vmcnt(19)')
    a('s_barrier')
    ldr(95, 'c')
    a('s_waitcnt vmcnt(38)')
    a('s_barrier')
    ldr(133, 'd')
    a('s_waitcnt vmcnt(57)')
    a('s_barrier')
    ldr(152, 'e')
    a('s_waitcnt vmcnt(0)')
    a('s_barrier')
    if not OPT.get('nopf2'):
        a(f'''
        v_mov_b32 v{vt+3}, v{v_l}
        s_mov_b32 s{s_c}, 0
        {L}_pfl:
        ''')
        a(f'''
        v_min_u32 v{vt}, 323, v{vt+3}
        v_lshlrev_b32 v{vt+1}, 6, v{vt}
        s_mul_i32 s{s_t0}, s11, {324*64}
        buffer_load_dword v{vt+7}, v{vt+1}, s[{SPO}:{SPO+3}], s{s_t0} offen
        s_mul_i32 s{s_t1}, s10, 663552
        s_add_u32 s{s_t0}, s{s_t0}, s{s_t1}
        buffer_load_dword v{vt+7}, v{vt+1}, s[{SPD}:{SPD+3}], s{s_t0} offen
        v_mul_u32_u24 v{vt+1}, 3641, v{vt}
        v_lshrrev_b32 v{vt+1}, 16, v{vt+1}
        v_mul_u32_u24 v{vt+2}, 18, v{vt+1}
        v_sub_u32 v{vt+2}, v{vt}, v{vt+2}
        v_mul_u32_u24 v{vt+1}, 9216, v{vt+1}
        v_lshl_add_u32 v{vt+1}, v{vt+2}, 6, v{vt+1}
        s_mul_i32 s{s_t0}, s11, {18*9216}
        s_mul_i32 s{s_t1}, s10, 1152
        s_add_u32 s{s_t0}, s{s_t0}, s{s_t1}
        buffer_load_dword v{vt+7}, v{vt+1}, s[{SPG}:{SPG+3}], s{s_t0} offen
        buffer_load_dword v{vt+7}, v{vt+1}, s[{SPU}:{SPU+3}], s{s_t0} offen
        v_min_u32 v{vt}, 143, v{vt+3}
        v_lshlrev_b32 v{vt+1}, 6, v{vt}
        s_mul_i32 s{s_t0}, s11, {144*64}
        s_mul_i32 s{s_t1}, s10, 294912
        s_add_u32 s{s_t0}, s{s_t0}, s{s_t1}
        buffer_load_dword v{vt+7}, v{vt+1}, s[{SPX}:{SPX+3}], s{s_t0} offen
        s_getpc_b64 s[64:65]
        {L}_pc:
        s_add_u32 s64, s64, k3_oproj_kernel-{L}_pc
        s_addc_u32 s65, s65, 0
        v_min_u32 v{vt}, (code_end_marker-k3_oproj_kernel)/64, v{vt+3}
        v_lshlrev_b32 v{vt+1}, 6, v{vt}
        global_load_dword v{vt+7}, v{vt+1}, s[64:65]
        v_add_u32 v{vt+3}, 64, v{vt+3}
        s_add_u32 s{s_c}, s{s_c}, 1
        s_cmp_lt_u32 s{s_c}, 6
        s_cbranch_scc1 {L}_pfl
        ''')
    a(f'''
    {L}_lend:
    s_barrier
    s_barrier
    s_branch {L}_tail
    {L}_end:
    s_endpgm
    ''')
    kernels.append((L, 256, 576, HEADKV + 64, 128, 100))

def k3(a):
    L = 'k3_oproj_kernel'
    begin(a, L)
    SX, SWO, SWR, SWS = 12, 16, 20, 24
    s_tb, s_cb, s_w, s_tt, s_kh, s_t0, s_t1, s_g, s_rb, s_gt = 28, 29, 30, 31, 32, 33, 34, 35, 36, 37
    s_m = 38
    v_l, v_t, v_h, vlin = 1, 2, 3, 4
    vt = 6
    vDm = 16
    vDe = 19
    vWa = 22
    vdo = 23
    XR = 24
    WR = 36
    WF = [48, 60]
    ACC = 72
    OF = 120
    EX = 110592
    a(f"""
    s_cmp_ge_u32 s2, 192
    s_cbranch_scc1 {L}_end
    s_load_dwordx2 s[4:5], s[0:1], 0
    s_load_dwordx2 s[6:7], s[0:1], 16
    s_load_dwordx2 s[8:9], s[0:1], 32
    s_load_dwordx2 s[10:11], s[0:1], 80
    s_and_b32 s{s_t0}, s2, 7
    s_lshr_b32 s{s_t1}, s2, 3
    s_mul_i32 s{s_g}, s{s_t1}, 43
    s_lshr_b32 s{s_g}, s{s_g}, 8
    s_mul_i32 s{s_cb}, s{s_g}, 6
    s_sub_u32 s{s_cb}, s{s_t1}, s{s_cb}
    s_lshl_b32 s{s_tb}, s{s_t0}, 2
    s_add_u32 s{s_tb}, s{s_tb}, s{s_g}
    v_and_b32 v{v_l}, 63, v0
    v_lshrrev_b32 v{vt}, 6, v0
    v_and_b32 v{v_t}, 31, v0
    v_readfirstlane_b32 s{s_w}, v{vt}
    v_bfe_u32 v{v_h}, v0, 5, 1
    v_lshlrev_b32 v{vlin}, 4, v{v_l}
    s_and_b32 s{s_tt}, s{s_w}, 1
    s_bfe_u32 s{s_kh}, s{s_w}, 0x10001
    s_cmp_ge_u32 s{s_w}, 4
    s_cbranch_scc1 {L}_loader
    s_lshl_b32 s{s_gt}, s{s_tb}, 1
    s_add_u32 s{s_gt}, s{s_gt}, s{s_tt}
    s_mul_i32 s{s_t0}, s{s_gt}, 36
    s_mul_i32 s{s_t1}, s{s_kh}, 18
    s_add_u32 s{s_t0}, s{s_t0}, s{s_t1}
    s_lshl_b32 s{s_t0}, s{s_t0}, 10
    s_add_u32 s{s_rb}, s{s_t0}, {WS_O}
    v_mul_u32_u24 v{vt}, 1152, v{v_t}
    v_lshl_add_u32 v{vt}, v{v_h}, 3, v{vt}
    v_lshlrev_b32 v{vt+1}, 3, v{v_h}
    s_waitcnt lgkmcnt(0)
    """)
    srd(a, SWS, 10, WS_SIZE)
    srd(a, SX, 4, 2048*1152)
    srd(a, SWR, 8, 1152)
    stamps_init(a); stamp(a, 0)
    for i in range(18):
        a(f'buffer_load_dwordx4 {vr(OF+4*i,4)}, v{vlin}, s[{SWS}:{SWS+3}], s{s_rb} offen offset:{(i%4)*1024}')
        if i % 4 == 3:
            a(f's_add_u32 s{s_rb}, s{s_rb}, 4096')
    a(f"""
    s_mul_i32 s{s_t0}, s{s_cb}, 192
    s_mul_i32 s{s_t1}, s{s_kh}, 96
    s_add_u32 s{s_t0}, s{s_t0}, s{s_t1}
    s_mul_i32 s{s_t1}, s{s_gt}, {32*1152}
    s_add_u32 s{s_t1}, s{s_t1}, s{s_t0}
    """)
    for j in range(6):
        a(f'buffer_load_dwordx2 {vr(XR+2*j,2)}, v{vt}, s[{SX}:{SX+3}], s{s_t1} offen offset:{16*j}')
    for j in range(6):
        a(f'buffer_load_dwordx2 {vr(WR+2*j,2)}, v{vt+1}, s[{SWR}:{SWR+3}], s{s_t0} offen offset:{16*j}')
    v_hoff = 5
    s_hoff = 40
    a(f"""
    v_mov_b32 v{v_hoff}, v{vt}
    s_add_u32 s{s_hoff}, s{s_t1}, {WS_H}
    v_bfe_u32 v{vt}, v{v_l}, 2, 2
    v_lshl_add_u32 v{vt}, v{v_h}, 3, v{vt}
    v_mul_u32_u24 v{vWa}, 192, v{vt}
    v_bfe_u32 v{vt}, v{v_l}, 4, 1
    v_lshl_add_u32 v{vWa}, v{vt}, 5, v{vWa}
    v_and_b32 v{vt}, 3, v{v_l}
    v_lshl_add_u32 v{vWa}, v{vt}, 3, v{vWa}
    s_mul_i32 s{s_t0}, s{s_kh}, {18*3072}
    v_add_u32 v{vWa}, s{s_t0}, v{vWa}
    s_cmp_eq_u32 s{s_kh}, 1
    s_cselect_b64 s[{s_m}:{s_m+1}], -1, 0
    s_mul_i32 s{s_t0}, s{s_w}, 6144
    s_xor_b32 s{s_t1}, s{s_w}, 2
    s_mul_i32 s{s_t1}, s{s_t1}, 6144
    s_add_u32 s{s_t0}, s{s_t0}, {EX}
    s_add_u32 s{s_t1}, s{s_t1}, {EX}
    v_add_u32 v{vt}, s{s_t0}, v{vlin}
    v_add_u32 v{vt+1}, s{s_t1}, v{vlin}
    """)

    def reads(i, fb):
        return [f'ds_read_b64_tr_b16 {vr(WF[fb]+4*ct+2*j,2)}, v{vWa} offset:{i*3072 + j*768 + ct*64}' for ct in range(3) for j in range(2)]

    NST = 6
    stamp(a, 1)
    a('s_barrier')
    stamp(a, 2)
    for r in reads(0, 0):
        a(r)
    for i in range(18):
        fb = i % 2
        if i < 17 and (i + 1) % 3 == 0:
            a('s_barrier')
        a(f's_waitcnt vmcnt({12 + 17 - i}) lgkmcnt(0)')
        nxt = reads(i+1, 1-fb) if i < 17 else []
        for ct in range(3):
            acc = ACC + 16*ct
            cc = '0' if i == 0 else vr(acc, 16)
            a(f'v_mfma_f32_32x32x16_bf16 {vr(acc,16)}, {vr(WF[fb]+4*ct,4)}, {vr(OF+4*i,4)}, {cc}')
            if ct == 0:
                for r in nxt:
                    a(r)
    stamp(a, 5)
    SND, KEEP = OF, OF + 24
    for r in range(24):
        a(f'v_cndmask_b32 v{SND+r}, v{ACC+24+r}, v{ACC+r}, s[{s_m}:{s_m+1}]')
        if r % 4 == 3:
            a(f'ds_write_b128 v{vt}, {vr(SND+r-3,4)} offset:{256*(r-3)}')
    for r in range(24):
        a(f'v_cndmask_b32 v{KEEP+r}, v{ACC+r}, v{ACC+24+r}, s[{s_m}:{s_m+1}]')
    v1, v2, v3, vone = vt+2, vt+3, vt+4, vt+5
    a(f"""
    v_mov_b32 v{v1}, 0
    v_mov_b32 v{v2}, 0
    v_mov_b32 v{v3}, 0
    v_mov_b32 v{vone}, 0x3f803f80
    s_waitcnt vmcnt(0) lgkmcnt(0)
    s_barrier
    """)
    RCV = ACC
    for g in range(6):
        a(f'ds_read_b128 {vr(RCV+4*g,4)}, v{vt+1} offset:{1024*g}')
    XU = OF + 48
    for j in range(12):
        a(f'v_lshlrev_b32 v{XU+2*j}, 16, v{XR+j}')
        a(f'v_and_b32 v{XU+2*j+1}, 0xffff0000, v{XR+j}')
    stamp(a, 6)
    HP = ACC + 24
    for g in range(6):
        a(f's_waitcnt lgkmcnt({5-g})')
        for k in range(2):
            r = 4*g + 2*k
            a(f"""
            v_pk_add_f32 {vr(KEEP+r,2)}, {vr(KEEP+r,2)}, {vr(RCV+r,2)}
            v_cvt_pk_bf16_f32 v{vt+6}, v{KEEP+r}, v{KEEP+r+1}
            v_lshlrev_b32 v{KEEP+r}, 16, v{vt+6}
            v_and_b32 v{KEEP+r+1}, 0xffff0000, v{vt+6}
            v_pk_add_f32 {vr(KEEP+r,2)}, {vr(KEEP+r,2)}, {vr(XU+r,2)}
            v_cvt_pk_bf16_f32 v{HP+2*g+k}, v{KEEP+r}, v{KEEP+r+1}
            """)
        a(f'buffer_store_dwordx2 {vr(HP+2*g,2)}, v{v_hoff}, s[{SWS}:{SWS+3}], s{s_hoff} offen offset:{16*g}')
        for k in range(2):
            a(f"""
            v_dot2c_f32_bf16 v{v1}, v{HP+2*g+k}, v{vone}
            v_dot2c_f32_bf16 v{v2}, v{HP+2*g+k}, v{HP+2*g+k}
            v_dot2c_f32_bf16 v{v3}, v{HP+2*g+k}, v{WR+2*g+k}
            """)
    a(f"""
    v_mov_b32 v{vt+6}, v{v3}
    v_permlane32_swap_b32 v{v1}, v{v2}
    v_permlane32_swap_b32 v{v3}, v{vt+6}
    v_add_f32 v{v1}, v{v1}, v{v2}
    v_add_f32 v{v3}, v{v3}, v{vt+6}
    v_lshlrev_b32 v{vt+7}, 13, v{v_h}
    v_lshl_add_u32 v{vt+7}, v{v_t}, 2, v{vt+7}
    s_lshl_b32 s{s_t0}, s{s_gt}, 7
    s_add_u32 s{s_t0}, s{s_t0}, {WS_STAT}
    s_add_u32 s{s_t1}, s{s_t0}, 16384
    buffer_atomic_add_f32 v{v1}, v{vt+7}, s[{SWS}:{SWS+3}], s{s_t0} offen
    s_mov_b64 exec, 0xffffffff
    buffer_atomic_add_f32 v{v3}, v{vt+7}, s[{SWS}:{SWS+3}], s{s_t1} offen
    """)
    stamp(a, 7)
    stamps_flush(a, 2, SWS, s_w, 48)
    a('s_endpgm')
    a.label(f'{L}_loader')
    for i3 in range(3):
        a(f"""
        v_add_u32 v{vt}, {64*i3}, v{v_l}
        v_mul_u32_u24 v{vt+1}, 1366, v{vt}
        v_lshrrev_b32 v{vt+1}, 14, v{vt+1}
        v_mul_u32_u24 v{vt+2}, 12, v{vt+1}
        v_sub_u32 v{vt+2}, v{vt}, v{vt+2}
        v_lshlrev_b32 v{vt+2}, 4, v{vt+2}
        v_mul_u32_u24 v{vt+3}, 1152, v{vt+1}
        v_add_u32 v{vDm+i3}, v{vt+3}, v{vt+2}
        v_lshrrev_b32 v{vt+3}, 1, v{vt+1}
        v_mul_u32_u24 v{vt+4}, 18, v{vt+3}
        v_and_b32 v{vt+5}, 1, v{vt+1}
        v_add_u32 v{vt+4}, v{vt+4}, v{vt+5}
        v_and_b32 v{vt+3}, 1, v{vt+3}
        v_xor_b32 v{vt+3}, 1, v{vt+3}
        v_lshl_add_u32 v{vt+4}, v{vt+3}, 4, v{vt+4}
        v_mul_u32_u24 v{vt+4}, 1152, v{vt+4}
        v_add_u32 v{vDe+i3}, v{vt+4}, v{vt+2}
        """)
    s_i = 41
    a(f"""
    s_mul_i32 s{s_g}, s{s_kh}, 18
    s_add_u32 s{s_g}, s{s_g}, s{s_tt}
    s_mul_i32 s{s_gt}, s{s_cb}, 192
    s_waitcnt lgkmcnt(0)
    """)
    srd(a, SWO, 6, 576*1152)
    a(f"""
    s_lshl_b32 s{s_t0}, s{s_tt}, 1
    s_mul_i32 s{s_rb}, s{s_g}, 18
    s_add_u32 s{s_rb}, s{s_rb}, s{s_t0}
    s_mul_i32 s{s_rb}, s{s_rb}, 1152
    s_add_u32 s{s_rb}, s{s_rb}, s{s_gt}
    s_mul_i32 s{s_t1}, s{s_g}, 3072
    """)

    def group(m):
        if m >= 7:
            a(f"""
            s_mul_i32 s{s_t0}, s{s_tt}, {144*1152}
            s_add_u32 s{s_t0}, s{s_t0}, {(2*m-14)*144*1152}
            s_add_u32 s{s_t0}, s{s_t0}, s{s_gt}
            s_cmp_eq_u32 s{s_kh}, 1
            s_cselect_b32 s{s_rb}, s{s_t0}, s{s_rb}
            s_cselect_b64 s[{s_m}:{s_m+1}], -1, 0
            """)
        for i3 in range(3):
            src = vDm + i3
            if m >= 7:
                a(f'v_cndmask_b32 v{vdo}, v{vDm+i3}, v{vDe+i3}, s[{s_m}:{s_m+1}]')
                src = vdo
            a(f"""
            s_add_u32 m0, s{s_t1}, {m*6144 + i3*1024}
            s_nop 0
            buffer_load_dwordx4 v{src}, s[{SWO}:{SWO+3}], s{s_rb} offen lds
            """)
        a(f's_add_u32 s{s_rb}, s{s_rb}, {36*1152}')
    issued = 0
    for k in range(6):
        need = min(9, (3*k + 2) // 2 + 1)
        while issued < min(9, need + 2):
            group(issued); issued += 1
        a(f's_waitcnt vmcnt({3*(issued-need)})')
        a('s_barrier')
    a(f"""
    {L}_end:
    s_endpgm
    """)
    kernels.append((L, 192, 512, EX + 24576, 192, 100))

NFF = 144
NOUT = 64
def dpp_reduce(a, op, reg):
    for sh in (1, 2, 4, 8):
        a(f'{op}_dpp v{reg}, v{reg}, v{reg} row_shr:{sh} row_mask:0xf bank_mask:0xf bound_ctrl:0')
    a(f'{op}_dpp v{reg}, v{reg}, v{reg} row_bcast:15 row_mask:0xa bank_mask:0xf')
    a(f'{op}_dpp v{reg}, v{reg}, v{reg} row_bcast:31 row_mask:0xc bank_mask:0xf')

def k4(a):
    L = 'k4_ffn_kernel'
    begin(a, L)
    SG, SU, SD, SWS, SO, SWR = 16, 20, 24, 28, 32, 36
    s_w, s_t0, s_t1, s_fb, s_idx, s_c, s_swr, s_go, s_do, s_w1k = 40, 41, 42, 43, 44, 45, 46, 47, 48, 49
    v_l, v_t, v_h, vlin, vgu = 1, 2, 3, 4, 5
    vt = 6
    a(f"""
    s_cmp_ge_u32 s2, {NFF+NOUT}
    s_cbranch_scc1 {L}_end
    s_load_dwordx8 s[4:11], s[0:1], 32
    s_load_dwordx2 s[12:13], s[0:1], 64
    s_load_dwordx2 s[14:15], s[0:1], 80
    v_and_b32 v{v_l}, 63, v0
    v_lshrrev_b32 v{vt}, 6, v0
    v_and_b32 v{v_t}, 31, v0
    v_readfirstlane_b32 s{s_w}, v{vt}
    v_bfe_u32 v{v_h}, v0, 5, 1
    v_lshlrev_b32 v{vlin}, 4, v{v_l}
    s_and_b32 s{s_t0}, s2, 7
    s_mul_i32 s{s_fb}, s{s_t0}, 18
    s_lshr_b32 s{s_t0}, s2, 3
    s_add_u32 s{s_fb}, s{s_fb}, s{s_t0}
    v_lshrrev_b32 v{vt}, 2, v{v_l}
    s_lshl_b32 s{s_t0}, s{s_w}, 4
    v_add_u32 v{vt}, s{s_t0}, v{vt}
    v_mul_u32_u24 v{vt}, 9216, v{vt}
    v_and_b32 v{vt+1}, 3, v{v_l}
    v_lshl_add_u32 v{vgu}, v{vt+1}, 4, v{vt}
    s_lshl_b32 s{s_go}, s{s_fb}, 6
    s_lshl_b32 s{s_w1k}, s{s_w}, 10
    s_mul_i32 s{s_do}, s{s_fb}, 36864
    s_add_u32 s{s_do}, s{s_do}, s{s_w1k}
    v_lshlrev_b32 v{vt}, 4, v0
    v_lshlrev_b32 v{vt+1}, 2, v{v_l}
    s_waitcnt lgkmcnt(0)
    """)
    srd(a, SWS, 14, WS_SIZE)
    srd(a, SWR, 4, 1152)
    srd(a, SG, 6, 576*9216)
    srd(a, SU, 8, 576*9216)
    srd(a, SD, 10, 4608*1152)
    srd(a, SO, 12, 2048*1152)
    stamps_init(a); stamp(a, 0)
    a(f"""
    s_cmp_ge_u32 s2, {NFF}
    s_cbranch_scc1 {L}_out
    """)
    LG, LU, LD, LX, LR = 0, 40960, 81920, 122880, 124928
    ST = 24
    WRR = 36
    a(f"""
    s_mov_b32 s{s_t0}, {WS_STAT}
    s_mov_b32 s{s_t1}, {WS_STAT+8192}
    s_mov_b32 s{s_c}, {WS_STAT+16384}
    buffer_load_dwordx4 {vr(ST,4)}, v{vt}, s[{SWS}:{SWS+3}], s{s_t0} offen
    buffer_load_dwordx4 {vr(ST+4,4)}, v{vt}, s[{SWS}:{SWS+3}], s{s_t1} offen
    buffer_load_dwordx4 {vr(ST+8,4)}, v{vt}, s[{SWS}:{SWS+3}], s{s_c} offen
    """)
    for j in range(5):
        a(f'buffer_load_dword v{WRR+j}, v{vt+1}, s[{SWR}:{SWR+3}], 0 offen offset:{256*j}')

    def wdma(j, which):
        S_, LB, so, step, vo = {'g': (SG, LG, s_go, 128*9216, vgu), 'u': (SU, LU, s_go, 128*9216, vgu), 'd': (SD, LD, s_do, 8192, vlin)}[which]
        a(f"""
        s_add_u32 m0, s{s_w1k}, {LB + j*8192}
        s_add_u32 s{s_t0}, s{so}, {j*step}
        buffer_load_dwordx4 v{vo}, s[{S_}:{S_+3}], s{s_t0} offen lds
        """)
    NPRE = int(OPT.get('k4pre', '2'))
    for j in range(NPRE):
        wdma(j, 'g'); wdma(j, 'u')
    stamp(a, 1)
    a(f's_waitcnt vmcnt({2*NPRE})')
    stamp(a, 2)
    v_swr, v_key = vt+2, vt+4
    a(f"""
    v_mov_b32 v{v_swr}, 0
    v_mov_b32 v{vt+3}, 0x3f803f80
    """)
    for j in range(5):
        a(f'v_dot2c_f32_bf16 v{v_swr}, v{WRR+j}, v{vt+3}')
    dpp_reduce(a, 'v_add_f32', v_swr)
    a(f"""
    v_lshlrev_b32 v{vt+10}, 2, v0
    v_sub_u32 v{vt+10}, 2047, v{vt+10}
    v_mov_b32 v{v_key}, 0
    s_mov_b32 s{s_c}, 0xfffff800
    v_readlane_b32 s{s_swr}, v{v_swr}, 63
    """)
    for e in range(4):
        a(f"""
        v_mul_f32 v{vt+5}, {f32(1.0/576)}, v{ST+e}
        v_mul_f32 v{vt+6}, {f32(1.0/576)}, v{ST+4+e}
        v_fma_f32 v{vt+6}, -v{vt+5}, v{vt+5}, v{vt+6}
        v_max_f32 v{vt+6}, 0, v{vt+6}
        v_add_f32 v{vt+6}, {f32(1e-5)}, v{vt+6}
        v_rsq_f32 v{vt+6}, v{vt+6}
        v_fma_f32 v{vt+5}, -v{vt+5}, s{s_swr}, v{ST+8+e}
        v_mul_f32 v{vt+5}, v{vt+5}, v{vt+6}
        v_ashrrev_i32 v{vt+6}, 31, v{vt+5}
        v_or_b32 v{vt+6}, 0x80000000, v{vt+6}
        v_xor_b32 v{vt+5}, v{vt+5}, v{vt+6}
        v_subrev_u32 v{vt+6}, {e}, v{vt+10}
        v_and_or_b32 v{vt+5}, v{vt+5}, s{s_c}, v{vt+6}
        v_max_u32 v{v_key}, v{v_key}, v{vt+5}
        """)
    dpp_reduce(a, 'v_max_u32', v_key)
    a(f"""
    s_lshl_b32 s{s_t0}, s{s_w}, 2
    s_add_u32 s{s_t0}, s{s_t0}, {LR}
    v_mov_b32 v{vt+9}, s{s_t0}
    s_mov_b32 exec_lo, 0
    s_mov_b32 exec_hi, 0x80000000
    ds_write_b32 v{vt+9}, v{v_key}
    s_mov_b64 exec, -1
    v_mov_b32 v{vt+9}, {LR}
    s_waitcnt lgkmcnt(0)
    s_barrier
    ds_read_b128 {vr(ST,4)}, v{vt+9}
    ds_read_b128 {vr(ST+4,4)}, v{vt+9} offset:16
    v_min_u32 v{vt}, 143, v0
    v_lshlrev_b32 v{vt}, 3, v{vt}
    v_mov_b32 v{vt+1}, 0
    s_waitcnt lgkmcnt(0)
    v_max3_u32 v{ST}, v{ST}, v{ST+1}, v{ST+2}
    v_max3_u32 v{ST+3}, v{ST+3}, v{ST+4}, v{ST+5}
    v_max3_u32 v{ST}, v{ST}, v{ST+6}, v{ST+7}
    v_max_u32 v{ST}, v{ST}, v{ST+3}
    v_readfirstlane_b32 s{s_idx}, v{ST}
    s_and_b32 s{s_idx}, s{s_idx}, 0x7ff
    s_sub_u32 s{s_idx}, 2047, s{s_idx}
    """)
    stamp(a, 3)
    HR = 24
    a(f"""
    s_mul_i32 s{s_t0}, s{s_idx}, 1152
    s_add_u32 s{s_t0}, s{s_t0}, {WS_H}
    s_lshl_b32 s{s_t1}, s{s_idx}, 2
    s_add_u32 s{s_t1}, s{s_t1}, {WS_STAT}
    s_add_u32 s{s_c}, s{s_t1}, 8192
    buffer_load_dwordx2 v[{HR}:{HR+1}], v{vt}, s[{SWS}:{SWS+3}], s{s_t0} offen
    buffer_load_dword v{HR+2}, v{vt+1}, s[{SWS}:{SWS+3}], s{s_t1} offen
    buffer_load_dword v{HR+3}, v{vt+1}, s[{SWS}:{SWS+3}], s{s_c} offen
    s_add_u32 s{s_c}, s{s_c}, 8192
    buffer_load_dword v{HR+4}, v{vt+1}, s[{SWS}:{SWS+3}], s{s_c} offen
    """)
    NMID = int(OPT.get('k4mid', '4'))
    rest = [(j, w) for j in range(NPRE, 5) for w in 'gu'] + [(j, 'd') for j in range(5)]
    for (j, w) in rest[:NMID]:
        wdma(j, w)
    a(f's_waitcnt vmcnt({NMID})')
    stamp(a, 4)
    vm_, vri, vsb = 30, 31, 32
    ln_scalars(a, HR+2, HR+3, vm_, vri, vsb)
    for k in range(2):
        a(f"""
        v_lshlrev_b32 v{vt+5}, 16, v{HR+k}
        v_and_b32 v{vt+6}, 0xffff0000, v{HR+k}
        v_sub_f32 v{vt+5}, v{vt+5}, v{vm_}
        v_sub_f32 v{vt+6}, v{vt+6}, v{vm_}
        v_cvt_pk_bf16_f32 v{vt+7}, v{vt+5}, v{vt+6}
        v_lshlrev_b32 v{vt+5}, 16, v{vt+7}
        v_and_b32 v{vt+6}, 0xffff0000, v{vt+7}
        v_mul_f32 v{vt+5}, v{vt+5}, v{vri}
        v_mul_f32 v{vt+6}, v{vt+6}, v{vri}
        v_cvt_pk_bf16_f32 v{34+k}, v{vt+5}, v{vt+6}
        """)
    a(f"""
    v_add_u32 v{vt}, {LX}, v{vt}
    ds_write_b64 v{vt}, v[34:35]
    """)
    for (j, w) in rest[NMID:]:
        wdma(j, w)
    a(f"""
    s_or_b32 s{s_t0}, s2, s{s_w}
    s_cmp_lg_u32 s{s_t0}, 0
    s_cbranch_scc1 {L}_nosel
    v_mov_b32 v36, s{s_idx}
    v_mov_b32 v37, v{vm_}
    v_mov_b32 v38, v{vri}
    v_fma_f32 v39, -v{vm_}, s{s_swr}, v{HR+4}
    v_mul_f32 v39, v39, v{vri}
    s_mov_b32 s{s_t0}, {WS_SEL}
    s_mov_b64 exec, 1
    buffer_store_dwordx4 v[36:39], v{vt+1}, s[{SWS}:{SWS+3}], s{s_t0} offen
    s_mov_b64 exec, -1
    {L}_nosel:
    """)
    vA, vB = vt, vt+1
    XFR = 40
    BFR = 76
    AC = 112
    a(f"""
    s_lshr_b32 s{s_t0}, s{s_w}, 1
    s_mul_i32 s{s_t1}, s{s_t0}, {9*32}
    s_add_u32 s{s_t1}, s{s_t1}, {LX}
    v_lshl_add_u32 v{vA}, v{v_h}, 4, s{s_t1}
    s_mul_i32 s{s_t0}, s{s_t0}, {9*1024}
    s_and_b32 s{s_t1}, s{s_w}, 1
    s_mul_i32 s{s_t1}, s{s_t1}, {LU}
    s_add_u32 s{s_t0}, s{s_t0}, s{s_t1}
    v_bfe_u32 v{vt+2}, v{v_l}, 2, 2
    v_lshl_add_u32 v{vt+2}, v{v_h}, 3, v{vt+2}
    v_lshlrev_b32 v{vB}, 6, v{vt+2}
    v_bfe_u32 v{vt+3}, v{v_l}, 4, 1
    v_lshl_add_u32 v{vB}, v{vt+3}, 5, v{vB}
    v_and_b32 v{vt+4}, 3, v{v_l}
    v_lshl_add_u32 v{vB}, v{vt+4}, 3, v{vB}
    v_add_u32 v{vB}, s{s_t0}, v{vB}
    s_waitcnt vmcnt(0) lgkmcnt(0)
    s_barrier
    """)
    for i in range(9):
        a(f'ds_read_b128 {vr(XFR+4*i,4)}, v{vA} offset:{32*i}')
        a(f'ds_read_b64_tr_b16 {vr(BFR+4*i,2)}, v{vB} offset:{1024*i}')
        a(f'ds_read_b64_tr_b16 {vr(BFR+4*i+2,2)}, v{vB} offset:{1024*i+256}')
        if i >= 3:
            k = i - 3
            a('s_waitcnt lgkmcnt(9)')
            a(f'v_mfma_f32_32x32x16_bf16 {vr(AC,16)}, {vr(XFR+4*k,4)}, {vr(BFR+4*k,4)}, {"0" if k == 0 else vr(AC,16)}')
    DB = 128
    DA = 152
    a(f"""
    v_mul_u32_u24 v{vB}, 1152, v{vt+2}
    v_lshl_add_u32 v{vB}, v{vt+3}, 5, v{vB}
    v_lshl_add_u32 v{vB}, v{vt+4}, 3, v{vB}
    s_lshl_b32 s{s_t0}, s{s_w}, 6
    s_add_u32 s{s_t0}, s{s_t0}, {LD}
    v_add_u32 v{vB}, s{s_t0}, v{vB}
    """)
    for k in range(6, 9):
        a(f's_waitcnt lgkmcnt({3*(8-k)})')
        a(f'v_mfma_f32_32x32x16_bf16 {vr(AC,16)}, {vr(XFR+4*k,4)}, {vr(BFR+4*k,4)}, {vr(AC,16)}')
    for j in range(3):
        for s_ in range(2):
            for jj in range(2):
                a(f'ds_read_b64_tr_b16 {vr(DB+8*j+4*s_+2*jj,2)}, v{vB} offset:{(16*s_+4*jj)*1152 + j*512}')
    stamp(a, 5)
    a(f"""
    s_lshl_b32 s{s_t0}, s{s_w}, 7
    s_add_u32 s{s_t0}, s{s_t0}, {LR+64}
    v_lshl_add_u32 v{vt+5}, v{v_t}, 2, s{s_t0}
    ds_write_b32 v{vt+5}, v{AC}
    v_lshlrev_b32 v{vt+5}, 2, v{v_t}
    v_add_u32 v{vt+5}, {LR+64}, v{vt+5}
    s_waitcnt lgkmcnt(0)
    s_barrier
    """)
    for j in range(8):
        a(f'ds_read_b32 v{24+j}, v{vt+5} offset:{128*j}')
    a(f"""
    s_mul_i32 s{s_t1}, s{s_fb}, 2304
    s_add_u32 s{s_t1}, s{s_t1}, {WS_Y}
    s_lshl_b32 s{s_t0}, s{s_w}, 7
    s_add_u32 s{s_t1}, s{s_t1}, s{s_t0}
    s_lshl_b32 s{s_t0}, s{s_w}, 6
    s_add_u32 s{s_t0}, s{s_t0}, {LR+1536}
    v_lshlrev_b32 v{vt+5}, 1, v{v_t}
    v_add_u32 v{vt+5}, s{s_t0}, v{vt+5}
    v_lshl_add_u32 v{vA}, v{v_h}, 4, s{s_t0}
    s_waitcnt lgkmcnt(0)
    v_add_f32 v24, v24, v26
    v_add_f32 v25, v25, v27
    v_add_f32 v28, v28, v30
    v_add_f32 v29, v29, v31
    v_add_f32 v24, v24, v28
    v_add_f32 v25, v25, v29
    """)
    bf16_round(a, 24, 24)
    bf16_round(a, 25, 25)
    a(f"""
    v_mul_f32 v26, {f32(-math.log2(math.e))}, v24
    v_exp_f32 v26, v26
    v_add_f32 v26, 1.0, v26
    v_rcp_f32 v26, v26
    v_mul_f32 v26, v24, v26
    """)
    bf16_round(a, 26, 26)
    a(f"""
    v_mul_f32 v26, v26, v25
    v_cvt_pk_bf16_f32 v26, v26, v26
    ds_write_b16 v{vt+5}, v26
    v_lshlrev_b32 v{vt+5}, 2, v{v_t}
    s_waitcnt lgkmcnt(0)
    ds_read_b128 {vr(XFR,4)}, v{vA}
    ds_read_b128 {vr(XFR+4,4)}, v{vA} offset:32
    s_waitcnt lgkmcnt(0)
    """)
    for j in range(3):
        a(f'v_mfma_f32_32x32x16_bf16 {vr(DA+16*j,16)}, {vr(XFR,4)}, {vr(DB+8*j,4)}, 0')
        a(f'v_mfma_f32_32x32x16_bf16 {vr(DA+16*j,16)}, {vr(XFR+4,4)}, {vr(DB+8*j+4,4)}, {vr(DA+16*j,16)}')
    a('s_mov_b64 exec, 0xffffffff')
    for j in range(2):
        a(f'buffer_store_dword v{DA+16*j}, v{vt+5}, s[{SWS}:{SWS+3}], s{s_t1} offen offset:{1024*j}')
    a(f"""
    s_cmp_gt_u32 s{s_w}, 1
    s_cbranch_scc1 {L}_fin
    buffer_store_dword v{DA+32}, v{vt+5}, s[{SWS}:{SWS+3}], s{s_t1} offen offset:2048
    {L}_fin:
    """)
    stamp(a, 7)
    stamps_flush(a, 3, SWS, s_w, 24)
    a('s_endpgm')
    a.label(f'{L}_out')
    HB = 32
    SB = 52
    a(f"""
    s_sub_u32 s{s_t0}, s2, {NFF}
    s_mul_i32 s{s_t1}, s{s_t0}, {32*1152}
    s_add_u32 s{s_c}, s{s_t1}, {WS_H}
    s_lshl_b32 s{s_t0}, s{s_t0}, 7
    s_add_u32 s{s_t0}, s{s_t0}, {WS_STAT}
    s_add_u32 s{s_fb}, s{s_t0}, 8192
    """)
    for j in range(5):
        a(f"""
        v_add_u32 v{vt}, {512*j}, v0
        v_min_u32 v{vt}, 2303, v{vt}
        v_lshlrev_b32 v{vt+10+j}, 4, v{vt}
        v_mul_u32_u24 v{vt+1}, 3641, v{vt}
        v_lshrrev_b32 v{vt+1}, 18, v{vt+1}
        v_lshlrev_b32 v{vt+1}, 2, v{vt+1}
        buffer_load_dwordx4 {vr(HB+4*j,4)}, v{vt+10+j}, s[{SWS}:{SWS+3}], s{s_c} offen
        buffer_load_dword v{SB+2*j}, v{vt+1}, s[{SWS}:{SWS+3}], s{s_t0} offen
        buffer_load_dword v{SB+2*j+1}, v{vt+1}, s[{SWS}:{SWS+3}], s{s_fb} offen
        """)
    OB = 64
    for j in range(5):
        a(f's_waitcnt vmcnt({3*(4-j) + j})')
        ln_scalars(a, SB+2*j, SB+2*j+1, vt, vt+1, vt+2)
        for k in range(4):
            hh = HB+4*j+k
            a(f"""
            v_lshlrev_b32 v{vt+3}, 16, v{hh}
            v_and_b32 v{vt+4}, 0xffff0000, v{hh}
            v_sub_f32 v{vt+5}, v{vt+3}, v{vt}
            v_sub_f32 v{vt+6}, v{vt+4}, v{vt}
            v_cvt_pk_bf16_f32 v{vt+7}, v{vt+5}, v{vt+6}
            v_lshlrev_b32 v{vt+5}, 16, v{vt+7}
            v_and_b32 v{vt+6}, 0xffff0000, v{vt+7}
            v_mul_f32 v{vt+5}, v{vt+5}, v{vt+1}
            v_mul_f32 v{vt+6}, v{vt+6}, v{vt+1}
            v_cvt_pk_bf16_f32 v{vt+7}, v{vt+5}, v{vt+6}
            v_lshlrev_b32 v{vt+5}, 16, v{vt+7}
            v_and_b32 v{vt+6}, 0xffff0000, v{vt+7}
            v_add_f32 v{vt+5}, v{vt+5}, v{vt+3}
            v_add_f32 v{vt+6}, v{vt+6}, v{vt+4}
            v_cvt_pk_bf16_f32 v{OB+4*j+k}, v{vt+5}, v{vt+6}
            """)
        a(f'buffer_store_dwordx4 {vr(OB+4*j,4)}, v{vt+10+j}, s[{SO}:{SO+3}], s{s_t1} offen')
    stamp(a, 7)
    stamps_flush(a, 3, SWS, s_w, 100)
    a(f"""
    {L}_end:
    s_endpgm
    """)
    kernels.append((L, NFF+NOUT, 512, LR + 2048, 200, 100))

def k5(a):
    L = 'k5_final_kernel'
    begin(a, L)
    SWS, SO = 12, 16
    s_t0, s_t1, s_idx = 20, 21, 22
    a(f'''
    s_cmp_ge_u32 s2, 18
    s_cbranch_scc1 {L}_end
    s_load_dwordx2 s[4:5], s[0:1], 64
    s_load_dwordx2 s[6:7], s[0:1], 80
    v_and_b32 v1, 31, v0
    v_lshrrev_b32 v2, 5, v0
    v_mul_u32_u24 v3, {18*2304}, v2
    v_lshl_add_u32 v3, v1, 2, v3
    v_mov_b32 v4, 0
    s_waitcnt lgkmcnt(0)
    ''')
    srd(a, SO, 4, 2048*1152)
    srd(a, SWS, 6, WS_SIZE)
    if DIAG and OPT.get('report'):
        a(f'''
        s_cmp_lg_u32 s2, 0
        s_cbranch_scc1 {L}_norep
        s_load_dwordx2 s[28:29], s[0:1], 72
        s_memrealtime s[30:31]
        s_waitcnt lgkmcnt(0)
        s_sub_u32 s32, s28, 0
        s_subb_u32 s33, s29, 0
        s_mov_b32 s34, 64
        s_mov_b32 s35, 0x00020000
        v_lshrrev_b32 v40, 2, v0
        v_mul_u32_u24 v40, {0x28000}, v40
        v_and_b32 v41, 3, v0
        v_mov_b32 v42, 0
        v_cmp_eq_u32 vcc, 1, v41
        v_cndmask_b32 v42, v42, 16, vcc
        v_cmp_eq_u32 vcc, 2, v41
        v_cndmask_b32 v42, v42, 24, vcc
        v_cmp_eq_u32 vcc, 3, v41
        v_cndmask_b32 v42, v42, 56, vcc
        v_add_u32 v40, v40, v42
        s_mov_b32 s36, {WS_DIAG + 5*512}
        buffer_load_dword v43, v40, s[{SWS}:{SWS+3}], s36 offen
        v_lshlrev_b32 v41, 2, v0
        s_waitcnt vmcnt(0)
        v_cmp_eq_u32 vcc, 14, v0
        v_mov_b32 v44, s30
        v_cndmask_b32 v43, v43, v44, vcc
        buffer_store_dword v43, v41, s[32:35], 0 offen
        v_readfirstlane_b32 s37, v43
        s_add_u32 s37, s37, {int(OPT.get('spin', '0'))}
        {L}_spin:
        s_memrealtime s[30:31]
        s_waitcnt lgkmcnt(0)
        s_sub_u32 s38, s30, s37
        s_cmp_lt_i32 s38, 0
        s_cbranch_scc1 {L}_spin
        {L}_norep:
        ''')
    a(f'''
    s_mov_b32 s{s_t1}, {WS_SEL}
    buffer_load_dwordx4 v[8:11], v4, s[{SWS}:{SWS+3}], s{s_t1} offen
    s_lshl_b32 s{s_t0}, s2, 7
    s_add_u32 s{s_t0}, s{s_t0}, {WS_Y}
    ''')
    for j in range(18):
        a(f'buffer_load_dword v{16+j}, v3, s[{SWS}:{SWS+3}], s{s_t0} offen')
        a(f's_add_u32 s{s_t0}, s{s_t0}, 2304')
    a(f'''
    s_waitcnt vmcnt(18)
    v_min_u32 v8, 2047, v8
    v_mul_u32_u24 v5, 1152, v8
    v_lshl_add_u32 v5, v1, 1, v5
    s_lshl_b32 s{s_t1}, s2, 6
    s_add_u32 s{s_t0}, s{s_t1}, {WS_H}
    buffer_load_ushort v12, v5, s[{SWS}:{SWS+3}], s{s_t0} offen
    s_waitcnt vmcnt(1)
    ''')
    for j in range(1, 18):
        a(f'v_add_f32 v16, v16, v{16+j}')
    a(f'''
    v_lshlrev_b32 v6, 2, v0
    ds_write_b32 v6, v16
    s_waitcnt lgkmcnt(0)
    s_barrier
    v_lshlrev_b32 v6, 2, v1
    ''')
    for j in range(8):
        a(f'ds_read_b32 v{16+j}, v6 offset:{128*j}')
    a('s_waitcnt vmcnt(0) lgkmcnt(0)')
    for j in range(1, 8):
        a(f'v_add_f32 v16, v16, v{16+j}')
    bf16_round(a, 16, 16)
    bf16_round(a, 11, 11)
    a(f'''
    v_mul_f32 v13, {f32(-math.log2(math.e))}, v11
    v_exp_f32 v13, v13
    v_add_f32 v13, 1.0, v13
    v_rcp_f32 v13, v13
    ''')
    bf16_round(a, 13, 13)
    a('v_mul_f32 v16, v16, v13')
    bf16_round(a, 16, 16)
    a(f'''
    v_lshlrev_b32 v12, 16, v12
    v_sub_f32 v14, v12, v9
    ''')
    bf16_round(a, 14, 14)
    a('v_mul_f32 v14, v14, v10')
    bf16_round(a, 14, 14)
    a('v_add_f32 v14, v14, v16')
    bf16_round(a, 14, 14)
    a(f'''
    v_add_f32 v14, v14, v12
    v_cvt_pk_bf16_f32 v14, v14, v14
    v_cmp_gt_u32 vcc, 32, v0
    s_and_saveexec_b64 s[24:25], vcc
    s_cbranch_execz {L}_end
    buffer_store_short v14, v5, s[{SO}:{SO+3}], s{s_t1} offen
    {L}_end:
    s_endpgm
    ''')
    kernels.append((L, 18, 256, 1024, 64, 64))


def build(extra_empty=0):
    a = Asm()
    a.raw('.amdgcn_target "amdgcn-amd-amdhsa--gfx950"')
    a.raw('.text')
    k1(a); k2(a); k3(a); k4(a); k5(a)
    nk = len(kernels)
    a.raw('code_end_marker:')
    a('s_endpgm')
    if extra_empty:
        begin(a, 'empty_kernel')
        a('s_endpgm')
        kernels.append(('empty_kernel', 256, 256, 0, 8, 16))
    body = a.render()
    hdr = ''
    for (lab, grid, block, lds, vg, sg) in kernels[:nk]:
        hdr += f'; @launch kernel={lab} grid=({grid},1,1) block=({block},1,1) lds={lds}\n'
    for i in range(extra_empty):
        hdr += f'; @launch kernel=empty_kernel grid=(256,1,1) block=(256,1,1) lds=0\n'
    desc = '.section .rodata,"a"\n'
    for (lab, grid, block, lds, vg, sg) in kernels:
        desc += f'''.p2align 6
.amdhsa_kernel {lab}
  .amdhsa_next_free_vgpr {vg}
  .amdhsa_next_free_sgpr {sg}
  .amdhsa_accum_offset {(vg+3)//4*4}
  .amdhsa_group_segment_fixed_size 0
  .amdhsa_kernarg_size 88
  .amdhsa_user_sgpr_count 2
  .amdhsa_user_sgpr_kernarg_segment_ptr 1
  .amdhsa_system_sgpr_workgroup_id_x 1
  .amdhsa_float_denorm_mode_32 3
.end_amdhsa_kernel
'''
    return hdr + body + desc

if __name__ == '__main__':
    if len(sys.argv) > 3 and sys.argv[3] == 'diag':
        DIAG = True
    if len(sys.argv) > 3 and sys.argv[3] == 'diagc':
        DIAG = 2
    out = sys.argv[1] if len(sys.argv) > 1 else f'cdna_kernels/{NAME}.s'
    open(out, 'w').write(build(int(sys.argv[2]) if len(sys.argv) > 2 else 0))
    print('wrote', out)
```
